```python
import torch

def _softmax(x, axis=-1):
    return torch.softmax(x, dim=axis)

def _gelu(x):
    return torch.nn.functional.gelu(x, approximate='tanh')

def _silu(x):
    return torch.nn.functional.silu(x)

def _sigmoid(x):
    return torch.sigmoid(x)

def _layernorm(x, axis=-1, eps=1e-05):
    m = x.mean(dim=axis, keepdim=True)
    v = x.var(dim=axis, keepdim=True, unbiased=False)
    return (x - m) / torch.sqrt(v + eps)

def _scatter_add(tgt, idx, src, axis=0):
    return tgt.clone().index_add_(axis, idx, src)

def _segment_sum(src, seg, n):
    out = torch.zeros((n,) + src.shape[1:], dtype=src.dtype)
    return out.index_add_(0, seg, src)

def _pad(x, pw):
    flat = tuple((v for pair in reversed(pw) for v in pair))
    return torch.nn.functional.pad(x, flat)
kernel_name = 'adaLN_cond__spectral_fnet__dense_activation_relu__prompt'

def setup_inputs():

    _w = lambda a: (lambda t: t.to(torch.bfloat16) if t.is_floating_point() else t)(torch.as_tensor(a))

    def _A_setup():
        B, S, D = (1, 2048, 512)
        ns = torch.arange(S)[:, None] * torch.arange(S)[None, :]
        nd = torch.arange(D)[:, None] * torch.arange(D)[None, :]
        Ws_re = torch.cos(-2.0 * torch.pi * ns / S).to(float)
        Ws_im = torch.sin(-2.0 * torch.pi * ns / S).to(float)
        Wd_re = torch.cos(-2.0 * torch.pi * nd / D).to(float)
        Wd_im = torch.sin(-2.0 * torch.pi * nd / D).to(float)
        return {'x': _w((lambda *s: torch.randn(*s, dtype=torch.bfloat16) * 0.1)(B, S, D)), 'dft_seq_re': _w(Ws_re), 'dft_seq_im': _w(Ws_im), 'dft_hid_re': _w(Wd_re), 'dft_hid_im': _w(Wd_im)}
    _A_in = _A_setup()

    def _B_setup():
        B, S, D, Dff = (1, 2048, 512, 1792)
        return {'x': _w((lambda *s: torch.randn(*s, dtype=torch.bfloat16) * 0.1)(B, S, D)), 'w1': _w((lambda *s: torch.randn(*s, dtype=torch.bfloat16) * 3.2)(D, Dff)), 'w2': _w((lambda *s: torch.randn(*s, dtype=torch.bfloat16) * 3.2)(Dff, D))}
    _B_in = _B_setup()
    return {'A_x': _A_in['x'], 'A_dft_seq_re': _A_in['dft_seq_re'], 'A_dft_seq_im': _A_in['dft_seq_im'], 'A_dft_hid_re': _A_in['dft_hid_re'], 'A_dft_hid_im': _A_in['dft_hid_im'], 'B_x': _B_in['x'], 'B_w1': _B_in['w1'], 'B_w2': _B_in['w2'], 'c': _w((lambda *s: torch.randn(*s, dtype=torch.bfloat16) * 0.4)(1, 512) * 8.0), 'w_mod': _w((lambda *s: torch.randn(*s, dtype=torch.bfloat16) * 0.4)(512, 6 * 512) * 512 ** (-0.5) * 8.0)}

def reference(A_x, A_dft_seq_re, A_dft_seq_im, A_dft_hid_re, A_dft_hid_im, B_x, B_w1, B_w2, c, w_mod):

    def _A_ref(x, dft_seq_re, dft_seq_im, dft_hid_re, dft_hid_im):
        a = torch.einsum('bsd,ed->bse', x, dft_hid_re)
        b = torch.einsum('bsd,ed->bse', x, dft_hid_im)
        y = torch.einsum('ts,bse->bte', dft_seq_re, a) - torch.einsum('ts,bse->bte', dft_seq_im, b)
        return y

    def _B_ref(x, w1, w2):
        h = torch.einsum('bsd,df->bsf', x, w1)
        zero = torch.zeros_like(h)
        h = torch.maximum(h, zero)
        return torch.einsum('bsf,fd->bsd', h, w2)
    x = A_x
    mod = (_silu(c) @ w_mod).reshape(c.shape[0], 6, 1, -1)
    sa, ca, ga, sb, cb, gb = (mod[:, 0].clone(), mod[:, 1].clone(), mod[:, 2].clone(), mod[:, 3].clone(), mod[:, 4].clone(), mod[:, 5].clone())
    h = _layernorm(x, axis=-1) * (1 + ca) + sa
    x = x + ga * _A_ref(h, A_dft_seq_re, A_dft_seq_im, A_dft_hid_re, A_dft_hid_im)
    h = _layernorm(x, axis=-1) * (1 + cb) + sb
    x = x + gb * _B_ref(h, B_w1, B_w2)
    return x
```

```python
import re

def v(i, n=1): return f"v{i}" if n == 1 else f"v[{i}:{i+n-1}]"
def a(i, n=1): return f"a{i}" if n == 1 else f"a[{i}:{i+n-1}]"
def s(i, n=1): return f"s{i}" if n == 1 else f"s[{i}:{i+n-1}]"

_reg_re = re.compile(r"^(-|\|)?(abs\()?([vas])(\d+|\[(\d+):(\d+)\])\)?\|?$")
def regs_of(tok):
    tok = tok.strip()
    if tok in ("vcc",): return {("s", "vcc")}
    if tok in ("vcc_lo", "vcc_hi"): return {("s", "vcc")}
    if tok == "exec": return {("s", "exec")}
    if tok == "m0": return {("s", "m0")}
    m = _reg_re.match(tok)
    if not m: return set()
    k = m.group(3)
    if m.group(5) is not None:
        return {(k, i) for i in range(int(m.group(5)), int(m.group(6)) + 1)}
    return {(k, int(m.group(4)))}

def split_ops(rest):
    out, depth, cur = [], 0, ""
    for ch in rest:
        if ch == "[": depth += 1
        if ch == "]": depth -= 1
        if ch == "," and depth == 0:
            out.append(cur.strip()); cur = ""
        else: cur += ch
    if cur.strip(): out.append(cur.strip())
    return out

TRANS = ("v_exp_f32", "v_log_f32", "v_rcp_f32", "v_rsq_f32", "v_sqrt_f32", "v_sin_f32", "v_cos_f32")

class Ins:
    def __init__(self, text):
        self.text = text
        t = text.split(";")[0].strip()
        self.label = t.endswith(":")
        self.directive = t.startswith(".") or t == ""
        self.op = ""
        self.dst, self.src = set(), set()
        self.kind = None
        if self.label or self.directive: return
        parts = t.split(None, 1)
        op = parts[0]; self.op = op
        rest = parts[1] if len(parts) > 1 else ""
        ops = split_ops(rest)
        mods = ""
        if ops:
            last = ops[-1].split(None, 1)
            ops[-1] = last[0]
            mods = last[1] if len(last) > 1 else ""
        self.ops, self.mods = ops, mods
        R = [regs_of(o) for o in ops]
        U = lambda L: set().union(*L) if L else set()
        base = re.sub(r"_(e32|e64|dpp|sdwa)$", "", op)
        self.base = base
        if op.startswith("v_mfma"):
            self.kind = "mfma"; self.dst = R[0]; self.srcA = R[1]; self.srcB = R[2]; self.srcC = R[3]
            self.src = R[1] | R[2] | R[3]
            self.passes = 8 if "32x32x16" in op else 4 if "16x16x32" in op else None
            assert self.passes, op
        elif op.startswith("v_"):
            self.kind = "valu"
            self.trans = base in TRANS
            self.dpp = ("quad_perm" in mods or "row_" in mods or "wave_" in mods or op.endswith("_dpp"))
            if base.startswith("v_cmp"):
                self.dst = R[0]; self.src = U(R[1:])
            elif base.startswith("v_permlane") and "swap" in base:
                self.dst = R[0] | R[1]; self.src = R[0] | R[1]; self.perm = True
            elif base in ("v_fmac_f32", "v_dot2c_f32_bf16", "v_pk_fmac_f16"):
                self.dst = R[0]; self.src = U(R)
            elif base in ("v_add_co_u32", "v_sub_co_u32", "v_addc_co_u32"):
                self.dst = R[0] | R[1]; self.src = U(R[2:])
            else:
                self.dst = R[0]; self.src = U(R[1:])
                if base == "v_cndmask_b32" and len(ops) == 3: self.src |= {("s", "vcc")}
            if self.dpp: self.src |= R[0] if ("bound_ctrl" not in mods) else set()
        elif op.startswith("ds_"):
            self.kind = "ds"
            if op.startswith("ds_read") or op.startswith("ds_bpermute") or op.startswith("ds_swizzle") or op.startswith("ds_permute"):
                self.dst = R[0]; self.src = U(R[1:]); self.load = True
            else:
                self.dst = set(); self.src = U(R); self.load = False
        elif op.startswith("buffer_") or op.startswith("global_"):
            self.kind = "vmem"
            allm = rest
            self.lds = bool(re.search(r"\blds\b", allm)) or "_lds_" in op
            if op in ("buffer_wbl2", "buffer_inv"):
                self.load = False; self.dst = set(); self.src = set(); self.nodata = True
            elif "load" in op:
                self.load = True
                if self.lds: self.dst = set(); self.src = U(R) | {("s", "m0")}
                else: self.dst = R[0]; self.src = U(R[1:])
            elif "atomic" in op:
                self.load = False; self.src = U(R); self.dst = set()
                if "sc0" in mods or " sc0" in allm:
                    self.load = True
                    self.dst = R[0]
            else:
                self.load = False; self.dst = set(); self.src = U(R)
                self.data = R[0] if op.startswith("buffer_") else R[1]
                self.wide = op.endswith("x4") or op.endswith("x3")
        elif op.startswith("s_load") or op.startswith("s_buffer_load") or op in ("s_memtime", "s_memrealtime"):
            self.kind = "smem"; self.dst = R[0]; self.src = U(R[1:])
        elif op.startswith("s_"):
            self.kind = "salu"
            if base in ("s_waitcnt", "s_barrier", "s_nop", "s_branch", "s_endpgm", "s_setprio", "s_sleep") or base.startswith("s_cbranch"):
                pass
            elif base.startswith("s_cmp"):
                self.src = U(R)
            else:
                self.dst = R[0]; self.src = U(R[1:])
                if "saveexec" in base: self.dst |= {("s", "exec")}
        else:
            raise ValueError("unknown op: " + text)

def _av(x):
    return x

class Kernel:
    def __init__(self, name):
        self.name = name
        self.ins = []
    def __call__(self, text):
        for ln in text.split("\n"):
            ln = ln.strip()
            if ln == "" or ln.startswith(";"):
                if ln: self.ins.append(Ins("; " + ln.lstrip("; ")) if False else _Comment(ln))
                continue
            self.ins.append(Ins(ln))
    def comment(self, t): self.ins.append(_Comment("; " + t))

    def finalize(self, check=True):
        out = []
        hist = []
        pos = 0
        vm = []
        lg = []
        errors = []
        def need(ins):
            n = 0
            for (p, pr) in reversed(hist):
                d = pos - p - 1
                if d >= 20: break
                req = required(pr, ins)
                if req - d > n: n = req - d
            return n
        for ins in self.ins:
            if isinstance(ins, _Comment):
                out.append("    " + ins.text); continue
            if ins.label:
                out.append(ins.text)
                continue
            if ins.directive:
                out.append(ins.text); continue
            n = need(ins)
            while n > 0:
                k = min(n, 16)
                out.append(f"    s_nop {k-1}")
                pos += k; n -= k
            if check:
                touched = ins.src | ins.dst
                if ins.op == "s_waitcnt":
                    m = re.search(r"vmcnt\((\d+)\)", ins.text)
                    if m:
                        k = int(m.group(1)); vm = vm[len(vm) - k:] if k < len(vm) else vm
                        if k == 0: vm = []
                    m = re.search(r"lgkmcnt\((\d+)\)", ins.text)
                    if m:
                        k = int(m.group(1))
                        if k == 0: lg = []
                        else:
                            if any(x.kind == "smem" for x in lg): pass
                            else: lg = lg[len(lg) - k:] if k < len(lg) else lg
                else:
                    for x in vm:
                        if x.dst & touched: errors.append(f"vm pending {x.text} touched by {ins.text}")
                    for x in lg:
                        if x.dst & touched: errors.append(f"lgkm pending {x.text} touched by {ins.text}")
                    if ins.kind == "vmem":
                        vm.append(ins)
                        if len(vm) > 63: errors.append(f"more than 63 vmem outstanding at {ins.text}")
                    if ins.kind in ("ds", "smem"):
                        lg.append(ins)
                        if ins.kind == "smem" and len(ins.dst) > 1: lg.append(ins)
                        if len(lg) > 15 and False: errors.append(f">15 lgkm outstanding at {ins.text}")
            out.append("    " + ins.text)
            hist.append((pos, ins))
            if ins.op == "s_nop":
                pos += int(ins.ops[0], 0) + 1
            else:
                pos += 1
            if len(hist) > 40: hist = hist[-40:]
        if errors:
            for e in errors[:20]: print("WAITCNT ERROR:", e)
            raise RuntimeError(f"{len(errors)} waitcnt errors in {self.name}")
        return "\n".join(out) + "\n"

class _Comment:
    def __init__(self, t): self.text = t

def vg(S):
    return {x for x in S if x[0] in ("v", "a")}
def sg(S):
    return {x for x in S if x[0] == "s"}

def required(p, c):
    r = 0
    if p.kind == "valu":
        w = vg(p.dst)
        if c.kind == "mfma" and (w & c.src): r = max(r, 2)
        if c.kind == "valu":
            if getattr(p, "trans", False) and not getattr(c, "trans", False) and (w & c.src): r = max(r, 1)
            if getattr(c, "dpp", False) and (w & c.src): r = max(r, 2)
            if getattr(c, "perm", False) and (w & c.src): r = max(r, 2)
            if c.base in ("v_readlane_b32", "v_readfirstlane_b32") and (w & c.src): r = max(r, 1)
            sw = sg(p.dst)
            if sw & c.src:
                r = max(r, 4 if c.base in ("v_readlane_b32", "v_writelane_b32") else 2)
        if c.kind == "vmem" and (sg(p.dst) & c.src): r = max(r, 5)
        if c.kind == "mfma" and ("s", "exec") in p.dst: r = max(r, 4)
    if p.kind == "mfma":
        P = p.passes
        if c.kind == "mfma":
            if p.dst & c.srcC:
                if p.dst == c.srcC and p.passes == c.passes: r = max(r, 0)
                else: r = max(r, {4: 6, 8: 10}[P])
            if p.dst & (c.srcA | c.srcB): r = max(r, {4: 8, 8: 12}[P])
            if (p.dst & c.dst) and p.dst != c.srcC: r = max(r, {4: 8, 8: 12}[P])
        elif c.kind in ("valu", "vmem", "ds"):
            if p.dst & (c.src | c.dst): r = max(r, {4: 8, 8: 12}[P])
            if c.kind == "valu" and (p.srcC & c.dst): r = max(r, {4: 3, 8: 7}[P])
            if c.kind in ("vmem", "ds") and (p.srcC & c.dst): r = max(r, {4: 3, 8: 7}[P])
    if p.kind == "vmem" and not p.load and getattr(p, "wide", False):
        if c.kind == "valu" and (p.data & c.dst): r = max(r, 2)
        elif c.kind in ("mfma", "ds", "vmem") and (p.data & c.dst): r = max(r, 2)
    if p.kind == "ds" and not p.load and c.kind in ("valu", "mfma") and p.op in ("ds_write_b128", "ds_write_b96"):
        pass
    if p.kind == "salu" and ("s", "m0") in p.dst:
        if c.kind == "vmem" and getattr(c, "lds", False): r = max(r, 1)
    return r

def desc(name, vgpr, accum, sgpr=102):
    return f""".section .rodata,"a"
.p2align 6
.amdhsa_kernel {name}
  .amdhsa_next_free_vgpr {vgpr}
  .amdhsa_next_free_sgpr {sgpr}
  .amdhsa_accum_offset {accum}
  .amdhsa_group_segment_fixed_size 0
  .amdhsa_kernarg_size 104
  .amdhsa_user_sgpr_count 2
  .amdhsa_user_sgpr_kernarg_segment_ptr 1
  .amdhsa_system_sgpr_workgroup_id_x 1
  .amdhsa_float_denorm_mode_32 3
.end_amdhsa_kernel
"""
def head(name):
    return f""".text
.globl {name}
.p2align 8
.type {name},@function
{name}:
"""
```

```python
import sys
from asmdsl import *

NAME = "adaLN_cond__spectral_fnet__dense_activation_relu__prompt"
WS_MOD = 0
WS_U   = 0x10000
WS_X2  = WS_U + 0x200000
WS_H2  = WS_X2 + 0x200000
WS_H   = WS_H2 + 0x200000
H_BYTES = 2048 * 1792 * 2

def srd(K, r, lo, hi, size, add=0):
    if add:
        K(f"s_add_u32 s{r}, s{lo}, {add}")
        K(f"s_addc_u32 s{r+1}, s{hi}, 0")
    else:
        K(f"s_mov_b32 s{r}, s{lo}")
        K(f"s_mov_b32 s{r+1}, s{hi}")
    K(f"s_mov_b32 s{r+2}, {size}")
    K(f"s_mov_b32 s{r+3}, 0x20000")

def fconst(x):
    import struct
    return hex(struct.unpack("<I", struct.pack("<f", x))[0])

def gen_k1():
    K = Kernel("k1_kernel")
    NP1, NMOD = 256, 48
    K(f"""
    s_load_dwordx2 s[4:5], s[0:1], 0
    s_load_dwordx2 s[6:7], s[0:1], 96
    s_load_dwordx2 s[8:9], s[0:1], 64
    s_load_dwordx2 s[10:11], s[0:1], 72
    s_cmp_ge_u32 s2, {NP1+NMOD}
    s_cbranch_scc1 K1_END
    v_and_b32 v1, 63, v0
    v_lshrrev_b32 v4, 6, v0
    v_readfirstlane_b32 s22, v4
    s_cmp_ge_u32 s2, {NP1}
    s_cbranch_scc1 K1_MOD
    """)
    X = 8
    CB = 72
    T = 88
    RS1 = 192
    K(f"""
    s_and_b32 s20, s2, 31
    s_lshr_b32 s21, s2, 5
    v_lshrrev_b32 v5, 3, v1
    v_and_b32 v6, 7, v1
    s_lshl_b32 s23, s22, 4
    v_add_u32 v7, s23, v5
    v_lshlrev_b32 v2, 15, v7
    v_lshl_add_u32 v2, v6, 4, v2
    s_lshl_b32 s23, s20, 10
    v_add_u32 v2, s23, v2
    v_add_u32 v3, 0x40000, v2
    """)
    for j in range(8):
        K(f"s_add_u32 s{24+j}, s21, {j}")
        K(f"s_and_b32 s{24+j}, s{24+j}, 7")
        K(f"s_lshl_b32 s{24+j}, s{24+j}, 7")
    K("s_waitcnt lgkmcnt(0)")
    srd(K, 12, 4, 5, 0x200000)
    for j in range(8):
        for u in range(2):
            K(f"buffer_load_dwordx4 {v(X+(j*2+u)*4,4)}, v{2+u}, s[12:15], s{24+j} offen")
    srd(K, 16, 6, 7, 0x200000, WS_U)
    vo, vsl, vc, vd, vb, vf, vd8 = T, T+1, T+2, T+3, T+4, T+5, T+6
    tt = T+8
    K(f"""
    s_lshr_b32 s23, s22, 1
    s_lshl_b32 s23, s23, 5
    v_and_b32 v{vo}, 31, v1
    v_add_u32 v{vo}, s23, v{vo}
    v_lshrrev_b32 v{vsl}, 1, v{vo}
    v_and_b32 v{vc}, 1, v{vo}
    v_cvt_f32_u32 v{vd}, v{vsl}
    v_mul_f32 v{vd}, {fconst(1/64)}, v{vd}
    v_mul_u32_u24 v{vb}, s20, v{vsl}
    v_cvt_f32_u32 v{vb}, v{vb}
    v_mul_f32 v{vb}, {fconst(1/2048)}, v{vb}
    v_cvt_f32_u32 v{vf}, v{vc}
    v_fmac_f32 v{vb}, 0.25, v{vf}
    v_cmp_eq_u32 vcc, 1, v{vo}
    v_cndmask_b32 v{vd}, v{vd}, 0.5, vcc
    v_cndmask_b32 v{vb}, v{vb}, 0, vcc
    """.replace("v_cndmask_b32 v%d, v%d, 0.5, vcc" % (vd, vd), "v_mov_b32 v%d, 0.5\n v_cndmask_b32 v%d, v%d, v%d, vcc" % (vd8, vd, vd, vd8))
       .replace("v_cndmask_b32 v%d, v%d, 0, vcc" % (vb, vb), "v_mov_b32 v%d, 0\n v_cndmask_b32 v%d, v%d, v%d, vcc" % (vd8, vb, vb, vd8)))
    K(f"""
    v_lshrrev_b32 v{vf}, 5, v1
    v_cvt_f32_u32 v{vf}, v{vf}
    v_mul_f32 v{vd8}, {fconst(8.0)}, v{vd}
    v_fma_f32 v{vf}, v{vf}, v{vd8}, v{vb}
    """)
    for st in range(4):
        for j in range(8):
            K(f"v_cos_f32 v{tt+j}, v{vf}")
            K(f"v_add_f32 v{vf}, v{vf}, v{vd}")
        K(f"v_add_f32 v{vf}, v{vf}, v{vd8}")
        for p in range(4):
            K(f"v_cvt_pk_bf16_f32 v{CB+st*4+p}, v{tt+2*p}, v{tt+2*p+1}")
    vst = T+7
    K(f"""
    v_lshlrev_b32 v{vst}, 6, v{vsl}
    v_add_u32 v{vst}, v{vst}, v{vc}
    s_lshl_b32 s23, s20, 1
    v_add_u32 v{vst}, s23, v{vst}
    v_lshlrev_b32 v{vst}, 10, v{vst}
    v_lshrrev_b32 v{tt}, 5, v1
    v_lshl_add_u32 v{vst}, v{tt}, 4, v{vst}
    s_and_b32 s23, s22, 1
    s_lshl_b32 s23, s23, 6
    v_add_u32 v{vst}, s23, v{vst}
    s_lshl_b32 s33, s21, 7
    """)
    vw, vr = T+16, T+17
    K(f"""
    s_lshl_b32 s23, s22, 4
    v_add_u32 v{vw}, s23, v5
    v_mul_u32_u24 v{vw}, {RS1}, v{vw}
    v_lshl_add_u32 v{vw}, v6, 4, v{vw}
    v_lshrrev_b32 v{tt}, 5, v1
    v_lshlrev_b32 v{tt}, 3, v{tt}
    v_bfe_u32 v{tt+1}, v1, 2, 2
    v_add_u32 v{tt}, v{tt}, v{tt+1}
    v_mul_u32_u24 v{vr}, {RS1}, v{tt}
    v_bfe_u32 v{tt}, v1, 4, 1
    v_lshlrev_b32 v{tt}, 5, v{tt}
    v_add_u32 v{vr}, v{vr}, v{tt}
    v_and_b32 v{tt}, 3, v1
    v_lshl_add_u32 v{vr}, v{tt}, 3, v{vr}
    s_and_b32 s23, s22, 1
    s_lshl_b32 s23, s23, 6
    v_add_u32 v{vr}, s23, v{vr}
    s_mov_b32 s32, 0x3f803f80
    """)
    S0, Q0, S1, Q1 = T+20, T+21, T+22, T+23
    acc = [(S0, Q0), (S1, Q1)]
    for j in range(8):
        K(f"s_waitcnt vmcnt({14-2*j})")
        for c4 in range(4):
            for u in range(2):
                x = X+(j*2+u)*4+c4
                first = (j == 0 and c4 == 0)
                K(f"v_dot2_f32_bf16 v{acc[u][0]}, v{x}, s32, {'0' if first else 'v%d' % acc[u][0]}")
                K(f"v_dot2_f32_bf16 v{acc[u][1]}, v{x}, v{x}, {'0' if first else 'v%d' % acc[u][1]}")
    for perm in ("quad_perm:[1,0,3,2]", "quad_perm:[2,3,0,1]", "row_half_mirror"):
        for r in (S0, Q0, S1, Q1):
            K(f"v_add_f32_dpp v{r}, v{r}, v{r} {perm} row_mask:0xf bank_mask:0xf")
    for u in range(2):
        sm, sq = acc[u]
        K(f"v_mul_f32 v{sm}, {fconst(1/512)}, v{sm}")
        K(f"v_mul_f32 v{sq}, {fconst(1/512)}, v{sq}")
        K(f"v_fma_f32 v{sq}, -v{sm}, v{sm}, v{sq}")
        K(f"v_max_f32 v{sq}, 0, v{sq}")
        K(f"v_add_f32 v{sq}, {fconst(1e-5)}, v{sq}")
        K(f"v_rsq_f32 v{sq}, v{sq}")
        K(f"v_mul_f32 v{sm}, v{sm}, v{sq}")
    N = T+24
    for u in range(2):
        sm, sq = acc[u]
        for c4 in range(4):
            x = X+u*4+c4
            K(f"v_lshlrev_b32 v{N+0+2*c4}, 16, v{x}")
            K(f"v_and_b32 v{N+1+2*c4}, 0xffff0000, v{x}")
        for e in range(8):
            K(f"v_fma_f32 v{N+e}, v{N+e}, v{sq}, -v{sm}")
        P = N+8+u*4
        for c4 in range(4):
            K(f"v_cvt_pk_bf16_f32 v{P+c4}, v{N+2*c4}, v{N+2*c4+1}")
        K(f"ds_write_b128 v{vw}, {v(P,4)} offset:{u*8*RS1}")
    K("s_waitcnt lgkmcnt(0)")
    K("s_barrier")
    AF = X
    for st in range(4):
        for rd in range(2):
            K(f"ds_read_b64_tr_b16 {v(AF+st*4+rd*2,2)}, v{vr} offset:{(16*st+4*rd)*RS1}")
    ACC = X+16
    for st in range(4):
        K(f"s_waitcnt lgkmcnt({6-2*st})")
        K(f"v_mfma_f32_32x32x16_bf16 {v(ACC,16)}, {v(AF+st*4,4)}, {v(CB+st*4,4)}, {'0' if st==0 else v(ACC,16)}")
    PK = X+32
    for q in range(4):
        K(f"v_cvt_pk_bf16_f32 v{PK+2*q}, v{ACC+4*q}, v{ACC+4*q+1}")
        K(f"v_cvt_pk_bf16_f32 v{PK+2*q+1}, v{ACC+4*q+2}, v{ACC+4*q+3}")
    for pr in range(2):
        K(f"v_permlane32_swap_b32 v{PK+4*pr}, v{PK+4*pr+2}")
        K(f"v_permlane32_swap_b32 v{PK+4*pr+1}, v{PK+4*pr+3}")
    for pr in range(2):
        K(f"buffer_store_dwordx4 {v(PK+4*pr,4)}, v{vst}, s[16:19], s33 offen offset:{pr*32}")
    K("s_endpgm")
    K("K1_MOD:")
    W = 8
    SL = 72
    SH = 88
    AC = 104
    T = 112
    K(f"""
    s_sub_u32 s20, s2, {NP1}
    v_lshrrev_b32 v5, 3, v1
    v_and_b32 v6, 7, v1
    v_lshlrev_b32 v7, 4, v1
    s_lshl_b32 s23, s22, 7
    v_add_u32 v2, s23, v5
    v_mul_u32_u24 v3, 6144, v2
    v_lshl_add_u32 v3, v6, 4, v3
    s_waitcnt lgkmcnt(0)
    """)
    srd(K, 12, 8, 9, 1024)
    srd(K, 16, 10, 11, 512*6144)
    K(f"buffer_load_dwordx4 {v(T,4)}, v7, s[12:15], 0 offen")
    K("s_lshl_b32 s24, s20, 7")
    for it in range(16):
        K(f"buffer_load_dwordx4 {v(W+it*4,4)}, v3, s[16:19], s24 offen")
        if it < 15: K("s_add_u32 s24, s24, 49152")
    srd(K, 28, 6, 7, 12288, WS_MOD) if WS_MOD else srd(K, 28, 6, 7, 12288)
    K("s_waitcnt vmcnt(16)")
    E = T+4
    for c4 in range(4):
        K(f"v_lshlrev_b32 v{E+2*c4}, 16, v{T+c4}")
        K(f"v_and_b32 v{E+2*c4+1}, 0xffff0000, v{T+c4}")
    G = T+12
    for e in range(8):
        K(f"v_mul_f32 v{G+e}, {fconst(-1.4426950408889634)}, v{E+e}")
    for e in range(8):
        K(f"v_exp_f32 v{G+e}, v{G+e}")
    for e in range(8):
        K(f"v_add_f32 v{G+e}, 1.0, v{G+e}")
    for e in range(8):
        K(f"v_rcp_f32 v{G+e}, v{G+e}")
    for e in range(8):
        K(f"v_mul_f32 v{G+e}, v{E+e}, v{G+e}")
    for e in range(8):
        K(f"v_cvt_pk_bf16_f32 v{G+e}, v{G+e}, 0")
    K(f"""
    s_lshl_b32 s25, s22, 11
    v_lshlrev_b32 v7, 5, v1
    v_add_u32 v7, s25, v7
    ds_write_b128 v7, {v(G,4)}
    ds_write_b128 v7, {v(G+4,4)} offset:16
    v_lshlrev_b32 v7, 2, v2
    v_add_u32 v7, s25, v7
    s_waitcnt lgkmcnt(0)
    """)
    for it in range(16):
        K(f"ds_read_b32 v{SL+it}, v7 offset:{it*32}")
    K("s_waitcnt lgkmcnt(0)")
    for it in range(16):
        K(f"v_lshlrev_b32 v{SH+it}, 16, v{SL+it}")
    for it in range(16):
        K(f"s_waitcnt vmcnt({15-it})")
        for c4 in range(4):
            K(f"v_dot2_f32_bf16 v{AC+2*c4}, v{W+it*4+c4}, v{SL+it}, {'0' if it==0 else 'v%d'%(AC+2*c4)}")
            K(f"v_dot2_f32_bf16 v{AC+2*c4+1}, v{W+it*4+c4}, v{SH+it}, {'0' if it==0 else 'v%d'%(AC+2*c4+1)}")
    for e in range(8):
        K(f"v_add_f32_dpp v{AC+e}, v{AC+e}, v{AC+e} row_ror:8 row_mask:0xf bank_mask:0xf")
    for swap in ("v_permlane16_swap_b32", "v_permlane32_swap_b32"):
        for e in range(8):
            K(f"v_mov_b32 v{T+e}, v{AC+e}")
        for e in range(8):
            K(f"{swap} v{AC+e}, v{T+e}")
        for e in range(8):
            K(f"v_add_f32 v{AC+e}, v{AC+e}, v{T+e}")
    PB = 8192
    K(f"""
    s_lshl_b32 s25, s22, 8
    v_lshlrev_b32 v7, 5, v6
    v_add_u32 v7, s25, v7
    ds_write_b128 v7, {v(AC,4)} offset:{PB}
    ds_write_b128 v7, {v(AC+4,4)} offset:{PB+16}
    s_waitcnt lgkmcnt(0)
    s_barrier
    s_cmp_lg_u32 s22, 0
    s_cbranch_scc1 K1_END
    v_lshlrev_b32 v7, 2, v1
    ds_read_b32 v{T}, v7 offset:{PB}
    ds_read_b32 v{T+1}, v7 offset:{PB+256}
    ds_read_b32 v{T+2}, v7 offset:{PB+512}
    ds_read_b32 v{T+3}, v7 offset:{PB+768}
    s_waitcnt lgkmcnt(0)
    v_add_f32 v{T}, v{T}, v{T+1}
    v_add_f32 v{T+2}, v{T+2}, v{T+3}
    v_add_f32 v{T}, v{T}, v{T+2}
    v_cvt_pk_bf16_f32 v{T}, v{T}, v{T}
    v_lshlrev_b32 v{T}, 16, v{T}
    s_lshr_b32 s26, s20, 3
    s_cmp_eq_u32 s26, 1
    s_cbranch_scc1 K1_PLUS1
    s_cmp_eq_u32 s26, 4
    s_cbranch_scc0 K1_STORE
    K1_PLUS1:
    v_add_f32 v{T}, 1.0, v{T}
    v_cvt_pk_bf16_f32 v{T}, v{T}, v{T}
    v_lshlrev_b32 v{T}, 16, v{T}
    K1_STORE:
    s_lshl_b32 s27, s20, 8
    buffer_store_dword v{T}, v7, s[28:31], s27 offen
    K1_END:
    s_endpgm
    """)
    return K, dict(grid=NP1+NMOD, lds=12288+1024, vgpr=144)

def gen_k2():
    K = Kernel("k2_kernel")
    K(f"""
    s_load_dwordx2 s[4:5], s[0:1], 0
    s_load_dwordx2 s[6:7], s[0:1], 96
    s_cmp_ge_u32 s2, 256
    s_cbranch_scc1 K2_END
    v_and_b32 v1, 63, v0
    v_lshrrev_b32 v4, 6, v0
    v_readfirstlane_b32 s34, v4
    s_and_b32 s32, s2, 31
    s_lshr_b32 s33, s2, 5
    v_lshrrev_b32 v2, 4, v1
    v_and_b32 v3, 15, v1
    """)
    RAW, FR, K1R, XA, XB, GA, K2R, SB = 16, 80, 144, 152, 156, 160, 168, 176
    AS, CC, CS, CN, TWC, TWS, MM, MP, SA = 184, 192, 200, 208, 216, 224, 232, 236, 240
    T = 4
    K(f"""
    s_lshl_b32 s36, s32, 16
    v_lshlrev_b32 v4, 13, v2
    v_lshl_add_u32 v4, v3, 4, v4
    s_lshl_b32 s37, s34, 8
    s_add_u32 s36, s36, s37
    v_add_u32 v4, s36, v4
    s_movk_i32 s40, 0x1000
    s_mov_b32 s41, 0x8000
    s_mov_b32 s42, 0x9000
    s_waitcnt lgkmcnt(0)
    """)
    srd(K, 12, 6, 7, 0x200000, WS_U)
    srd(K, 16, 6, 7, 12288)
    for st in range(2):
        for j in range(8):
            so = ["0", "s40", "s41", "s42"][st*2 + j//4]
            K(f"buffer_load_dwordx4 {v(RAW+st*32+j*4,4)}, v4, s[12:15], {so} offen offset:{(j%4)*1024}")
    K(f"""
    v_lshlrev_b32 v5, 5, v3
    s_lshl_b32 s37, s34, 9
    v_add_u32 v5, s37, v5
    buffer_load_dwordx4 {v(K1R,4)}, v5, s[16:19], 0 offen offset:2048
    buffer_load_dwordx4 {v(K1R+4,4)}, v5, s[16:19], 0 offen offset:2064
    """)
    K(f"""
    s_lshl_b32 s38, s33, 2
    s_add_u32 s38, s38, s34
    s_lshl_b32 s39, s38, 6
    s_cmp_eq_u32 s32, 0
    s_cbranch_scc1 K2_SLOT0
    s_add_u32 s44, s32, s39
    s_sub_u32 s45, 2048, s44
    s_branch K2_TOKD
    K2_SLOT0:
    s_cmp_lt_u32 s38, 16
    s_cbranch_scc1 K2_SLOT0A
    s_sub_u32 s44, s39, {64*16-32}
    s_sub_u32 s45, 2048, s44
    s_branch K2_TOKD
    K2_SLOT0A:
    s_mov_b32 s44, s39
    s_sub_u32 s45, 2048, s39
    s_cmp_eq_u32 s38, 0
    s_cselect_b32 s45, 1024, s45
    K2_TOKD:
    """)
    srd(K, 20, 4, 5, 0x200000)
    srd(K, 24, 6, 7, 0x200000, WS_X2)
    srd(K, 28, 6, 7, 0x200000, WS_H2)
    K(f"""
    v_lshlrev_b32 v6, 4, v1
    s_lshl_b32 s46, s44, 10
    s_lshl_b32 s47, s45, 10
    buffer_load_dwordx4 {v(XA,4)}, v6, s[20:23], s46 offen
    buffer_load_dwordx4 {v(XB,4)}, v6, s[20:23], s47 offen
    v_lshlrev_b32 v7, 5, v1
    s_movk_i32 s48, 0x1000
    s_movk_i32 s49, 0x2000
    s_movk_i32 s50, 0x1800
    buffer_load_dwordx4 {v(GA,4)}, v7, s[16:19], s48 offen
    buffer_load_dwordx4 {v(GA+4,4)}, v7, s[16:19], s48 offen offset:16
    buffer_load_dwordx4 {v(K2R,4)}, v7, s[16:19], s49 offen
    buffer_load_dwordx4 {v(K2R+4,4)}, v7, s[16:19], s49 offen offset:16
    buffer_load_dwordx4 {v(SB,4)}, v7, s[16:19], s50 offen
    buffer_load_dwordx4 {v(SB+4,4)}, v7, s[16:19], s50 offen offset:16
    """)
    NLOAD_AFTER_U = 2 + 2 + 6
    K(f"""
    s_or_b32 s51, s32, s38
    """)
    f, p0, p1, a0, a1 = 8, 9, 10, 11, 12
    K(f"""
    v_lshrrev_b32 v13, 1, v3
    v_and_b32 v14, 1, v3
    s_lshl_b32 s37, s33, 2
    v_add_u32 v13, s37, v13
    v_cvt_f32_u32 v15, v14
    v_mul_f32 v15, 0.25, v15
    v_cvt_f32_u32 v{f}, v13
    v_mov_b32 v{a0}, 1.0
    v_mov_b32 v{a1}, 1.0
    s_cmp_eq_u32 s32, 0
    s_cbranch_scc1 K2_C0
    v_mul_f32 v{f}, {fconst(1/32)}, v{f}
    v_mov_b32 v{p0}, v15
    v_add_f32 v{p1}, -0.25, v15
    s_branch K2_CD
    K2_C0:
    s_cmp_lt_u32 s33, 4
    s_cbranch_scc0 K2_C0B
    v_mul_f32 v{f}, {fconst(1/32)}, v{f}
    v_mov_b32 v{p0}, v15
    v_mov_b32 v{p1}, 0
    v_mov_b32 v{a1}, 0
    v_cmp_eq_u32 vcc, 0, v13
    v_add_f32 v15, v15, v15
    v_cndmask_b32 v{f}, v{f}, v15, vcc
    v_mov_b32 v15, 0
    v_cndmask_b32 v{p0}, v{p0}, v15, vcc
    s_branch K2_CD
    K2_C0B:
    v_add_f32 v{f}, v{f}, v{f}
    v_add_f32 v{f}, {fconst(-31.0)}, v{f}
    v_mul_f32 v{f}, {fconst(1/64)}, v{f}
    v_mov_b32 v{p0}, 0
    v_mov_b32 v{p1}, v15
    v_mov_b32 v{a0}, 0
    K2_CD:
    v_cmp_gt_u32 vcc, 8, v3
    v_mov_b32 v15, 0
    v_cndmask_b32 v{a0}, v15, v{a0}, vcc
    v_cndmask_b32 v{a1}, v15, v{a1}, vcc
    """.replace("-0.25", fconst(-0.25)))
    K(f"""
    v_lshlrev_b32 v13, 2, v2
    v_cvt_f32_u32 v13, v13
    v_mul_f32 v13, v13, v{f}
    """)
    for st in range(2):
        for jj in range(4):
            K(f"v_add_f32 v14, v13, v{p0}")
            K(f"v_add_f32 v15, v13, v{p1}")
            K(f"v_cos_f32 v14, v14")
            K(f"v_cos_f32 v15, v15")
            K(f"v_mul_f32 v14, v14, v{a0}")
            K(f"v_mul_f32 v15, v15, v{a1}")
            K(f"v_cvt_pk_bf16_f32 v{AS+st*4+jj}, v14, v15")
            K(f"v_add_f32 v13, v13, v{f}")
        if st == 0:
            K(f"v_mul_f32 v14, {fconst(12.0)}, v{f}")
            K(f"v_add_f32 v13, v13, v14")
    K(f"""
    v_cvt_f32_u32 v8, v3
    v_mul_f32 v8, {fconst(1/32)}, v8
    v_lshlrev_b32 v9, 3, v2
    v_cvt_f32_u32 v9, v9
    v_mul_f32 v9, v9, v8
    """)
    for p in range(4):
        K(f"v_add_f32 v10, v9, v8")
        K(f"v_cos_f32 v11, v9")
        K(f"v_cos_f32 v12, v10")
        K(f"v_sin_f32 v13, v9")
        K(f"v_sin_f32 v14, v10")
        K(f"v_add_f32 v9, v10, v8")
        K(f"v_cvt_pk_bf16_f32 v{CC+p}, v11, v12")
        K(f"v_cvt_pk_bf16_f32 v{CS+p}, v13, v14")
    for p in range(4):
        K(f"v_xor_b32 v{CC+4+p}, 0x80000000, v{CC+p}")
        K(f"v_xor_b32 v{CS+4+p}, 0x80000000, v{CS+p}")
        K(f"v_xor_b32 v{CN+p}, 0x80008000, v{CS+p}")
        K(f"v_xor_b32 v{CN+4+p}, 0x00008000, v{CS+p}")
    K(f"""
    v_lshlrev_b32 v8, 2, v2
    """)
    for tau in range(2):
        K(f"v_add_u32 v9, {16*tau}, v3")
        for r in range(4):
            K(f"v_add_u32 v10, {r}, v8")
            K(f"v_mul_u32_u24 v10, v10, v9")
            K(f"v_cvt_f32_u32 v10, v10")
            K(f"v_mul_f32 v10, {fconst(1/512)}, v10")
            K(f"v_cos_f32 v{TWC+tau*4+r}, v10")
            K(f"v_sin_f32 v{TWS+tau*4+r}, v10")
    for jj in range(4):
        K(f"v_add_u32 v10, {jj}, v8")
        K(f"v_mul_u32_u24 v10, v10, v3")
        K(f"v_cvt_f32_u32 v10, v10")
        K(f"v_mul_f32 v10, {fconst(1/16)}, v10")
        K(f"v_cos_f32 v{12+jj%2}, v10")
        K(f"v_sin_f32 v{14+jj%2}, v10")
        if jj % 2 == 1:
            K(f"v_cvt_pk_bf16_f32 v{MM+jj//2}, v12, v13")
            K(f"v_cvt_pk_bf16_f32 v{MM+2+jj//2}, v14, v15")
    for p in range(2):
        K(f"v_xor_b32 v{MP+p}, 0x80008000, v{MM+2+p}")
        K(f"v_mov_b32 v{MP+2+p}, v{MM+p}")
    GW, GR, YW, YN, YM, YS = 248, 249, 250, 251, 252, 253
    YB = 16384; YSTRIDE = 4864
    K(f"""
    v_lshlrev_b32 v{GW}, 12, v2
    v_lshl_add_u32 v{GW}, v3, 4, v{GW}
    s_lshl_b32 s37, s34, 8
    v_add_u32 v{GW}, s37, v{GW}
    v_lshlrev_b32 v8, 3, v2
    v_bfe_u32 v9, v1, 2, 2
    v_add_u32 v8, v8, v9
    v_lshlrev_b32 v{GR}, 5, v8
    v_and_b32 v9, 3, v1
    v_lshl_add_u32 v{GR}, v9, 3, v{GR}
    s_lshl_b32 s37, s34, 11
    v_add_u32 v{GR}, s37, v{GR}
    s_mul_i32 s37, s34, {YSTRIDE}
    s_add_u32 s37, s37, {YB}
    v_mul_u32_u24 v{YW}, 144, v3
    v_lshl_add_u32 v{YW}, v2, 4, v{YW}
    v_add_u32 v{YW}, s37, v{YW}
    v_lshrrev_b32 v8, 2, v1
    v_lshlrev_b32 v8, 4, v8
    v_lshl_add_u32 v{YN}, v1, 5, v8
    v_add_u32 v{YN}, s37, v{YN}
    v_sub_u32 v8, 63, v1
    v_lshrrev_b32 v9, 2, v8
    v_lshlrev_b32 v9, 4, v9
    v_lshl_add_u32 v{YM}, v8, 5, v9
    v_add_u32 v{YM}, s37, v{YM}
    v_sub_u32 v8, 64, v1
    v_and_b32 v8, 63, v8
    v_lshrrev_b32 v9, 2, v8
    v_lshlrev_b32 v9, 4, v9
    v_lshl_add_u32 v{YS}, v8, 5, v9
    v_add_u32 v{YS}, s37, v{YS}
    """)
    def rowfft(GRf, GIf, outR, outI, have_imag):
        TR, TI = 96, 104
        TP = 112
        W2 = 120
        for tau in range(2):
            K(f"v_mfma_f32_16x16x32_bf16 {v(TR+tau*4,4)}, {v(GRf,4)}, {v(CC+tau*4,4)}, 0")
            K(f"v_mfma_f32_16x16x32_bf16 {v(TI+tau*4,4)}, {v(GRf,4)}, {v(CN+tau*4,4)}, 0")
        if have_imag:
            for tau in range(2):
                K(f"v_mfma_f32_16x16x32_bf16 {v(TR+tau*4,4)}, {v(GIf,4)}, {v(CS+tau*4,4)}, {v(TR+tau*4,4)}")
                K(f"v_mfma_f32_16x16x32_bf16 {v(TI+tau*4,4)}, {v(GIf,4)}, {v(CC+tau*4,4)}, {v(TI+tau*4,4)}")
        for tau in range(2):
            for r in range(4):
                i = tau*4+r
                K(f"v_mul_f32 v{W2+i}, v{TR+i}, v{TWC+i}")
                K(f"v_mul_f32 v{W2+8+i}, v{TI+i}, v{TWC+i}")
            for r in range(4):
                i = tau*4+r
                K(f"v_fma_f32 v{W2+i}, v{TI+i}, v{TWS+i}, v{W2+i}")
                K(f"v_fma_f32 v{W2+8+i}, -v{TR+i}, v{TWS+i}, v{W2+8+i}")
        for tau in range(2):
            K(f"v_cvt_pk_bf16_f32 v{TP+tau*4+0}, v{W2+tau*4+0}, v{W2+tau*4+1}")
            K(f"v_cvt_pk_bf16_f32 v{TP+tau*4+1}, v{W2+tau*4+2}, v{W2+tau*4+3}")
            K(f"v_cvt_pk_bf16_f32 v{TP+tau*4+2}, v{W2+8+tau*4+0}, v{W2+8+tau*4+1}")
            K(f"v_cvt_pk_bf16_f32 v{TP+tau*4+3}, v{W2+8+tau*4+2}, v{W2+8+tau*4+3}")
        for tau in range(2):
            K(f"v_mfma_f32_16x16x32_bf16 {v(outR+tau*4,4)}, {v(TP+tau*4,4)}, {v(MM,4)}, 0")
        if outI is not None:
            for tau in range(2):
                K(f"v_mfma_f32_16x16x32_bf16 {v(outI+tau*4,4)}, {v(TP+tau*4,4)}, {v(MP,4)}, 0")
    K(f"""
    s_cmp_lg_u32 s51, 0
    s_cbranch_scc1 K2_NOSA
    buffer_load_dwordx4 {v(136,4)}, v7, s[16:19], 0 offen
    buffer_load_dwordx4 {v(140,4)}, v7, s[16:19], 0 offen offset:16
    s_waitcnt vmcnt(0)
    """)
    for e in range(8):
        K(f"v_mul_f32 v{136+e}, {fconst(2048.0)}, v{136+e}")
    for p in range(4):
        K(f"v_cvt_pk_bf16_f32 v{132+p}, v{136+2*p}, v{136+2*p+1}")
    K(f"""
    s_mul_i32 s37, s34, {YSTRIDE}
    s_add_u32 s37, s37, {YB}
    v_add_u32 v8, s37, v6
    ds_write_b128 v8, {v(132,4)}
    s_lshl_b32 s52, s34, 11
    s_sub_u32 s52, s37, s52
    v_add_u32 v8, s52, v{GR}
    s_waitcnt lgkmcnt(0)
    ds_read_b64_tr_b16 {v(132,2)}, v8
    ds_read_b64_tr_b16 {v(134,2)}, v8 offset:128
    s_waitcnt lgkmcnt(0)
    """)
    rowfft(132, None, SA, None, False)
    K("K2_NOSA:")
    K(f"s_mov_b32 s53, 0x05040100")
    K(f"s_mov_b32 s54, 0x07060302")
    for st in range(2):
        K(f"s_waitcnt vmcnt({NLOAD_AFTER_U + (8 if st == 0 else 0)})")
        for i in range(8):
            for p in range(4):
                c4, hb = i//2, i%2
                K(f"v_perm_b32 v{FR+st*32+i*4+p}, v{RAW+st*32+(2*p+1)*4+c4}, v{RAW+st*32+(2*p)*4+c4}, s{53+hb}")
    ACC = RAW
    for st in range(2):
        for i in range(8):
            K(f"v_mfma_f32_16x16x32_bf16 {v(ACC+i*4,4)}, {v(AS+st*4,4)}, {v(FR+st*32+i*4,4)}, {'0' if st==0 else v(ACC+i*4,4)}")
    K(f"s_waitcnt vmcnt({NLOAD_AFTER_U-2})")
    GP = RAW+32
    for r in range(4):
        for i in range(8):
            K(f"v_mul_f32 v{ACC+i*4+r}, v{ACC+i*4+r}, v{K1R+i}")
        for p in range(4):
            K(f"v_cvt_pk_bf16_f32 v{GP+r*4+p}, v{ACC+(2*p)*4+r}, v{ACC+(2*p+1)*4+r}")
        K(f"ds_write_b128 v{GW}, {v(GP+r*4,4)} offset:{r*1024}")
    K("s_waitcnt lgkmcnt(0)")
    K("s_barrier")
    GRf, GIf = 80, 84
    K(f"""
    ds_read_b64_tr_b16 {v(GRf,2)}, v{GR}
    ds_read_b64_tr_b16 {v(GRf+2,2)}, v{GR} offset:128
    ds_read_b64_tr_b16 {v(GIf,2)}, v{GR} offset:1024
    ds_read_b64_tr_b16 {v(GIf+2,2)}, v{GR} offset:1152
    s_waitcnt lgkmcnt(0)
    """)
    YR, YI = 16, 24
    rowfft(GRf, GIf, YR, YI, True)
    NA, MA = 32, 40
    BL = 48
    YA_, YB_ = 64, 72
    A2 = 2432
    K(f"""
    s_cmp_lg_u32 s51, 0
    s_cbranch_scc1 K2_REG
    """)
    for e in range(8):
        K(f"v_add_f32 v{YR+e}, v{YR+e}, v{SA+e}")
    for tau in range(2):
        K(f"ds_write_b128 v{YW}, {v(YR+tau*4,4)} offset:{tau*64}")
        K(f"ds_write_b128 v{YW}, {v(YI+tau*4,4)} offset:{A2+tau*64}")
    K("s_waitcnt lgkmcnt(0)")
    for (off, dst) in ((0, YA_), (A2, YB_)):
        K(f"ds_read_b128 {v(NA,4)}, v{YN} offset:{off}")
        K(f"ds_read_b128 {v(NA+4,4)}, v{YN} offset:{off+16}")
        K(f"ds_read_b128 {v(BL,4)}, v{YM} offset:{off}")
        K(f"ds_read_b128 {v(BL+4,4)}, v{YM} offset:{off+16}")
        K(f"ds_read_b32 v{BL+8}, v{YS} offset:{off}")
        K("s_waitcnt lgkmcnt(0)")
        for i in range(8):
            src = BL+8 if i == 0 else BL+8-i
            K(f"v_add_f32 v{dst+i}, v{NA+i}, v{src}")
        for i in range(8):
            K(f"v_mul_f32 v{dst+i}, 0.5, v{dst+i}")
    K("s_branch K2_EPI")
    K("K2_REG:")
    for tau in range(2):
        K(f"ds_write_b128 v{YW}, {v(YR+tau*4,4)} offset:{tau*64}")
    K("s_waitcnt lgkmcnt(0)")
    K(f"ds_read_b128 {v(YA_,4)}, v{YN}")
    K(f"ds_read_b128 {v(YA_+4,4)}, v{YN} offset:16")
    K(f"ds_read_b128 {v(BL,4)}, v{YM}")
    K(f"ds_read_b128 {v(BL+4,4)}, v{YM} offset:16")
    K(f"ds_read_b32 v{YB_}, v{YS}")
    K("s_waitcnt lgkmcnt(0)")
    for i in range(1, 8):
        K(f"v_mov_b32 v{YB_+i}, v{BL+8-i}")
    K("K2_EPI:")
    K("s_waitcnt vmcnt(0)")
    X2P = [80, 84]
    XF = [88, 96]
    for side, (xr, yr) in enumerate(((XA, YA_), (XB, YB_))):
        for c4 in range(4):
            K(f"v_lshlrev_b32 v{XF[side]+2*c4}, 16, v{xr+c4}")
            K(f"v_and_b32 v{XF[side]+2*c4+1}, 0xffff0000, v{xr+c4}")
        for e in range(8):
            K(f"v_fma_f32 v{XF[side]+e}, v{GA+e}, v{yr+e}, v{XF[side]+e}")
        for c4 in range(4):
            K(f"v_cvt_pk_bf16_f32 v{X2P[side]+c4}, v{XF[side]+2*c4}, v{XF[side]+2*c4+1}")
    K(f"""
    s_lshl_b32 s55, s32, 6
    s_lshl_b32 s56, s38, 1
    s_add_u32 s55, s55, s56
    s_lshl_b32 s55, s55, 10
    s_add_u32 s56, s55, 1024
    buffer_store_dwordx4 {v(X2P[0],4)}, v6, s[24:27], s55 offen
    buffer_store_dwordx4 {v(X2P[1],4)}, v6, s[24:27], s56 offen
    s_mov_b32 s57, 0x3f803f80
    """)
    ST = [104, 105, 106, 107]
    for c4 in range(4):
        for side in range(2):
            x = X2P[side]+c4
            K(f"v_dot2_f32_bf16 v{ST[2*side]}, v{x}, s57, {'0' if c4==0 else 'v%d'%ST[2*side]}")
            K(f"v_dot2_f32_bf16 v{ST[2*side+1]}, v{x}, v{x}, {'0' if c4==0 else 'v%d'%ST[2*side+1]}")
    for side in range(2):
        for c4 in range(4):
            K(f"v_lshlrev_b32 v{XF[side]+2*c4}, 16, v{X2P[side]+c4}")
            K(f"v_and_b32 v{XF[side]+2*c4+1}, 0xffff0000, v{X2P[side]+c4}")
    for perm in ("quad_perm:[1,0,3,2]", "quad_perm:[2,3,0,1]", "row_half_mirror", "row_mirror"):
        for r in ST:
            K(f"v_add_f32_dpp v{r}, v{r}, v{r} {perm} row_mask:0xf bank_mask:0xf")
    for swap in ("v_permlane16_swap_b32", "v_permlane32_swap_b32"):
        for i, r in enumerate(ST):
            K(f"v_mov_b32 v{108+i}, v{r}")
        for i, r in enumerate(ST):
            K(f"{swap} v{r}, v{108+i}")
        for i, r in enumerate(ST):
            K(f"v_add_f32 v{r}, v{r}, v{108+i}")
    for side in range(2):
        sm, sq = ST[2*side], ST[2*side+1]
        K(f"v_mul_f32 v{sm}, {fconst(1/512)}, v{sm}")
        K(f"v_mul_f32 v{sq}, {fconst(1/512)}, v{sq}")
        K(f"v_fma_f32 v{sq}, -v{sm}, v{sm}, v{sq}")
        K(f"v_max_f32 v{sq}, 0, v{sq}")
        K(f"v_add_f32 v{sq}, {fconst(1e-5)}, v{sq}")
        K(f"v_rsq_f32 v{sq}, v{sq}")
    HP = [112, 116]
    for side in range(2):
        sm, sq = ST[2*side], ST[2*side+1]
        for e in range(8):
            K(f"v_sub_f32 v{XF[side]+e}, v{XF[side]+e}, v{sm}")
        for e in range(8):
            K(f"v_mul_f32 v{120+e}, v{sq}, v{K2R+e}")
        for e in range(8):
            K(f"v_fma_f32 v{XF[side]+e}, v{XF[side]+e}, v{120+e}, v{SB+e}")
        for c4 in range(4):
            K(f"v_cvt_pk_bf16_f32 v{HP[side]+c4}, v{XF[side]+2*c4}, v{XF[side]+2*c4+1}")
    K(f"""
    buffer_store_dwordx4 {v(HP[0],4)}, v6, s[28:31], s55 offen
    buffer_store_dwordx4 {v(HP[1],4)}, v6, s[28:31], s56 offen
    K2_END:
    s_endpgm
    """)
    return K, dict(grid=256, lds=16384+4*4864, vgpr=256)

def gen_k3():
    K = Kernel("k3_kernel")
    K(f"""
    s_load_dwordx2 s[4:5], s[0:1], 48
    s_load_dwordx2 s[6:7], s[0:1], 96
    s_cmp_ge_u32 s2, 256
    s_cbranch_scc1 K3_END
    v_and_b32 v1, 63, v0
    v_lshrrev_b32 v4, 6, v0
    v_readfirstlane_b32 s34, v4
    s_and_b32 s32, s2, 15
    s_lshr_b32 s33, s2, 4
    v_lshrrev_b32 v2, 4, v1
    v_and_b32 v3, 15, v1
    """)
    K(f"""
    s_lshr_b32 s35, s34, 1
    s_lshl_b32 s35, s35, 3
    v_lshl_add_u32 v4, v2, 1, s35
    v_xor_b32 v4, v4, v3
    v_mul_u32_u24 v5, 3584, v2
    v_lshl_add_u32 v5, v4, 4, v5
    s_mul_i32 s36, s33, 224
    v_add_u32 v5, s36, v5
    v_cmp_gt_u32 vcc, 14, v4
    v_mov_b32 v6, 0x40000000
    v_cndmask_b32 v5, v6, v5, vcc
    s_mul_i32 s37, s34, {4*3584}
    s_lshl_b32 s38, s34, 10
    """)
    K(f"""
    s_lshl_b32 s39, s32, 7
    s_lshl_b32 s40, s34, 5
    s_add_u32 s39, s39, s40
    v_add_u32 v7, s39, v3
    v_lshlrev_b32 v7, 10, v7
    v_lshl_add_u32 v7, v2, 4, v7
    s_movk_i32 s41, 0x4000
    s_waitcnt lgkmcnt(0)
    """)
    srd(K, 12, 4, 5, 512*3584)
    srd(K, 16, 6, 7, 0x200000, WS_H2)
    srd(K, 20, 6, 7, H_BYTES, WS_H)
    ACT = 64
    AF = 192
    ACC = 8
    def issue(ks):
        for m2 in range(2):
            m = ks*2 + m2
            K(f"s_mov_b32 m0, s38")
            K(f"buffer_load_dwordx4 v5, s[12:15], s37 offen lds")
            K(f"s_add_u32 s37, s37, {16*3584}")
            K(f"s_add_u32 s38, s38, 4096")
        for u in range(2):
            K(f"buffer_load_dwordx4 {v(ACT+(ks*2+u)*4,4)}, v7, s[16:19], {'0' if u==0 else 's41'} offen offset:{ks*64}")
    PRE = 15
    for ks in range(PRE): issue(ks)
    RA = 248
    K(f"""
    v_bfe_u32 v4, v1, 2, 2
    v_and_b32 v6, 1, v2
    v_lshl_add_u32 v6, v6, 2, v4
    v_lshlrev_b32 v6, 1, v6
    v_lshl_add_u32 v4, v2, 3, v4
    v_lshlrev_b32 v4, 8, v4
    v_bfe_u32 v8, v1, 1, 1
    v_lshl_add_u32 v4, v8, 4, v4
    v_and_b32 v8, 1, v1
    v_lshl_add_u32 v4, v8, 3, v4
    """)
    for tau in range(7):
        K(f"v_xor_b32 v8, {2*tau}, v6")
        K(f"v_lshl_add_u32 v{RA+tau}, v8, 4, v4")
    def reads(ks, buf):
        o = (ks % 8) * 8192
        for tau in range(7):
            for rd in range(2):
                K(f"ds_read_b64_tr_b16 {v(AF+buf*28+tau*4+rd*2,2)}, v{RA+tau} offset:{o+rd*1024}")
    issued = PRE
    for ks in range(16):
        after = (issued - 1 - ks) * 4
        K(f"s_waitcnt vmcnt({after})")
        K("s_barrier")
        if issued < 16:
            issue(issued); issued += 1
        if ks == 8:
            for tau in range(7):
                K(f"v_add_u32 v{RA+tau}, 0x10000, v{RA+tau}")
        buf = ks % 2
        reads(ks, buf)
        for tau in range(7):
            K(f"s_waitcnt lgkmcnt({12-2*tau})")
            for u in range(2):
                d = ACC+(u*7+tau)*4
                K(f"v_mfma_f32_16x16x32_bf16 {v(d,4)}, {v(AF+buf*28+tau*4,4)}, {v(ACT+(ks*2+u)*4,4)}, {'0' if ks==0 else v(d,4)}")
    PKR = 64
    K(f"""
    v_and_b32 v4, 1, v2
    v_lshlrev_b32 v4, 5, v4
    v_lshrrev_b32 v5, 1, v2
    v_lshl_add_u32 v4, v5, 4, v4
    v_add_u32 v5, s39, v3
    v_mul_u32_u24 v5, 3584, v5
    v_add_u32 v4, v4, v5
    v_lshl_add_u32 v6, v2, 3, v5
    s_mul_i32 s42, s33, 224
    s_add_u32 s43, s42, {16*3584}
    """)
    for u in range(2):
        for tau in range(7):
            d = ACC+(u*7+tau)*4
            for r in range(4):
                K(f"v_max_f32 v{d+r}, 0, v{d+r}")
            K(f"v_cvt_pk_bf16_f32 v{PKR+(u*7+tau)*2}, v{d}, v{d+1}")
            K(f"v_cvt_pk_bf16_f32 v{PKR+(u*7+tau)*2+1}, v{d+2}, v{d+3}")
    for u in range(2):
        so = "s42" if u == 0 else "s43"
        for pr in range(3):
            b = PKR+(u*7+2*pr)*2
            if b % 2: raise RuntimeError
            K(f"v_permlane16_swap_b32 v{b}, v{b+2}")
            K(f"v_permlane16_swap_b32 v{b+1}, v{b+3}")
            K(f"buffer_store_dwordx4 {v(b,4)}, v4, s[20:23], {so} offen offset:{pr*64}")
        b = PKR+(u*7+6)*2
        K(f"buffer_store_dwordx2 {v(b,2)}, v6, s[20:23], {so} offen offset:192")
    K("K3_END:")
    K("s_endpgm")
    return K, dict(grid=256, lds=131072, vgpr=256)

def gen_k4():
    K = Kernel("k4_kernel")
    K(f"""
    s_load_dwordx2 s[4:5], s[0:1], 56
    s_load_dwordx2 s[6:7], s[0:1], 96
    s_load_dwordx2 s[8:9], s[0:1], 80
    s_cmp_ge_u32 s2, 256
    s_cbranch_scc1 K4_END
    v_and_b32 v1, 63, v0
    v_lshrrev_b32 v4, 6, v0
    v_readfirstlane_b32 s34, v4
    s_and_b32 s32, s2, 31
    s_lshr_b32 s33, s2, 5
    v_lshrrev_b32 v2, 4, v1
    v_and_b32 v3, 15, v1
    """)
    NSLOT = 10
    SLOT = 4096
    K(f"""
    v_lshrrev_b32 v4, 3, v1
    v_and_b32 v5, 7, v1
    v_bfe_u32 v6, v1, 4, 1
    v_lshlrev_b32 v6, 1, v6
    v_xor_b32 v7, v5, v6
    v_xor_b32 v8, 4, v7
    v_lshlrev_b32 v4, 10, v4
    s_lshl_b32 s35, s33, 7
    v_add_u32 v4, s35, v4
    v_lshl_add_u32 v5, v7, 4, v4
    v_lshl_add_u32 v6, v8, 4, v4
    s_mul_i32 s37, s34, {448*1024}
    s_mul_i32 s38, s34, {NSLOT*SLOT}
    s_mov_b32 s44, s38
    """)
    K(f"""
    s_lshl_b32 s39, s32, 6
    v_add_u32 v7, s39, v3
    v_mul_u32_u24 v7, 3584, v7
    v_lshl_add_u32 v7, v2, 4, v7
    s_mul_i32 s40, s34, 896
    v_add_u32 v7, s40, v7
    s_mov_b32 s41, {16*3584}
    s_mov_b32 s42, {32*3584}
    s_mov_b32 s43, {48*3584}
    s_waitcnt lgkmcnt(0)
    """)
    srd(K, 12, 4, 5, 1792*1024)
    srd(K, 16, 6, 7, H_BYTES, WS_H)
    srd(K, 20, 6, 7, 0x200000, WS_X2)
    srd(K, 24, 6, 7, 12288)
    srd(K, 28, 8, 9, 0x200000)
    ACC = 8
    AF = 72
    def act(ks, u): return a((ks*4+u)*4, 4)
    def issue(ks):
        slot = ks % NSLOT
        for m in range(4):
            K(f"s_add_u32 m0, s44, {slot*SLOT + m*1024}")
            K(f"buffer_load_dwordx4 v{5 + (m&1)}, s[12:15], s37 offen lds")
            K(f"s_add_u32 s37, s37, 8192")
        for u in range(4):
            K(f"buffer_load_dwordx4 {act(ks,u)}, v7, s[16:19], {['0','s41','s42','s43'][u]} offen offset:{ks*64}")
    PRE = 7
    for ks in range(PRE): issue(ks)
    RA = 104
    K(f"""
    v_bfe_u32 v9, v1, 2, 2
    v_bfe_u32 v10, v1, 3, 1
    v_and_b32 v11, 1, v2
    v_lshl_add_u32 v10, v11, 1, v10
    v_lshlrev_b32 v10, 1, v10
    v_lshl_add_u32 v9, v2, 3, v9
    v_lshlrev_b32 v9, 7, v9
    v_bfe_u32 v11, v1, 1, 1
    v_lshl_add_u32 v9, v11, 4, v9
    v_and_b32 v11, 1, v1
    v_lshl_add_u32 v9, v11, 3, v9
    v_add_u32 v9, s44, v9
    """)
    for tau in range(4):
        K(f"v_xor_b32 v11, {2*tau}, v10")
        K(f"v_lshl_add_u32 v{RA+tau}, v11, 4, v9")
    issued = PRE
    for ks in range(14):
        after = (issued - 1 - ks) * 8
        K(f"s_waitcnt vmcnt({after})")
        buf = ks % 2
        o = (ks % NSLOT) * SLOT
        for tau in range(4):
            for rd in range(2):
                K(f"ds_read_b64_tr_b16 {v(AF+buf*16+tau*4+rd*2,2)}, v{RA+tau} offset:{o+rd*512}")
        for tau in range(4):
            K(f"s_waitcnt lgkmcnt({6-2*tau})")
            for u in range(4):
                d = ACC+(u*4+tau)*4
                K(f"v_mfma_f32_16x16x32_bf16 {v(d,4)}, {v(AF+buf*16+tau*4,4)}, {act(ks,u)}, {'0' if ks==0 else v(d,4)}")
        if issued < 14:
            issue(issued); issued += 1
    XR, GB = 112, 120
    K(f"""
    s_lshl_b32 s45, s34, 4
    s_add_u32 s45, s45, s39
    v_add_u32 v109, s45, v3
    v_lshlrev_b32 v200, 10, v109
    v_lshl_add_u32 v200, v2, 3, v200
    s_lshl_b32 s46, s33, 7
    """)
    for tau in range(4):
        K(f"buffer_load_dwordx2 {v(XR+tau*2,2)}, v200, s[20:23], s46 offen offset:{tau*32}")
    K(f"""
    v_lshlrev_b32 v201, 4, v2
    s_lshl_b32 s47, s33, 8
    s_add_u32 s47, s47, {5*2048}
    """)
    for tau in range(4):
        K(f"buffer_load_dwordx4 {v(GB+tau*4,4)}, v201, s[24:27], s47 offen offset:{tau*64}")
    K("s_barrier")
    K(f"""
    v_lshlrev_b32 v202, 4, v1
    s_lshl_b32 s48, s34, 12
    v_add_u32 v16+0, s48, v202
    """.replace("v16+0", "v108"))
    for u in range(4):
        for tau in range(4):
            K(f"ds_write_b128 v108, {v(ACC+(u*4+tau)*4,4)} offset:{u*16384+tau*1024}")
    K("s_waitcnt lgkmcnt(0)")
    K("s_barrier")
    K(f"""
    s_lshl_b32 s48, s34, 14
    v_add_u32 v108, s48, v202
    """)
    RD = 136
    for src in range(4):
        for tau in range(4):
            K(f"ds_read_b128 {v(RD+(src*4+tau)*4,4)}, v108 offset:{src*4096+tau*1024}")
    K("s_waitcnt lgkmcnt(0)")
    for tau in range(4):
        for r in range(4):
            x = RD+tau*4+r
            K(f"v_add_f32 v{x}, v{x}, v{RD+(4+tau)*4+r}")
            K(f"v_add_f32 v{RD+(8+tau)*4+r}, v{RD+(8+tau)*4+r}, v{RD+(12+tau)*4+r}")
            K(f"v_add_f32 v{x}, v{x}, v{RD+(8+tau)*4+r}")
    K("s_waitcnt vmcnt(0)")
    XF = 8
    for tau in range(4):
        for c in range(2):
            K(f"v_lshlrev_b32 v{XF+tau*4+2*c}, 16, v{XR+tau*2+c}")
            K(f"v_and_b32 v{XF+tau*4+2*c+1}, 0xffff0000, v{XR+tau*2+c}")
        for r in range(4):
            K(f"v_fma_f32 v{XF+tau*4+r}, v{GB+tau*4+r}, v{RD+tau*4+r}, v{XF+tau*4+r}")
    OP = 32
    for tau in range(4):
        K(f"v_cvt_pk_bf16_f32 v{OP+tau*2}, v{XF+tau*4}, v{XF+tau*4+1}")
        K(f"v_cvt_pk_bf16_f32 v{OP+tau*2+1}, v{XF+tau*4+2}, v{XF+tau*4+3}")
    K(f"""
    v_lshrrev_b32 v40, 6, v109
    v_bfe_u32 v41, v109, 1, 5
    v_and_b32 v42, 1, v109
    v_lshlrev_b32 v43, 6, v41
    v_add_u32 v44, v40, v43
    v_cmp_eq_u32 vcc, 0, v40
    v_subrev_u32 v45, {64*16-32}, v43
    v_cmp_lt_u32 s[50:51], 15, v41
    v_cndmask_b32 v45, v43, v45, s[50:51]
    v_cndmask_b32 v44, v44, v45, vcc
    v_sub_u32 v45, 2048, v44
    v_lshrrev_b32 v46, 1, v109
    v_cmp_eq_u32 vcc, 0, v46
    v_mov_b32 v47, 1024
    v_cndmask_b32 v45, v45, v47, vcc
    v_cmp_eq_u32 vcc, 1, v42
    v_cndmask_b32 v44, v44, v45, vcc
    v_lshlrev_b32 v44, 10, v44
    v_and_b32 v45, 1, v2
    v_lshl_add_u32 v44, v45, 5, v44
    v_lshrrev_b32 v45, 1, v2
    v_lshl_add_u32 v44, v45, 4, v44
    """)
    for pr in range(2):
        b = OP+pr*4
        K(f"v_permlane16_swap_b32 v{b}, v{b+2}")
        K(f"v_permlane16_swap_b32 v{b+1}, v{b+3}")
        K(f"buffer_store_dwordx4 {v(b,4)}, v44, s[28:31], s46 offen offset:{pr*64}")
    K("K4_END:")
    K("s_endpgm")
    return K, dict(grid=256, lds=163840, vgpr=512, accum=256)

def build(kernels):
    hdr = []
    for K, info in kernels:
        hdr.append(f"; @launch kernel={K.name} grid=({info['grid']},1,1) block=(256,1,1) lds={info['lds']}")
    txt = "\n".join(hdr) + "\n" + '.amdgcn_target "amdgcn-amd-amdhsa--gfx950"\n'
    for K, info in kernels:
        txt += head(K.name) + K.finalize()
    for K, info in kernels:
        txt += desc(K.name, info['vgpr'], info.get('accum', min(256, (info['vgpr']+3)//4*4)))
    return txt

if __name__ == "__main__":
    ks = [gen_k1(), gen_k2(), gen_k3(), gen_k4()]
    out = sys.argv[1] if len(sys.argv) > 1 else f"cdna_kernels/{NAME}.s"
    open(out, "w").write(build(ks))
    print("wrote", out)
```

```python
import re

def v(i, n=1): return f"v{i}" if n == 1 else f"v[{i}:{i+n-1}]"
def a(i, n=1): return f"a{i}" if n == 1 else f"a[{i}:{i+n-1}]"
def s(i, n=1): return f"s{i}" if n == 1 else f"s[{i}:{i+n-1}]"

_reg_re = re.compile(r"^(-|\|)?(abs\()?([vas])(\d+|\[(\d+):(\d+)\])\)?\|?$")
def regs_of(tok):
    tok = tok.strip()
    if tok in ("vcc",): return {("s", "vcc")}
    if tok in ("vcc_lo", "vcc_hi"): return {("s", "vcc")}
    if tok == "exec": return {("s", "exec")}
    if tok == "m0": return {("s", "m0")}
    m = _reg_re.match(tok)
    if not m: return set()
    k = m.group(3)
    if m.group(5) is not None:
        return {(k, i) for i in range(int(m.group(5)), int(m.group(6)) + 1)}
    return {(k, int(m.group(4)))}

def split_ops(rest):
    out, depth, cur = [], 0, ""
    for ch in rest:
        if ch == "[": depth += 1
        if ch == "]": depth -= 1
        if ch == "," and depth == 0:
            out.append(cur.strip()); cur = ""
        else: cur += ch
    if cur.strip(): out.append(cur.strip())
    return out

TRANS = ("v_exp_f32", "v_log_f32", "v_rcp_f32", "v_rsq_f32", "v_sqrt_f32", "v_sin_f32", "v_cos_f32")

class Ins:
    def __init__(self, text):
        self.text = text
        t = text.split(";")[0].strip()
        self.label = t.endswith(":")
        self.directive = t.startswith(".") or t == ""
        self.op = ""
        self.dst, self.src = set(), set()
        self.kind = None
        if self.label or self.directive: return
        parts = t.split(None, 1)
        op = parts[0]; self.op = op
        rest = parts[1] if len(parts) > 1 else ""
        ops = split_ops(rest)
        mods = ""
        if ops:
            last = ops[-1].split(None, 1)
            ops[-1] = last[0]
            mods = last[1] if len(last) > 1 else ""
        self.ops, self.mods = ops, mods
        R = [regs_of(o) for o in ops]
        U = lambda L: set().union(*L) if L else set()
        base = re.sub(r"_(e32|e64|dpp|sdwa)$", "", op)
        self.base = base
        if op.startswith("v_mfma"):
            self.kind = "mfma"; self.dst = R[0]; self.srcA = R[1]; self.srcB = R[2]; self.srcC = R[3]
            self.src = R[1] | R[2] | R[3]
            self.passes = 8 if "32x32x16" in op else 4 if "16x16x32" in op else None
            assert self.passes, op
        elif op.startswith("v_"):
            self.kind = "valu"
            self.trans = base in TRANS
            self.dpp = ("quad_perm" in mods or "row_" in mods or "wave_" in mods or op.endswith("_dpp"))
            if base.startswith("v_cmp"):
                self.dst = R[0]; self.src = U(R[1:])
            elif base.startswith("v_permlane") and "swap" in base:
                self.dst = R[0] | R[1]; self.src = R[0] | R[1]; self.perm = True
            elif base in ("v_fmac_f32", "v_dot2c_f32_bf16", "v_pk_fmac_f16"):
                self.dst = R[0]; self.src = U(R)
            elif base in ("v_add_co_u32", "v_sub_co_u32", "v_addc_co_u32"):
                self.dst = R[0] | R[1]; self.src = U(R[2:])
            else:
                self.dst = R[0]; self.src = U(R[1:])
                if base == "v_cndmask_b32" and len(ops) == 3: self.src |= {("s", "vcc")}
            if self.dpp: self.src |= R[0] if ("bound_ctrl" not in mods) else set()
        elif op.startswith("ds_"):
            self.kind = "ds"
            if op.startswith("ds_read") or op.startswith("ds_bpermute") or op.startswith("ds_swizzle") or op.startswith("ds_permute"):
                self.dst = R[0]; self.src = U(R[1:]); self.load = True
            else:
                self.dst = set(); self.src = U(R); self.load = False
        elif op.startswith("buffer_") or op.startswith("global_"):
            self.kind = "vmem"
            allm = rest
            self.lds = bool(re.search(r"\blds\b", allm)) or "_lds_" in op
            if op in ("buffer_wbl2", "buffer_inv"):
                self.load = False; self.dst = set(); self.src = set(); self.nodata = True
            elif "load" in op:
                self.load = True
                if self.lds: self.dst = set(); self.src = U(R) | {("s", "m0")}
                else: self.dst = R[0]; self.src = U(R[1:])
            elif "atomic" in op:
                self.load = False; self.src = U(R); self.dst = set()
                if "sc0" in mods or " sc0" in allm:
                    self.load = True
                    self.dst = R[0]
            else:
                self.load = False; self.dst = set(); self.src = U(R)
                self.data = R[0] if op.startswith("buffer_") else R[1]
                self.wide = op.endswith("x4") or op.endswith("x3")
        elif op.startswith("s_load") or op.startswith("s_buffer_load") or op in ("s_memtime", "s_memrealtime"):
            self.kind = "smem"; self.dst = R[0]; self.src = U(R[1:])
        elif op.startswith("s_"):
            self.kind = "salu"
            if base in ("s_waitcnt", "s_barrier", "s_nop", "s_branch", "s_endpgm", "s_setprio", "s_sleep") or base.startswith("s_cbranch"):
                pass
            elif base.startswith("s_cmp"):
                self.src = U(R)
            else:
                self.dst = R[0]; self.src = U(R[1:])
                if "saveexec" in base: self.dst |= {("s", "exec")}
        else:
            raise ValueError("unknown op: " + text)

def _av(x):
    return x

class Kernel:
    def __init__(self, name):
        self.name = name
        self.ins = []
    def __call__(self, text):
        for ln in text.split("\n"):
            ln = ln.strip()
            if ln == "" or ln.startswith(";"):
                if ln: self.ins.append(Ins("; " + ln.lstrip("; ")) if False else _Comment(ln))
                continue
            self.ins.append(Ins(ln))
    def comment(self, t): self.ins.append(_Comment("; " + t))
    stamps_on = False
    def stamp(self, i, real=False):
        if not self.stamps_on: return
        self(f"{'s_memrealtime' if real else 's_memtime'} s[{64+2*i}:{65+2*i}]")
        self.nstamp = max(getattr(self, 'nstamp', 0), i + 1)
    def dump_stamps(self, ws_lo, ws_hi, off, wave_sgpr, vtmp=250):
        if not self.stamps_on: return
        n = self.nstamp
        self("s_waitcnt vmcnt(0) lgkmcnt(0)")
        self(f"s_add_u32 s[0], s{ws_lo}, {off}".replace("s[0]", "s60"))
        self(f"s_addc_u32 s61, s{ws_hi}, 0")
        self("s_mov_b32 s62, 0x1000000")
        self("s_mov_b32 s63, 0x20000")
        for i in range(n):
            self(f"v_writelane_b32 v{vtmp}, s{64+2*i}, {i}")
        self(f"v_and_b32 v{vtmp+1}, 63, v0")
        self(f"v_lshlrev_b32 v{vtmp+1}, 2, v{vtmp+1}")
        self(f"s_lshl_b32 s58, s2, 2")
        self(f"s_add_u32 s58, s58, s{wave_sgpr}")
        self(f"s_lshl_b32 s58, s58, 8")
        self(f"buffer_store_dword v{vtmp}, v{vtmp+1}, s[60:63], s58 offen")
        self("s_waitcnt vmcnt(0)")

    def finalize(self, check=True):
        out = []
        hist = []
        pos = 0
        vm = []
        lg = []
        errors = []
        def need(ins):
            n = 0
            for (p, pr) in reversed(hist):
                d = pos - p - 1
                if d >= 20: break
                req = required(pr, ins)
                if req - d > n: n = req - d
            return n
        for ins in self.ins:
            if isinstance(ins, _Comment):
                out.append("    " + ins.text); continue
            if ins.label:
                out.append(ins.text)
                continue
            if ins.directive:
                out.append(ins.text); continue
            n = need(ins)
            while n > 0:
                k = min(n, 16)
                out.append(f"    s_nop {k-1}")
                pos += k; n -= k
            if check:
                touched = ins.src | ins.dst
                if ins.op == "s_waitcnt":
                    m = re.search(r"vmcnt\((\d+)\)", ins.text)
                    if m:
                        k = int(m.group(1)); vm = vm[len(vm) - k:] if k < len(vm) else vm
                        if k == 0: vm = []
                    m = re.search(r"lgkmcnt\((\d+)\)", ins.text)
                    if m:
                        k = int(m.group(1))
                        if k == 0: lg = []
                        else:
                            sm = [x for x in lg if x.kind == "smem"]
                            dsl = [x for x in lg if x.kind != "smem"]
                            dsl = dsl[len(dsl) - k:] if k < len(dsl) else dsl
                            lg = sm + dsl
                else:
                    for x in vm:
                        if x.dst & touched: errors.append(f"vm pending {x.text} touched by {ins.text}")
                    for x in lg:
                        if x.dst & touched: errors.append(f"lgkm pending {x.text} touched by {ins.text}")
                    if ins.kind == "vmem":
                        vm.append(ins)
                        if len(vm) > 63: errors.append(f"more than 63 vmem outstanding at {ins.text}")
                    if ins.kind in ("ds", "smem"):
                        lg.append(ins)
                        if ins.kind == "smem" and len(ins.dst) > 1: lg.append(ins)
                        if len(lg) > 15 and False: errors.append(f">15 lgkm outstanding at {ins.text}")
            out.append("    " + ins.text)
            hist.append((pos, ins))
            if ins.op == "s_nop":
                pos += int(ins.ops[0], 0) + 1
            else:
                pos += 1
            if len(hist) > 40: hist = hist[-40:]
        if errors:
            for e in errors[:20]: print("WAITCNT ERROR:", e)
            raise RuntimeError(f"{len(errors)} waitcnt errors in {self.name}")
        return "\n".join(out) + "\n"

class _Comment:
    def __init__(self, t): self.text = t

def vg(S):
    return {x for x in S if x[0] in ("v", "a")}
def sg(S):
    return {x for x in S if x[0] == "s"}

def required(p, c):
    r = 0
    if p.kind == "valu":
        w = vg(p.dst)
        if c.kind == "mfma" and (w & c.src): r = max(r, 2)
        if c.kind == "valu":
            if getattr(p, "trans", False) and not getattr(c, "trans", False) and (w & c.src): r = max(r, 1)
            if getattr(c, "dpp", False) and (w & c.src): r = max(r, 2)
            if getattr(c, "perm", False) and (w & c.src): r = max(r, 2)
            if c.base in ("v_readlane_b32", "v_readfirstlane_b32") and (w & c.src): r = max(r, 1)
            sw = sg(p.dst)
            if sw & c.src:
                r = max(r, 4 if c.base in ("v_readlane_b32", "v_writelane_b32") else 2)
        if c.kind == "vmem" and (sg(p.dst) & c.src): r = max(r, 5)
        if c.kind == "mfma" and ("s", "exec") in p.dst: r = max(r, 4)
    if p.kind == "mfma":
        P = p.passes
        if c.kind == "mfma":
            if p.dst & c.srcC:
                if p.dst == c.srcC and p.passes == c.passes: r = max(r, 0)
                else: r = max(r, {4: 6, 8: 10}[P])
            if p.dst & (c.srcA | c.srcB): r = max(r, {4: 8, 8: 12}[P])
            if (p.dst & c.dst) and p.dst != c.srcC: r = max(r, {4: 8, 8: 12}[P])
        elif c.kind in ("valu", "vmem", "ds"):
            if p.dst & (c.src | c.dst): r = max(r, {4: 8, 8: 12}[P])
            if c.kind == "valu" and (p.srcC & c.dst): r = max(r, {4: 3, 8: 7}[P])
            if c.kind in ("vmem", "ds") and (p.srcC & c.dst): r = max(r, {4: 3, 8: 7}[P])
    if p.kind == "vmem" and not p.load and getattr(p, "wide", False):
        if c.kind == "valu" and (p.data & c.dst): r = max(r, 2)
        elif c.kind in ("mfma", "ds", "vmem") and (p.data & c.dst): r = max(r, 2)
    if p.kind == "ds" and not p.load and c.kind in ("valu", "mfma") and p.op in ("ds_write_b128", "ds_write_b96"):
        pass
    if p.kind == "salu" and ("s", "m0") in p.dst:
        if c.kind == "vmem" and getattr(c, "lds", False): r = max(r, 1)
    return r

def desc(name, vgpr, accum, sgpr=102):
    return f""".section .rodata,"a"
.p2align 6
.amdhsa_kernel {name}
  .amdhsa_next_free_vgpr {vgpr}
  .amdhsa_next_free_sgpr {sgpr}
  .amdhsa_accum_offset {accum}
  .amdhsa_group_segment_fixed_size 0
  .amdhsa_kernarg_size 104
  .amdhsa_user_sgpr_count 2
  .amdhsa_user_sgpr_kernarg_segment_ptr 1
  .amdhsa_system_sgpr_workgroup_id_x 1
  .amdhsa_float_denorm_mode_32 3
.end_amdhsa_kernel
"""
def head(name):
    return f""".text
.globl {name}
.p2align 8
.type {name},@function
{name}:
"""
```

```python
import sys
from asmdsl import *

NAME = "adaLN_cond__spectral_fnet__dense_activation_relu__prompt"
WS_MOD = 0
WS_U   = 0x10000
WS_X2  = WS_U + 0x200000
WS_H2  = WS_X2 + 0x200000
WS_H   = WS_H2 + 0x200000
H_BYTES = 2048 * 1792 * 2
WS_DBG = 0x1000000
import os
STAMPS = bool(int(os.environ.get('STAMPS', '0')))

def srd(K, r, lo, hi, size, add=0):
    if add:
        K(f"s_add_u32 s{r}, s{lo}, {add}")
        K(f"s_addc_u32 s{r+1}, s{hi}, 0")
    else:
        K(f"s_mov_b32 s{r}, s{lo}")
        K(f"s_mov_b32 s{r+1}, s{hi}")
    K(f"s_mov_b32 s{r+2}, {size}")
    K(f"s_mov_b32 s{r+3}, 0x20000")

def fconst(x):
    import struct
    return hex(struct.unpack("<I", struct.pack("<f", x))[0])

def gen_k1():
    K = Kernel("k1_kernel"); K.stamps_on = STAMPS
    K.stamp(0, real=True); K.stamp(1)
    NP1, NMOD = 256, 48
    K(f"""
    s_load_dwordx2 s[4:5], s[0:1], 0
    s_load_dwordx2 s[6:7], s[0:1], 96
    s_load_dwordx2 s[8:9], s[0:1], 64
    s_load_dwordx2 s[10:11], s[0:1], 72
    s_cmp_ge_u32 s2, {NP1+NMOD}
    s_cbranch_scc1 K1_END
    v_and_b32 v1, 63, v0
    v_lshrrev_b32 v4, 6, v0
    v_readfirstlane_b32 s22, v4
    s_cmp_ge_u32 s2, {NP1}
    s_cbranch_scc1 K1_MOD
    """)
    X = 8
    CB = 72
    T = 88
    RS1 = 192
    K(f"""
    s_and_b32 s20, s2, 31
    s_lshr_b32 s21, s2, 5
    v_lshrrev_b32 v5, 3, v1
    v_and_b32 v6, 7, v1
    s_lshl_b32 s23, s22, 4
    v_add_u32 v7, s23, v5
    v_lshlrev_b32 v2, 15, v7
    v_lshl_add_u32 v2, v6, 4, v2
    s_lshl_b32 s23, s20, 10
    v_add_u32 v2, s23, v2
    v_add_u32 v3, 0x40000, v2
    """)
    for j in range(8):
        K(f"s_add_u32 s{24+j}, s21, {j}")
        K(f"s_and_b32 s{24+j}, s{24+j}, 7")
        K(f"s_lshl_b32 s{24+j}, s{24+j}, 7")
    K("s_waitcnt lgkmcnt(0)")
    srd(K, 12, 4, 5, 0x200000)
    for j in range(8):
        for u in range(2):
            K(f"buffer_load_dwordx4 {v(X+(j*2+u)*4,4)}, v{2+u}, s[12:15], s{24+j} offen")
    K.stamp(2)
    srd(K, 16, 6, 7, 0x200000, WS_U)
    vo, vsl, vc, vd, vb, vf, vd8 = T, T+1, T+2, T+3, T+4, T+5, T+6
    tt = T+8
    K(f"""
    s_lshr_b32 s23, s22, 1
    s_lshl_b32 s23, s23, 5
    v_and_b32 v{vo}, 31, v1
    v_add_u32 v{vo}, s23, v{vo}
    v_lshrrev_b32 v{vsl}, 1, v{vo}
    v_and_b32 v{vc}, 1, v{vo}
    v_cvt_f32_u32 v{vd}, v{vsl}
    v_mul_f32 v{vd}, {fconst(1/64)}, v{vd}
    v_mul_u32_u24 v{vb}, s20, v{vsl}
    v_cvt_f32_u32 v{vb}, v{vb}
    v_mul_f32 v{vb}, {fconst(1/2048)}, v{vb}
    v_cvt_f32_u32 v{vf}, v{vc}
    v_fmac_f32 v{vb}, 0.25, v{vf}
    v_cmp_eq_u32 vcc, 1, v{vo}
    v_cndmask_b32 v{vd}, v{vd}, 0.5, vcc
    v_cndmask_b32 v{vb}, v{vb}, 0, vcc
    """.replace("v_cndmask_b32 v%d, v%d, 0.5, vcc" % (vd, vd), "v_mov_b32 v%d, 0.5\n v_cndmask_b32 v%d, v%d, v%d, vcc" % (vd8, vd, vd, vd8))
       .replace("v_cndmask_b32 v%d, v%d, 0, vcc" % (vb, vb), "v_mov_b32 v%d, 0\n v_cndmask_b32 v%d, v%d, v%d, vcc" % (vd8, vb, vb, vd8)))
    K(f"""
    v_lshrrev_b32 v{vf}, 5, v1
    v_cvt_f32_u32 v{vf}, v{vf}
    v_mul_f32 v{vd8}, {fconst(8.0)}, v{vd}
    v_fma_f32 v{vf}, v{vf}, v{vd8}, v{vb}
    """)
    for st in range(4):
        for j in range(8):
            K(f"v_cos_f32 v{tt+j}, v{vf}")
            K(f"v_add_f32 v{vf}, v{vf}, v{vd}")
        K(f"v_add_f32 v{vf}, v{vf}, v{vd8}")
        for p in range(4):
            K(f"v_cvt_pk_bf16_f32 v{CB+st*4+p}, v{tt+2*p}, v{tt+2*p+1}")
    vst = T+7
    K(f"""
    v_lshlrev_b32 v{vst}, 6, v{vsl}
    v_add_u32 v{vst}, v{vst}, v{vc}
    s_lshl_b32 s23, s20, 1
    v_add_u32 v{vst}, s23, v{vst}
    v_lshlrev_b32 v{vst}, 10, v{vst}
    v_lshrrev_b32 v{tt}, 5, v1
    v_lshl_add_u32 v{vst}, v{tt}, 4, v{vst}
    s_and_b32 s23, s22, 1
    s_lshl_b32 s23, s23, 6
    v_add_u32 v{vst}, s23, v{vst}
    s_lshl_b32 s33, s21, 7
    """)
    vw, vr = T+16, T+17
    K(f"""
    s_lshl_b32 s23, s22, 4
    v_add_u32 v{vw}, s23, v5
    v_mul_u32_u24 v{vw}, {RS1}, v{vw}
    v_lshl_add_u32 v{vw}, v6, 4, v{vw}
    v_lshrrev_b32 v{tt}, 5, v1
    v_lshlrev_b32 v{tt}, 3, v{tt}
    v_bfe_u32 v{tt+1}, v1, 2, 2
    v_add_u32 v{tt}, v{tt}, v{tt+1}
    v_mul_u32_u24 v{vr}, {RS1}, v{tt}
    v_bfe_u32 v{tt}, v1, 4, 1
    v_lshlrev_b32 v{tt}, 5, v{tt}
    v_add_u32 v{vr}, v{vr}, v{tt}
    v_and_b32 v{tt}, 3, v1
    v_lshl_add_u32 v{vr}, v{tt}, 3, v{vr}
    s_and_b32 s23, s22, 1
    s_lshl_b32 s23, s23, 6
    v_add_u32 v{vr}, s23, v{vr}
    s_mov_b32 s32, 0x3f803f80
    """)
    K.stamp(3)
    S0, Q0, S1, Q1 = T+20, T+21, T+22, T+23
    acc = [(S0, Q0), (S1, Q1)]
    for j in range(8):
        K(f"s_waitcnt vmcnt({14-2*j})")
        for c4 in range(4):
            for u in range(2):
                x = X+(j*2+u)*4+c4
                first = (j == 0 and c4 == 0)
                K(f"v_dot2_f32_bf16 v{acc[u][0]}, v{x}, s32, {'0' if first else 'v%d' % acc[u][0]}")
                K(f"v_dot2_f32_bf16 v{acc[u][1]}, v{x}, v{x}, {'0' if first else 'v%d' % acc[u][1]}")
    K.stamp(4)
    for perm in ("quad_perm:[1,0,3,2]", "quad_perm:[2,3,0,1]", "row_half_mirror"):
        for r in (S0, Q0, S1, Q1):
            K(f"v_add_f32_dpp v{r}, v{r}, v{r} {perm} row_mask:0xf bank_mask:0xf")
    for u in range(2):
        sm, sq = acc[u]
        K(f"v_mul_f32 v{sm}, {fconst(1/512)}, v{sm}")
        K(f"v_mul_f32 v{sq}, {fconst(1/512)}, v{sq}")
        K(f"v_fma_f32 v{sq}, -v{sm}, v{sm}, v{sq}")
        K(f"v_max_f32 v{sq}, 0, v{sq}")
        K(f"v_add_f32 v{sq}, {fconst(1e-5)}, v{sq}")
        K(f"v_rsq_f32 v{sq}, v{sq}")
        K(f"v_mul_f32 v{sm}, v{sm}, v{sq}")
    N = T+24
    for u in range(2):
        sm, sq = acc[u]
        for c4 in range(4):
            x = X+u*4+c4
            K(f"v_lshlrev_b32 v{N+0+2*c4}, 16, v{x}")
            K(f"v_and_b32 v{N+1+2*c4}, 0xffff0000, v{x}")
        for e in range(8):
            K(f"v_fma_f32 v{N+e}, v{N+e}, v{sq}, -v{sm}")
        P = N+8+u*4
        for c4 in range(4):
            K(f"v_cvt_pk_bf16_f32 v{P+c4}, v{N+2*c4}, v{N+2*c4+1}")
        K(f"ds_write_b128 v{vw}, {v(P,4)} offset:{u*8*RS1}")
    K("s_waitcnt lgkmcnt(0)")
    K.stamp(5)
    K("s_barrier")
    K.stamp(6)
    AF = X
    for st in range(4):
        for rd in range(2):
            K(f"ds_read_b64_tr_b16 {v(AF+st*4+rd*2,2)}, v{vr} offset:{(16*st+4*rd)*RS1}")
    ACC = X+16
    for st in range(4):
        K(f"s_waitcnt lgkmcnt({6-2*st})")
        K(f"v_mfma_f32_32x32x16_bf16 {v(ACC,16)}, {v(AF+st*4,4)}, {v(CB+st*4,4)}, {'0' if st==0 else v(ACC,16)}")
    PK = X+32
    for q in range(4):
        K(f"v_cvt_pk_bf16_f32 v{PK+2*q}, v{ACC+4*q}, v{ACC+4*q+1}")
        K(f"v_cvt_pk_bf16_f32 v{PK+2*q+1}, v{ACC+4*q+2}, v{ACC+4*q+3}")
    for pr in range(2):
        K(f"v_permlane32_swap_b32 v{PK+4*pr}, v{PK+4*pr+2}")
        K(f"v_permlane32_swap_b32 v{PK+4*pr+1}, v{PK+4*pr+3}")
    for pr in range(2):
        K(f"buffer_store_dwordx4 {v(PK+4*pr,4)}, v{vst}, s[16:19], s33 offen offset:{pr*32}")
    K.stamp(7)
    if STAMPS:
        K("s_waitcnt vmcnt(0)")
        for i in range(8, 13): K.stamp(i)
        K.stamp(13, real=True)
    K.dump_stamps(6, 7, WS_DBG, 22, vtmp=140)
    K("s_endpgm")
    K("K1_MOD:")
    W = 8
    SL = 72
    SH = 88
    AC = 104
    T = 112
    K(f"""
    s_sub_u32 s20, s2, {NP1}
    v_lshrrev_b32 v5, 3, v1
    v_and_b32 v6, 7, v1
    v_lshlrev_b32 v7, 4, v1
    s_lshl_b32 s23, s22, 7
    v_add_u32 v2, s23, v5
    v_mul_u32_u24 v3, 6144, v2
    v_lshl_add_u32 v3, v6, 4, v3
    s_waitcnt lgkmcnt(0)
    """)
    srd(K, 12, 8, 9, 1024)
    srd(K, 16, 10, 11, 512*6144)
    K(f"buffer_load_dwordx4 {v(T,4)}, v7, s[12:15], 0 offen")
    K("s_lshl_b32 s24, s20, 7")
    for it in range(16):
        K(f"buffer_load_dwordx4 {v(W+it*4,4)}, v3, s[16:19], s24 offen")
        if it < 15: K("s_add_u32 s24, s24, 49152")
    srd(K, 28, 6, 7, 12288, WS_MOD) if WS_MOD else srd(K, 28, 6, 7, 12288)
    K("s_waitcnt vmcnt(16)")
    E = T+4
    for c4 in range(4):
        K(f"v_lshlrev_b32 v{E+2*c4}, 16, v{T+c4}")
        K(f"v_and_b32 v{E+2*c4+1}, 0xffff0000, v{T+c4}")
    G = T+12
    for e in range(8):
        K(f"v_mul_f32 v{G+e}, {fconst(-1.4426950408889634)}, v{E+e}")
    for e in range(8):
        K(f"v_exp_f32 v{G+e}, v{G+e}")
    for e in range(8):
        K(f"v_add_f32 v{G+e}, 1.0, v{G+e}")
    for e in range(8):
        K(f"v_rcp_f32 v{G+e}, v{G+e}")
    for e in range(8):
        K(f"v_mul_f32 v{G+e}, v{E+e}, v{G+e}")
    for e in range(8):
        K(f"v_cvt_pk_bf16_f32 v{G+e}, v{G+e}, 0")
    K(f"""
    s_lshl_b32 s25, s22, 11
    v_lshlrev_b32 v7, 5, v1
    v_add_u32 v7, s25, v7
    ds_write_b128 v7, {v(G,4)}
    ds_write_b128 v7, {v(G+4,4)} offset:16
    v_lshlrev_b32 v7, 2, v2
    v_add_u32 v7, s25, v7
    s_waitcnt lgkmcnt(0)
    """)
    for it in range(16):
        K(f"ds_read_b32 v{SL+it}, v7 offset:{it*32}")
    K("s_waitcnt lgkmcnt(0)")
    for it in range(16):
        K(f"v_lshlrev_b32 v{SH+it}, 16, v{SL+it}")
    for it in range(16):
        K(f"s_waitcnt vmcnt({15-it})")
        for c4 in range(4):
            K(f"v_dot2_f32_bf16 v{AC+2*c4}, v{W+it*4+c4}, v{SL+it}, {'0' if it==0 else 'v%d'%(AC+2*c4)}")
            K(f"v_dot2_f32_bf16 v{AC+2*c4+1}, v{W+it*4+c4}, v{SH+it}, {'0' if it==0 else 'v%d'%(AC+2*c4+1)}")
    for e in range(8):
        K(f"v_add_f32_dpp v{AC+e}, v{AC+e}, v{AC+e} row_ror:8 row_mask:0xf bank_mask:0xf")
    for swap in ("v_permlane16_swap_b32", "v_permlane32_swap_b32"):
        for e in range(8):
            K(f"v_mov_b32 v{T+e}, v{AC+e}")
        for e in range(8):
            K(f"{swap} v{AC+e}, v{T+e}")
        for e in range(8):
            K(f"v_add_f32 v{AC+e}, v{AC+e}, v{T+e}")
    PB = 8192
    K(f"""
    s_lshl_b32 s25, s22, 8
    v_lshlrev_b32 v7, 5, v6
    v_add_u32 v7, s25, v7
    ds_write_b128 v7, {v(AC,4)} offset:{PB}
    ds_write_b128 v7, {v(AC+4,4)} offset:{PB+16}
    s_waitcnt lgkmcnt(0)
    s_barrier
    s_cmp_lg_u32 s22, 0
    s_cbranch_scc1 K1_END
    v_lshlrev_b32 v7, 2, v1
    ds_read_b32 v{T}, v7 offset:{PB}
    ds_read_b32 v{T+1}, v7 offset:{PB+256}
    ds_read_b32 v{T+2}, v7 offset:{PB+512}
    ds_read_b32 v{T+3}, v7 offset:{PB+768}
    s_waitcnt lgkmcnt(0)
    v_add_f32 v{T}, v{T}, v{T+1}
    v_add_f32 v{T+2}, v{T+2}, v{T+3}
    v_add_f32 v{T}, v{T}, v{T+2}
    v_cvt_pk_bf16_f32 v{T}, v{T}, v{T}
    v_lshlrev_b32 v{T}, 16, v{T}
    s_lshr_b32 s26, s20, 3
    s_cmp_eq_u32 s26, 1
    s_cbranch_scc1 K1_PLUS1
    s_cmp_eq_u32 s26, 4
    s_cbranch_scc0 K1_STORE
    K1_PLUS1:
    v_add_f32 v{T}, 1.0, v{T}
    v_cvt_pk_bf16_f32 v{T}, v{T}, v{T}
    v_lshlrev_b32 v{T}, 16, v{T}
    K1_STORE:
    s_lshl_b32 s27, s20, 8
    buffer_store_dword v{T}, v7, s[28:31], s27 offen
    K1_END:
    s_endpgm
    """)
    return K, dict(grid=NP1+NMOD, lds=12288+1024, vgpr=144)

def gen_k2():
    K = Kernel("k2_kernel"); K.stamps_on = STAMPS
    K.stamp(0, real=True); K.stamp(1)
    K(f"""
    s_load_dwordx2 s[4:5], s[0:1], 0
    s_load_dwordx2 s[6:7], s[0:1], 96
    s_cmp_ge_u32 s2, 256
    s_cbranch_scc1 K2_END
    v_and_b32 v1, 63, v0
    v_lshrrev_b32 v4, 6, v0
    v_readfirstlane_b32 s34, v4
    s_and_b32 s32, s2, 31
    s_lshr_b32 s33, s2, 5
    v_lshrrev_b32 v2, 4, v1
    v_and_b32 v3, 15, v1
    """)
    RAW, FR, K1R, XA, XB, GA, K2R, SB = 16, 80, 144, 152, 156, 160, 168, 176
    AS, CC, CS, CN, TWC, TWS, MM, MP, SA = 184, 192, 200, 208, 216, 224, 232, 236, 240
    T = 4
    K(f"""
    s_lshl_b32 s36, s32, 16
    v_lshlrev_b32 v4, 13, v2
    v_lshl_add_u32 v4, v3, 4, v4
    s_lshl_b32 s37, s34, 8
    s_add_u32 s36, s36, s37
    v_add_u32 v4, s36, v4
    s_movk_i32 s40, 0x1000
    s_mov_b32 s41, 0x8000
    s_mov_b32 s42, 0x9000
    s_waitcnt lgkmcnt(0)
    """)
    srd(K, 12, 6, 7, 0x200000, WS_U)
    srd(K, 16, 6, 7, 12288)
    for st in range(2):
        for j in range(8):
            so = ["0", "s40", "s41", "s42"][st*2 + j//4]
            K(f"buffer_load_dwordx4 {v(RAW+st*32+j*4,4)}, v4, s[12:15], {so} offen offset:{(j%4)*1024}")
    K(f"""
    v_lshlrev_b32 v5, 5, v3
    s_lshl_b32 s37, s34, 9
    v_add_u32 v5, s37, v5
    buffer_load_dwordx4 {v(K1R,4)}, v5, s[16:19], 0 offen offset:2048
    buffer_load_dwordx4 {v(K1R+4,4)}, v5, s[16:19], 0 offen offset:2064
    """)
    K(f"""
    s_lshl_b32 s38, s33, 2
    s_add_u32 s38, s38, s34
    s_lshl_b32 s39, s38, 6
    s_cmp_eq_u32 s32, 0
    s_cbranch_scc1 K2_SLOT0
    s_add_u32 s44, s32, s39
    s_sub_u32 s45, 2048, s44
    s_branch K2_TOKD
    K2_SLOT0:
    s_cmp_lt_u32 s38, 16
    s_cbranch_scc1 K2_SLOT0A
    s_sub_u32 s44, s39, {64*16-32}
    s_sub_u32 s45, 2048, s44
    s_branch K2_TOKD
    K2_SLOT0A:
    s_mov_b32 s44, s39
    s_sub_u32 s45, 2048, s39
    s_cmp_eq_u32 s38, 0
    s_cselect_b32 s45, 1024, s45
    K2_TOKD:
    """)
    srd(K, 20, 4, 5, 0x200000)
    srd(K, 24, 6, 7, 0x200000, WS_X2)
    srd(K, 28, 6, 7, 0x200000, WS_H2)
    K(f"""
    v_lshlrev_b32 v6, 4, v1
    s_lshl_b32 s46, s44, 10
    s_lshl_b32 s47, s45, 10
    buffer_load_dwordx4 {v(XA,4)}, v6, s[20:23], s46 offen
    buffer_load_dwordx4 {v(XB,4)}, v6, s[20:23], s47 offen
    v_lshlrev_b32 v7, 5, v1
    s_movk_i32 s48, 0x1000
    s_movk_i32 s49, 0x2000
    s_movk_i32 s50, 0x1800
    buffer_load_dwordx4 {v(GA,4)}, v7, s[16:19], s48 offen
    buffer_load_dwordx4 {v(GA+4,4)}, v7, s[16:19], s48 offen offset:16
    buffer_load_dwordx4 {v(K2R,4)}, v7, s[16:19], s49 offen
    buffer_load_dwordx4 {v(K2R+4,4)}, v7, s[16:19], s49 offen offset:16
    buffer_load_dwordx4 {v(SB,4)}, v7, s[16:19], s50 offen
    buffer_load_dwordx4 {v(SB+4,4)}, v7, s[16:19], s50 offen offset:16
    """)
    K.stamp(2)
    NLOAD_AFTER_U = 2 + 2 + 6
    K(f"""
    s_or_b32 s51, s32, s38
    """)
    f, p0, p1, a0, a1 = 8, 9, 10, 11, 12
    K(f"""
    v_lshrrev_b32 v13, 1, v3
    v_and_b32 v14, 1, v3
    s_lshl_b32 s37, s33, 2
    v_add_u32 v13, s37, v13
    v_cvt_f32_u32 v15, v14
    v_mul_f32 v15, 0.25, v15
    v_cvt_f32_u32 v{f}, v13
    v_mov_b32 v{a0}, 1.0
    v_mov_b32 v{a1}, 1.0
    s_cmp_eq_u32 s32, 0
    s_cbranch_scc1 K2_C0
    v_mul_f32 v{f}, {fconst(1/32)}, v{f}
    v_mov_b32 v{p0}, v15
    v_add_f32 v{p1}, -0.25, v15
    s_branch K2_CD
    K2_C0:
    s_cmp_lt_u32 s33, 4
    s_cbranch_scc0 K2_C0B
    v_mul_f32 v{f}, {fconst(1/32)}, v{f}
    v_mov_b32 v{p0}, v15
    v_mov_b32 v{p1}, 0
    v_mov_b32 v{a1}, 0
    v_cmp_eq_u32 vcc, 0, v13
    v_add_f32 v15, v15, v15
    v_cndmask_b32 v{f}, v{f}, v15, vcc
    v_mov_b32 v15, 0
    v_cndmask_b32 v{p0}, v{p0}, v15, vcc
    s_branch K2_CD
    K2_C0B:
    v_add_f32 v{f}, v{f}, v{f}
    v_add_f32 v{f}, {fconst(-31.0)}, v{f}
    v_mul_f32 v{f}, {fconst(1/64)}, v{f}
    v_mov_b32 v{p0}, 0
    v_mov_b32 v{p1}, v15
    v_mov_b32 v{a0}, 0
    K2_CD:
    v_cmp_gt_u32 vcc, 8, v3
    v_mov_b32 v15, 0
    v_cndmask_b32 v{a0}, v15, v{a0}, vcc
    v_cndmask_b32 v{a1}, v15, v{a1}, vcc
    """.replace("-0.25", fconst(-0.25)))
    K(f"""
    v_lshlrev_b32 v13, 2, v2
    v_cvt_f32_u32 v13, v13
    v_mul_f32 v13, v13, v{f}
    """)
    for st in range(2):
        for jj in range(4):
            K(f"v_add_f32 v14, v13, v{p0}")
            K(f"v_add_f32 v15, v13, v{p1}")
            K(f"v_cos_f32 v14, v14")
            K(f"v_cos_f32 v15, v15")
            K(f"v_mul_f32 v14, v14, v{a0}")
            K(f"v_mul_f32 v15, v15, v{a1}")
            K(f"v_cvt_pk_bf16_f32 v{AS+st*4+jj}, v14, v15")
            K(f"v_add_f32 v13, v13, v{f}")
        if st == 0:
            K(f"v_mul_f32 v14, {fconst(12.0)}, v{f}")
            K(f"v_add_f32 v13, v13, v14")
    K(f"""
    v_cvt_f32_u32 v8, v3
    v_mul_f32 v8, {fconst(1/32)}, v8
    v_lshlrev_b32 v9, 3, v2
    v_cvt_f32_u32 v9, v9
    v_mul_f32 v9, v9, v8
    """)
    for p in range(4):
        K(f"v_add_f32 v10, v9, v8")
        K(f"v_cos_f32 v11, v9")
        K(f"v_cos_f32 v12, v10")
        K(f"v_sin_f32 v13, v9")
        K(f"v_sin_f32 v14, v10")
        K(f"v_add_f32 v9, v10, v8")
        K(f"v_cvt_pk_bf16_f32 v{CC+p}, v11, v12")
        K(f"v_cvt_pk_bf16_f32 v{CS+p}, v13, v14")
    for p in range(4):
        K(f"v_xor_b32 v{CC+4+p}, 0x80000000, v{CC+p}")
        K(f"v_xor_b32 v{CS+4+p}, 0x80000000, v{CS+p}")
        K(f"v_xor_b32 v{CN+p}, 0x80008000, v{CS+p}")
        K(f"v_xor_b32 v{CN+4+p}, 0x00008000, v{CS+p}")
    K(f"""
    v_lshlrev_b32 v8, 2, v2
    """)
    for tau in range(2):
        K(f"v_add_u32 v9, {16*tau}, v3")
        for r in range(4):
            K(f"v_add_u32 v10, {r}, v8")
            K(f"v_mul_u32_u24 v10, v10, v9")
            K(f"v_cvt_f32_u32 v10, v10")
            K(f"v_mul_f32 v10, {fconst(1/512)}, v10")
            K(f"v_cos_f32 v{TWC+tau*4+r}, v10")
            K(f"v_sin_f32 v{TWS+tau*4+r}, v10")
    for jj in range(4):
        K(f"v_add_u32 v10, {jj}, v8")
        K(f"v_mul_u32_u24 v10, v10, v3")
        K(f"v_cvt_f32_u32 v10, v10")
        K(f"v_mul_f32 v10, {fconst(1/16)}, v10")
        K(f"v_cos_f32 v{12+jj%2}, v10")
        K(f"v_sin_f32 v{14+jj%2}, v10")
        if jj % 2 == 1:
            K(f"v_cvt_pk_bf16_f32 v{MM+jj//2}, v12, v13")
            K(f"v_cvt_pk_bf16_f32 v{MM+2+jj//2}, v14, v15")
    for p in range(2):
        K(f"v_xor_b32 v{MP+p}, 0x80008000, v{MM+2+p}")
        K(f"v_mov_b32 v{MP+2+p}, v{MM+p}")
    GW, GR, YW, YN, YM, YS = 248, 249, 250, 251, 252, 253
    YB = 16384; YSTRIDE = 4864
    K(f"""
    v_lshlrev_b32 v{GW}, 12, v2
    v_lshl_add_u32 v{GW}, v3, 4, v{GW}
    s_lshl_b32 s37, s34, 8
    v_add_u32 v{GW}, s37, v{GW}
    v_lshlrev_b32 v8, 3, v2
    v_bfe_u32 v9, v1, 2, 2
    v_add_u32 v8, v8, v9
    v_lshlrev_b32 v{GR}, 5, v8
    v_and_b32 v9, 3, v1
    v_lshl_add_u32 v{GR}, v9, 3, v{GR}
    s_lshl_b32 s37, s34, 11
    v_add_u32 v{GR}, s37, v{GR}
    s_mul_i32 s37, s34, {YSTRIDE}
    s_add_u32 s37, s37, {YB}
    v_mul_u32_u24 v{YW}, 144, v3
    v_lshl_add_u32 v{YW}, v2, 4, v{YW}
    v_add_u32 v{YW}, s37, v{YW}
    v_lshrrev_b32 v8, 2, v1
    v_lshlrev_b32 v8, 4, v8
    v_lshl_add_u32 v{YN}, v1, 5, v8
    v_add_u32 v{YN}, s37, v{YN}
    v_sub_u32 v8, 63, v1
    v_lshrrev_b32 v9, 2, v8
    v_lshlrev_b32 v9, 4, v9
    v_lshl_add_u32 v{YM}, v8, 5, v9
    v_add_u32 v{YM}, s37, v{YM}
    v_sub_u32 v8, 64, v1
    v_and_b32 v8, 63, v8
    v_lshrrev_b32 v9, 2, v8
    v_lshlrev_b32 v9, 4, v9
    v_lshl_add_u32 v{YS}, v8, 5, v9
    v_add_u32 v{YS}, s37, v{YS}
    """)
    def rowfft(GRf, GIf, outR, outI, have_imag):
        TR, TI = 96, 104
        TP = 112
        W2 = 120
        for tau in range(2):
            K(f"v_mfma_f32_16x16x32_bf16 {v(TR+tau*4,4)}, {v(GRf,4)}, {v(CC+tau*4,4)}, 0")
            K(f"v_mfma_f32_16x16x32_bf16 {v(TI+tau*4,4)}, {v(GRf,4)}, {v(CN+tau*4,4)}, 0")
        if have_imag:
            for tau in range(2):
                K(f"v_mfma_f32_16x16x32_bf16 {v(TR+tau*4,4)}, {v(GIf,4)}, {v(CS+tau*4,4)}, {v(TR+tau*4,4)}")
                K(f"v_mfma_f32_16x16x32_bf16 {v(TI+tau*4,4)}, {v(GIf,4)}, {v(CC+tau*4,4)}, {v(TI+tau*4,4)}")
        for tau in range(2):
            for r in range(4):
                i = tau*4+r
                K(f"v_mul_f32 v{W2+i}, v{TR+i}, v{TWC+i}")
                K(f"v_mul_f32 v{W2+8+i}, v{TI+i}, v{TWC+i}")
            for r in range(4):
                i = tau*4+r
                K(f"v_fma_f32 v{W2+i}, v{TI+i}, v{TWS+i}, v{W2+i}")
                K(f"v_fma_f32 v{W2+8+i}, -v{TR+i}, v{TWS+i}, v{W2+8+i}")
        for tau in range(2):
            K(f"v_cvt_pk_bf16_f32 v{TP+tau*4+0}, v{W2+tau*4+0}, v{W2+tau*4+1}")
            K(f"v_cvt_pk_bf16_f32 v{TP+tau*4+1}, v{W2+tau*4+2}, v{W2+tau*4+3}")
            K(f"v_cvt_pk_bf16_f32 v{TP+tau*4+2}, v{W2+8+tau*4+0}, v{W2+8+tau*4+1}")
            K(f"v_cvt_pk_bf16_f32 v{TP+tau*4+3}, v{W2+8+tau*4+2}, v{W2+8+tau*4+3}")
        for tau in range(2):
            K(f"v_mfma_f32_16x16x32_bf16 {v(outR+tau*4,4)}, {v(TP+tau*4,4)}, {v(MM,4)}, 0")
        if outI is not None:
            for tau in range(2):
                K(f"v_mfma_f32_16x16x32_bf16 {v(outI+tau*4,4)}, {v(TP+tau*4,4)}, {v(MP,4)}, 0")
    K(f"""
    s_cmp_lg_u32 s51, 0
    s_cbranch_scc1 K2_NOSA
    buffer_load_dwordx4 {v(136,4)}, v7, s[16:19], 0 offen
    buffer_load_dwordx4 {v(140,4)}, v7, s[16:19], 0 offen offset:16
    s_waitcnt vmcnt(0)
    """)
    for e in range(8):
        K(f"v_mul_f32 v{136+e}, {fconst(2048.0)}, v{136+e}")
    for p in range(4):
        K(f"v_cvt_pk_bf16_f32 v{132+p}, v{136+2*p}, v{136+2*p+1}")
    K(f"""
    s_mul_i32 s37, s34, {YSTRIDE}
    s_add_u32 s37, s37, {YB}
    v_add_u32 v8, s37, v6
    ds_write_b128 v8, {v(132,4)}
    s_lshl_b32 s52, s34, 11
    s_sub_u32 s52, s37, s52
    v_add_u32 v8, s52, v{GR}
    s_waitcnt lgkmcnt(0)
    ds_read_b64_tr_b16 {v(132,2)}, v8
    ds_read_b64_tr_b16 {v(134,2)}, v8 offset:128
    s_waitcnt lgkmcnt(0)
    """)
    rowfft(132, None, SA, None, False)
    K("K2_NOSA:")
    K.stamp(3)
    K(f"s_mov_b32 s53, 0x05040100")
    K(f"s_mov_b32 s54, 0x07060302")
    for st in range(2):
        K(f"s_waitcnt vmcnt({NLOAD_AFTER_U + (8 if st == 0 else 0)})")
        for i in range(8):
            for p in range(4):
                c4, hb = i//2, i%2
                K(f"v_perm_b32 v{FR+st*32+i*4+p}, v{RAW+st*32+(2*p+1)*4+c4}, v{RAW+st*32+(2*p)*4+c4}, s{53+hb}")
    K.stamp(4)
    ACC = RAW
    for st in range(2):
        for i in range(8):
            K(f"v_mfma_f32_16x16x32_bf16 {v(ACC+i*4,4)}, {v(AS+st*4,4)}, {v(FR+st*32+i*4,4)}, {'0' if st==0 else v(ACC+i*4,4)}")
    K(f"s_waitcnt vmcnt({NLOAD_AFTER_U-2})")
    GP = RAW+32
    for r in range(4):
        for i in range(8):
            K(f"v_mul_f32 v{ACC+i*4+r}, v{ACC+i*4+r}, v{K1R+i}")
        for p in range(4):
            K(f"v_cvt_pk_bf16_f32 v{GP+r*4+p}, v{ACC+(2*p)*4+r}, v{ACC+(2*p+1)*4+r}")
        K(f"ds_write_b128 v{GW}, {v(GP+r*4,4)} offset:{r*1024}")
    K("s_waitcnt lgkmcnt(0)")
    K.stamp(5)
    K("s_barrier")
    K.stamp(6)
    GRf, GIf = 80, 84
    K(f"""
    ds_read_b64_tr_b16 {v(GRf,2)}, v{GR}
    ds_read_b64_tr_b16 {v(GRf+2,2)}, v{GR} offset:128
    ds_read_b64_tr_b16 {v(GIf,2)}, v{GR} offset:1024
    ds_read_b64_tr_b16 {v(GIf+2,2)}, v{GR} offset:1152
    s_waitcnt lgkmcnt(0)
    """)
    YR, YI = 16, 24
    rowfft(GRf, GIf, YR, YI, True)
    K.stamp(7)
    NA, MA = 32, 40
    BL = 48
    YA_, YB_ = 64, 72
    A2 = 2432
    K(f"""
    s_cmp_lg_u32 s51, 0
    s_cbranch_scc1 K2_REG
    """)
    for e in range(8):
        K(f"v_add_f32 v{YR+e}, v{YR+e}, v{SA+e}")
    for tau in range(2):
        K(f"ds_write_b128 v{YW}, {v(YR+tau*4,4)} offset:{tau*64}")
        K(f"ds_write_b128 v{YW}, {v(YI+tau*4,4)} offset:{A2+tau*64}")
    K("s_waitcnt lgkmcnt(0)")
    for (off, dst) in ((0, YA_), (A2, YB_)):
        K(f"ds_read_b128 {v(NA,4)}, v{YN} offset:{off}")
        K(f"ds_read_b128 {v(NA+4,4)}, v{YN} offset:{off+16}")
        K(f"ds_read_b128 {v(BL,4)}, v{YM} offset:{off}")
        K(f"ds_read_b128 {v(BL+4,4)}, v{YM} offset:{off+16}")
        K(f"ds_read_b32 v{BL+8}, v{YS} offset:{off}")
        K("s_waitcnt lgkmcnt(0)")
        for i in range(8):
            src = BL+8 if i == 0 else BL+8-i
            K(f"v_add_f32 v{dst+i}, v{NA+i}, v{src}")
        for i in range(8):
            K(f"v_mul_f32 v{dst+i}, 0.5, v{dst+i}")
    K("s_branch K2_EPI")
    K("K2_REG:")
    for tau in range(2):
        K(f"ds_write_b128 v{YW}, {v(YR+tau*4,4)} offset:{tau*64}")
    K("s_waitcnt lgkmcnt(0)")
    K(f"ds_read_b128 {v(YA_,4)}, v{YN}")
    K(f"ds_read_b128 {v(YA_+4,4)}, v{YN} offset:16")
    K(f"ds_read_b128 {v(BL,4)}, v{YM}")
    K(f"ds_read_b128 {v(BL+4,4)}, v{YM} offset:16")
    K(f"ds_read_b32 v{YB_}, v{YS}")
    K("s_waitcnt lgkmcnt(0)")
    for i in range(1, 8):
        K(f"v_mov_b32 v{YB_+i}, v{BL+8-i}")
    K("K2_EPI:")
    K.stamp(8)
    K("s_waitcnt vmcnt(0)")
    K.stamp(9)
    X2P = [80, 84]
    XF = [88, 96]
    for side, (xr, yr) in enumerate(((XA, YA_), (XB, YB_))):
        for c4 in range(4):
            K(f"v_lshlrev_b32 v{XF[side]+2*c4}, 16, v{xr+c4}")
            K(f"v_and_b32 v{XF[side]+2*c4+1}, 0xffff0000, v{xr+c4}")
        for e in range(8):
            K(f"v_fma_f32 v{XF[side]+e}, v{GA+e}, v{yr+e}, v{XF[side]+e}")
        for c4 in range(4):
            K(f"v_cvt_pk_bf16_f32 v{X2P[side]+c4}, v{XF[side]+2*c4}, v{XF[side]+2*c4+1}")
    K(f"""
    s_lshl_b32 s55, s32, 6
    s_lshl_b32 s56, s38, 1
    s_add_u32 s55, s55, s56
    s_lshl_b32 s55, s55, 10
    s_add_u32 s56, s55, 1024
    buffer_store_dwordx4 {v(X2P[0],4)}, v6, s[24:27], s55 offen
    buffer_store_dwordx4 {v(X2P[1],4)}, v6, s[24:27], s56 offen
    s_mov_b32 s57, 0x3f803f80
    """)
    ST = [104, 105, 106, 107]
    for c4 in range(4):
        for side in range(2):
            x = X2P[side]+c4
            K(f"v_dot2_f32_bf16 v{ST[2*side]}, v{x}, s57, {'0' if c4==0 else 'v%d'%ST[2*side]}")
            K(f"v_dot2_f32_bf16 v{ST[2*side+1]}, v{x}, v{x}, {'0' if c4==0 else 'v%d'%ST[2*side+1]}")
    for side in range(2):
        for c4 in range(4):
            K(f"v_lshlrev_b32 v{XF[side]+2*c4}, 16, v{X2P[side]+c4}")
            K(f"v_and_b32 v{XF[side]+2*c4+1}, 0xffff0000, v{X2P[side]+c4}")
    for perm in ("quad_perm:[1,0,3,2]", "quad_perm:[2,3,0,1]", "row_half_mirror", "row_mirror"):
        for r in ST:
            K(f"v_add_f32_dpp v{r}, v{r}, v{r} {perm} row_mask:0xf bank_mask:0xf")
    for swap in ("v_permlane16_swap_b32", "v_permlane32_swap_b32"):
        for i, r in enumerate(ST):
            K(f"v_mov_b32 v{108+i}, v{r}")
        for i, r in enumerate(ST):
            K(f"{swap} v{r}, v{108+i}")
        for i, r in enumerate(ST):
            K(f"v_add_f32 v{r}, v{r}, v{108+i}")
    for side in range(2):
        sm, sq = ST[2*side], ST[2*side+1]
        K(f"v_mul_f32 v{sm}, {fconst(1/512)}, v{sm}")
        K(f"v_mul_f32 v{sq}, {fconst(1/512)}, v{sq}")
        K(f"v_fma_f32 v{sq}, -v{sm}, v{sm}, v{sq}")
        K(f"v_max_f32 v{sq}, 0, v{sq}")
        K(f"v_add_f32 v{sq}, {fconst(1e-5)}, v{sq}")
        K(f"v_rsq_f32 v{sq}, v{sq}")
    HP = [112, 116]
    for side in range(2):
        sm, sq = ST[2*side], ST[2*side+1]
        for e in range(8):
            K(f"v_sub_f32 v{XF[side]+e}, v{XF[side]+e}, v{sm}")
        for e in range(8):
            K(f"v_mul_f32 v{120+e}, v{sq}, v{K2R+e}")
        for e in range(8):
            K(f"v_fma_f32 v{XF[side]+e}, v{XF[side]+e}, v{120+e}, v{SB+e}")
        for c4 in range(4):
            K(f"v_cvt_pk_bf16_f32 v{HP[side]+c4}, v{XF[side]+2*c4}, v{XF[side]+2*c4+1}")
    K(f"""
    buffer_store_dwordx4 {v(HP[0],4)}, v6, s[28:31], s55 offen
    buffer_store_dwordx4 {v(HP[1],4)}, v6, s[28:31], s56 offen
    """)
    K.stamp(10); K.stamp(11)
    if STAMPS:
        K("s_waitcnt vmcnt(0)")
        K.stamp(12); K.stamp(13, real=True)
    K.dump_stamps(6, 7, WS_DBG + 0x100000, 34, vtmp=140)
    K("K2_END:")
    K("s_endpgm")
    return K, dict(grid=256, lds=16384+4*4864, vgpr=256)

def gen_k3():
    K = Kernel("k3_kernel"); K.stamps_on = STAMPS
    K.stamp(0, real=True); K.stamp(1)
    K(f"""
    s_load_dwordx2 s[4:5], s[0:1], 48
    s_load_dwordx2 s[6:7], s[0:1], 96
    s_cmp_ge_u32 s2, 256
    s_cbranch_scc1 K3_END
    v_and_b32 v1, 63, v0
    v_lshrrev_b32 v4, 6, v0
    v_readfirstlane_b32 s34, v4
    s_and_b32 s32, s2, 15
    s_lshr_b32 s33, s2, 4
    v_lshrrev_b32 v2, 4, v1
    v_and_b32 v3, 15, v1
    """)
    K(f"""
    s_lshr_b32 s35, s34, 1
    s_lshl_b32 s35, s35, 3
    v_lshl_add_u32 v4, v2, 1, s35
    v_xor_b32 v4, v4, v3
    v_mul_u32_u24 v5, 3584, v2
    v_lshl_add_u32 v5, v4, 4, v5
    s_mul_i32 s36, s33, 224
    v_add_u32 v5, s36, v5
    v_cmp_gt_u32 vcc, 14, v4
    v_mov_b32 v6, 0x40000000
    v_cndmask_b32 v5, v6, v5, vcc
    s_mul_i32 s37, s34, {4*3584}
    s_lshl_b32 s38, s34, 10
    """)
    K(f"""
    s_lshl_b32 s39, s32, 7
    s_lshl_b32 s40, s34, 5
    s_add_u32 s39, s39, s40
    v_add_u32 v7, s39, v3
    v_lshlrev_b32 v7, 10, v7
    v_lshl_add_u32 v7, v2, 4, v7
    s_movk_i32 s41, 0x4000
    s_waitcnt lgkmcnt(0)
    """)
    srd(K, 12, 4, 5, 512*3584)
    srd(K, 16, 6, 7, 0x200000, WS_H2)
    srd(K, 20, 6, 7, H_BYTES, WS_H)
    ACT = 64
    AF = 192
    ACC = 8
    def issue(ks):
        for m2 in range(2):
            m = ks*2 + m2
            K(f"s_mov_b32 m0, s38")
            K(f"buffer_load_dwordx4 v5, s[12:15], s37 offen lds")
            K(f"s_add_u32 s37, s37, {16*3584}")
            K(f"s_add_u32 s38, s38, 4096")
        for u in range(2):
            K(f"buffer_load_dwordx4 {v(ACT+(ks*2+u)*4,4)}, v7, s[16:19], {'0' if u==0 else 's41'} offen offset:{ks*64}")
    PRE = 15
    K.stamp(2)
    for ks in range(PRE): issue(ks)
    K.stamp(3)
    RA = 248
    K(f"""
    v_bfe_u32 v4, v1, 2, 2
    v_and_b32 v6, 1, v2
    v_lshl_add_u32 v6, v6, 2, v4
    v_lshlrev_b32 v6, 1, v6
    v_lshl_add_u32 v4, v2, 3, v4
    v_lshlrev_b32 v4, 8, v4
    v_bfe_u32 v8, v1, 1, 1
    v_lshl_add_u32 v4, v8, 4, v4
    v_and_b32 v8, 1, v1
    v_lshl_add_u32 v4, v8, 3, v4
    """)
    for tau in range(7):
        K(f"v_xor_b32 v8, {2*tau}, v6")
        K(f"v_lshl_add_u32 v{RA+tau}, v8, 4, v4")
    def reads(ks, buf):
        o = (ks % 8) * 8192
        for tau in range(7):
            for rd in range(2):
                K(f"ds_read_b64_tr_b16 {v(AF+buf*28+tau*4+rd*2,2)}, v{RA+tau} offset:{o+rd*1024}")
    issued = PRE
    for ks in range(16):
        after = (issued - 1 - ks) * 4
        K(f"s_waitcnt vmcnt({after})")
        K("s_barrier")
        if ks in (0, 1, 4, 8, 12, 15): K.stamp(4 + (0, 1, 4, 8, 12, 15).index(ks))
        if issued < 16:
            issue(issued); issued += 1
        if ks == 8:
            for tau in range(7):
                K(f"v_add_u32 v{RA+tau}, 0x10000, v{RA+tau}")
        buf = ks % 2
        reads(ks, buf)
        for tau in range(7):
            K(f"s_waitcnt lgkmcnt({12-2*tau})")
            for u in range(2):
                d = ACC+(u*7+tau)*4
                K(f"v_mfma_f32_16x16x32_bf16 {v(d,4)}, {v(AF+buf*28+tau*4,4)}, {v(ACT+(ks*2+u)*4,4)}, {'0' if ks==0 else v(d,4)}")
    K.stamp(10)
    PKR = 64
    K(f"""
    v_and_b32 v4, 1, v2
    v_lshlrev_b32 v4, 5, v4
    v_lshrrev_b32 v5, 1, v2
    v_lshl_add_u32 v4, v5, 4, v4
    v_add_u32 v5, s39, v3
    v_mul_u32_u24 v5, 3584, v5
    v_add_u32 v4, v4, v5
    v_lshl_add_u32 v6, v2, 3, v5
    s_mul_i32 s42, s33, 224
    s_add_u32 s43, s42, {16*3584}
    """)
    for u in range(2):
        for tau in range(7):
            d = ACC+(u*7+tau)*4
            for r in range(4):
                K(f"v_max_f32 v{d+r}, 0, v{d+r}")
            K(f"v_cvt_pk_bf16_f32 v{PKR+(u*7+tau)*2}, v{d}, v{d+1}")
            K(f"v_cvt_pk_bf16_f32 v{PKR+(u*7+tau)*2+1}, v{d+2}, v{d+3}")
    for u in range(2):
        so = "s42" if u == 0 else "s43"
        for pr in range(3):
            b = PKR+(u*7+2*pr)*2
            if b % 2: raise RuntimeError
            K(f"v_permlane16_swap_b32 v{b}, v{b+2}")
            K(f"v_permlane16_swap_b32 v{b+1}, v{b+3}")
            K(f"buffer_store_dwordx4 {v(b,4)}, v4, s[20:23], {so} offen offset:{pr*64}")
        b = PKR+(u*7+6)*2
        K(f"buffer_store_dwordx2 {v(b,2)}, v6, s[20:23], {so} offen offset:192")
    K.stamp(11)
    if STAMPS:
        K("s_waitcnt vmcnt(0)")
        K.stamp(12); K.stamp(13, real=True)
    K.dump_stamps(6, 7, WS_DBG + 0x100000*2, 34)
    K("K3_END:")
    K("s_endpgm")
    return K, dict(grid=256, lds=131072, vgpr=256)

def gen_k4():
    K = Kernel("k4_kernel"); K.stamps_on = STAMPS
    K.stamp(0, real=True); K.stamp(1)
    K(f"""
    s_load_dwordx2 s[4:5], s[0:1], 56
    s_load_dwordx2 s[6:7], s[0:1], 96
    s_load_dwordx2 s[8:9], s[0:1], 80
    s_cmp_ge_u32 s2, 256
    s_cbranch_scc1 K4_END
    v_and_b32 v1, 63, v0
    v_lshrrev_b32 v4, 6, v0
    v_readfirstlane_b32 s34, v4
    s_and_b32 s32, s2, 31
    s_lshr_b32 s33, s2, 5
    v_lshrrev_b32 v2, 4, v1
    v_and_b32 v3, 15, v1
    """)
    NSLOT = 10
    SLOT = 4096
    K(f"""
    v_lshrrev_b32 v4, 3, v1
    v_and_b32 v5, 7, v1
    v_bfe_u32 v6, v1, 4, 1
    v_lshlrev_b32 v6, 1, v6
    v_xor_b32 v7, v5, v6
    v_xor_b32 v8, 4, v7
    v_lshlrev_b32 v4, 10, v4
    s_lshl_b32 s35, s33, 7
    v_add_u32 v4, s35, v4
    v_lshl_add_u32 v5, v7, 4, v4
    v_lshl_add_u32 v6, v8, 4, v4
    s_mul_i32 s37, s34, {448*1024}
    s_mul_i32 s38, s34, {NSLOT*SLOT}
    s_mov_b32 s44, s38
    """)
    K(f"""
    s_lshl_b32 s39, s32, 6
    v_add_u32 v7, s39, v3
    v_mul_u32_u24 v7, 3584, v7
    v_lshl_add_u32 v7, v2, 4, v7
    s_mul_i32 s40, s34, 896
    v_add_u32 v7, s40, v7
    s_mov_b32 s41, {16*3584}
    s_mov_b32 s42, {32*3584}
    s_mov_b32 s43, {48*3584}
    s_waitcnt lgkmcnt(0)
    """)
    srd(K, 12, 4, 5, 1792*1024)
    srd(K, 16, 6, 7, H_BYTES, WS_H)
    srd(K, 20, 6, 7, 0x200000, WS_X2)
    srd(K, 24, 6, 7, 12288)
    srd(K, 28, 8, 9, 0x200000)
    ACC = 8
    AF = 72
    def act(ks, u): return a((ks*4+u)*4, 4)
    def issue(ks):
        slot = ks % NSLOT
        for m in range(4):
            K(f"s_add_u32 m0, s44, {slot*SLOT + m*1024}")
            K(f"buffer_load_dwordx4 v{5 + (m&1)}, s[12:15], s37 offen lds")
            K(f"s_add_u32 s37, s37, 8192")
        for u in range(4):
            K(f"buffer_load_dwordx4 {act(ks,u)}, v7, s[16:19], {['0','s41','s42','s43'][u]} offen offset:{ks*64}")
    PRE = 7
    K.stamp(2)
    for ks in range(PRE): issue(ks)
    K.stamp(3)
    RA = 104
    K(f"""
    v_bfe_u32 v9, v1, 2, 2
    v_bfe_u32 v10, v1, 3, 1
    v_and_b32 v11, 1, v2
    v_lshl_add_u32 v10, v11, 1, v10
    v_lshlrev_b32 v10, 1, v10
    v_lshl_add_u32 v9, v2, 3, v9
    v_lshlrev_b32 v9, 7, v9
    v_bfe_u32 v11, v1, 1, 1
    v_lshl_add_u32 v9, v11, 4, v9
    v_and_b32 v11, 1, v1
    v_lshl_add_u32 v9, v11, 3, v9
    v_add_u32 v9, s44, v9
    """)
    for tau in range(4):
        K(f"v_xor_b32 v11, {2*tau}, v10")
        K(f"v_lshl_add_u32 v{RA+tau}, v11, 4, v9")
    issued = PRE
    for ks in range(14):
        after = (issued - 1 - ks) * 8
        K(f"s_waitcnt vmcnt({after})")
        if ks in (0, 1, 4, 8, 12, 13): K.stamp(4 + (0, 1, 4, 8, 12, 13).index(ks))
        buf = ks % 2
        o = (ks % NSLOT) * SLOT
        for tau in range(4):
            for rd in range(2):
                K(f"ds_read_b64_tr_b16 {v(AF+buf*16+tau*4+rd*2,2)}, v{RA+tau} offset:{o+rd*512}")
        for tau in range(4):
            K(f"s_waitcnt lgkmcnt({6-2*tau})")
            for u in range(4):
                d = ACC+(u*4+tau)*4
                K(f"v_mfma_f32_16x16x32_bf16 {v(d,4)}, {v(AF+buf*16+tau*4,4)}, {act(ks,u)}, {'0' if ks==0 else v(d,4)}")
        if issued < 14:
            issue(issued); issued += 1
    K.stamp(10)
    XR, GB = 112, 120
    K(f"""
    s_lshl_b32 s45, s34, 4
    s_add_u32 s45, s45, s39
    v_add_u32 v109, s45, v3
    v_lshlrev_b32 v200, 10, v109
    v_lshl_add_u32 v200, v2, 3, v200
    s_lshl_b32 s46, s33, 7
    """)
    for tau in range(4):
        K(f"buffer_load_dwordx2 {v(XR+tau*2,2)}, v200, s[20:23], s46 offen offset:{tau*32}")
    K(f"""
    v_lshlrev_b32 v201, 4, v2
    s_lshl_b32 s47, s33, 8
    s_add_u32 s47, s47, {5*2048}
    """)
    for tau in range(4):
        K(f"buffer_load_dwordx4 {v(GB+tau*4,4)}, v201, s[24:27], s47 offen offset:{tau*64}")
    K("s_barrier")
    K(f"""
    v_lshlrev_b32 v202, 4, v1
    s_lshl_b32 s48, s34, 12
    v_add_u32 v16+0, s48, v202
    """.replace("v16+0", "v108"))
    for u in range(4):
        for tau in range(4):
            K(f"ds_write_b128 v108, {v(ACC+(u*4+tau)*4,4)} offset:{u*16384+tau*1024}")
    K("s_waitcnt lgkmcnt(0)")
    K("s_barrier")
    K(f"""
    s_lshl_b32 s48, s34, 14
    v_add_u32 v108, s48, v202
    """)
    RD = 136
    for src in range(4):
        for tau in range(4):
            K(f"ds_read_b128 {v(RD+(src*4+tau)*4,4)}, v108 offset:{src*4096+tau*1024}")
    K("s_waitcnt lgkmcnt(0)")
    for tau in range(4):
        for r in range(4):
            x = RD+tau*4+r
            K(f"v_add_f32 v{x}, v{x}, v{RD+(4+tau)*4+r}")
            K(f"v_add_f32 v{RD+(8+tau)*4+r}, v{RD+(8+tau)*4+r}, v{RD+(12+tau)*4+r}")
            K(f"v_add_f32 v{x}, v{x}, v{RD+(8+tau)*4+r}")
    K("s_waitcnt vmcnt(0)")
    XF = 8
    for tau in range(4):
        for c in range(2):
            K(f"v_lshlrev_b32 v{XF+tau*4+2*c}, 16, v{XR+tau*2+c}")
            K(f"v_and_b32 v{XF+tau*4+2*c+1}, 0xffff0000, v{XR+tau*2+c}")
        for r in range(4):
            K(f"v_fma_f32 v{XF+tau*4+r}, v{GB+tau*4+r}, v{RD+tau*4+r}, v{XF+tau*4+r}")
    OP = 32
    for tau in range(4):
        K(f"v_cvt_pk_bf16_f32 v{OP+tau*2}, v{XF+tau*4}, v{XF+tau*4+1}")
        K(f"v_cvt_pk_bf16_f32 v{OP+tau*2+1}, v{XF+tau*4+2}, v{XF+tau*4+3}")
    K(f"""
    v_lshrrev_b32 v40, 6, v109
    v_bfe_u32 v41, v109, 1, 5
    v_and_b32 v42, 1, v109
    v_lshlrev_b32 v43, 6, v41
    v_add_u32 v44, v40, v43
    v_cmp_eq_u32 vcc, 0, v40
    v_subrev_u32 v45, {64*16-32}, v43
    v_cmp_lt_u32 s[50:51], 15, v41
    v_cndmask_b32 v45, v43, v45, s[50:51]
    v_cndmask_b32 v44, v44, v45, vcc
    v_sub_u32 v45, 2048, v44
    v_lshrrev_b32 v46, 1, v109
    v_cmp_eq_u32 vcc, 0, v46
    v_mov_b32 v47, 1024
    v_cndmask_b32 v45, v45, v47, vcc
    v_cmp_eq_u32 vcc, 1, v42
    v_cndmask_b32 v44, v44, v45, vcc
    v_lshlrev_b32 v44, 10, v44
    v_and_b32 v45, 1, v2
    v_lshl_add_u32 v44, v45, 5, v44
    v_lshrrev_b32 v45, 1, v2
    v_lshl_add_u32 v44, v45, 4, v44
    """)
    for pr in range(2):
        b = OP+pr*4
        K(f"v_permlane16_swap_b32 v{b}, v{b+2}")
        K(f"v_permlane16_swap_b32 v{b+1}, v{b+3}")
        K(f"buffer_store_dwordx4 {v(b,4)}, v44, s[28:31], s46 offen offset:{pr*64}")
    K.stamp(11)
    if STAMPS:
        K("s_waitcnt vmcnt(0)")
        K.stamp(12); K.stamp(13, real=True)
    K.dump_stamps(6, 7, WS_DBG + 0x100000*3, 34)
    K("K4_END:")
    K("s_endpgm")
    return K, dict(grid=256, lds=163840, vgpr=512, accum=256)

def build(kernels):
    hdr = []
    for K, info in kernels:
        hdr.append(f"; @launch kernel={K.name} grid=({info['grid']},1,1) block=(256,1,1) lds={info['lds']}")
    txt = "\n".join(hdr) + "\n" + '.amdgcn_target "amdgcn-amd-amdhsa--gfx950"\n'
    for K, info in kernels:
        txt += head(K.name) + K.finalize()
    for K, info in kernels:
        txt += desc(K.name, info['vgpr'], info.get('accum', min(256, (info['vgpr']+3)//4*4)))
    return txt

if __name__ == "__main__":
    ks = [gen_k1(), gen_k2(), gen_k3(), gen_k4()]
    out = sys.argv[1] if len(sys.argv) > 1 else f"cdna_kernels/{NAME}.s"
    open(out, "w").write(build(ks))
    print("wrote", out)
```

```python
import re

def v(i, n=1): return f"v{i}" if n == 1 else f"v[{i}:{i+n-1}]"
def a(i, n=1): return f"a{i}" if n == 1 else f"a[{i}:{i+n-1}]"
def s(i, n=1): return f"s{i}" if n == 1 else f"s[{i}:{i+n-1}]"

_reg_re = re.compile(r"^(-|\|)?(abs\()?([vas])(\d+|\[(\d+):(\d+)\])\)?\|?$")
def regs_of(tok):
    tok = tok.strip()
    if tok in ("vcc",): return {("s", "vcc")}
    if tok in ("vcc_lo", "vcc_hi"): return {("s", "vcc")}
    if tok == "exec": return {("s", "exec")}
    if tok == "m0": return {("s", "m0")}
    m = _reg_re.match(tok)
    if not m: return set()
    k = m.group(3)
    if m.group(5) is not None:
        return {(k, i) for i in range(int(m.group(5)), int(m.group(6)) + 1)}
    return {(k, int(m.group(4)))}

def split_ops(rest):
    out, depth, cur = [], 0, ""
    for ch in rest:
        if ch == "[": depth += 1
        if ch == "]": depth -= 1
        if ch == "," and depth == 0:
            out.append(cur.strip()); cur = ""
        else: cur += ch
    if cur.strip(): out.append(cur.strip())
    return out

TRANS = ("v_exp_f32", "v_log_f32", "v_rcp_f32", "v_rsq_f32", "v_sqrt_f32", "v_sin_f32", "v_cos_f32")

class Ins:
    def __init__(self, text):
        self.text = text
        t = text.split(";")[0].strip()
        self.label = t.endswith(":")
        self.directive = t.startswith(".") or t == ""
        self.op = ""
        self.dst, self.src = set(), set()
        self.kind = None
        if self.label or self.directive: return
        parts = t.split(None, 1)
        op = parts[0]; self.op = op
        rest = parts[1] if len(parts) > 1 else ""
        ops = split_ops(rest)
        mods = ""
        if ops:
            last = ops[-1].split(None, 1)
            ops[-1] = last[0]
            mods = last[1] if len(last) > 1 else ""
        self.ops, self.mods = ops, mods
        R = [regs_of(o) for o in ops]
        U = lambda L: set().union(*L) if L else set()
        base = re.sub(r"_(e32|e64|dpp|sdwa)$", "", op)
        self.base = base
        if op.startswith("v_mfma"):
            self.kind = "mfma"; self.dst = R[0]; self.srcA = R[1]; self.srcB = R[2]; self.srcC = R[3]
            self.src = R[1] | R[2] | R[3]
            self.passes = 8 if "32x32x16" in op else 4 if "16x16x32" in op else None
            assert self.passes, op
        elif op.startswith("v_"):
            self.kind = "valu"
            self.trans = base in TRANS
            self.dpp = ("quad_perm" in mods or "row_" in mods or "wave_" in mods or op.endswith("_dpp"))
            if base.startswith("v_cmp"):
                self.dst = R[0]; self.src = U(R[1:])
            elif base.startswith("v_permlane") and "swap" in base:
                self.dst = R[0] | R[1]; self.src = R[0] | R[1]; self.perm = True
            elif base in ("v_fmac_f32", "v_dot2c_f32_bf16", "v_pk_fmac_f16"):
                self.dst = R[0]; self.src = U(R)
            elif base in ("v_add_co_u32", "v_sub_co_u32", "v_addc_co_u32"):
                self.dst = R[0] | R[1]; self.src = U(R[2:])
            else:
                self.dst = R[0]; self.src = U(R[1:])
                if base == "v_cndmask_b32" and len(ops) == 3: self.src |= {("s", "vcc")}
            if self.dpp: self.src |= R[0] if ("bound_ctrl" not in mods) else set()
        elif op.startswith("ds_"):
            self.kind = "ds"
            if op.startswith("ds_read") or op.startswith("ds_bpermute") or op.startswith("ds_swizzle") or op.startswith("ds_permute"):
                self.dst = R[0]; self.src = U(R[1:]); self.load = True
            else:
                self.dst = set(); self.src = U(R); self.load = False
        elif op.startswith("buffer_") or op.startswith("global_"):
            self.kind = "vmem"
            allm = rest
            self.lds = bool(re.search(r"\blds\b", allm)) or "_lds_" in op
            if op in ("buffer_wbl2", "buffer_inv"):
                self.load = False; self.dst = set(); self.src = set(); self.nodata = True
            elif "load" in op:
                self.load = True
                if self.lds: self.dst = set(); self.src = U(R) | {("s", "m0")}
                else: self.dst = R[0]; self.src = U(R[1:])
            elif "atomic" in op:
                self.load = False; self.src = U(R); self.dst = set()
                if "sc0" in mods or " sc0" in allm:
                    self.load = True
                    self.dst = R[0]
            else:
                self.load = False; self.dst = set(); self.src = U(R)
                self.data = R[0] if op.startswith("buffer_") else R[1]
                self.wide = op.endswith("x4") or op.endswith("x3")
        elif op.startswith("s_load") or op.startswith("s_buffer_load") or op in ("s_memtime", "s_memrealtime"):
            self.kind = "smem"; self.dst = R[0]; self.src = U(R[1:])
        elif op.startswith("s_"):
            self.kind = "salu"
            if base in ("s_waitcnt", "s_barrier", "s_nop", "s_branch", "s_endpgm", "s_setprio", "s_sleep") or base.startswith("s_cbranch"):
                pass
            elif base.startswith("s_cmp"):
                self.src = U(R)
            else:
                self.dst = R[0]; self.src = U(R[1:])
                if "saveexec" in base: self.dst |= {("s", "exec")}
        else:
            raise ValueError("unknown op: " + text)

def _av(x):
    return x

class Kernel:
    def __init__(self, name):
        self.name = name
        self.ins = []
    def __call__(self, text):
        for ln in text.split("\n"):
            ln = ln.strip()
            if ln == "" or ln.startswith(";"):
                if ln: self.ins.append(Ins("; " + ln.lstrip("; ")) if False else _Comment(ln))
                continue
            self.ins.append(Ins(ln))
    def reset_state(self): self.ins.append(_Comment("; @reset"))
    def comment(self, t): self.ins.append(_Comment("; " + t))
    stamps_on = False
    def stamp(self, i, real=False):
        if not self.stamps_on: return
        self(f"{'s_memrealtime' if real else 's_memtime'} s[{64+2*i}:{65+2*i}]")
        self.nstamp = max(getattr(self, 'nstamp', 0), i + 1)
    def dump_stamps(self, ws_lo, ws_hi, off, wave_sgpr, vtmp=250):
        if not self.stamps_on: return
        n = self.nstamp
        self("s_waitcnt vmcnt(0) lgkmcnt(0)")
        self(f"s_add_u32 s[0], s{ws_lo}, {off}".replace("s[0]", "s60"))
        self(f"s_addc_u32 s61, s{ws_hi}, 0")
        self("s_mov_b32 s62, 0x1000000")
        self("s_mov_b32 s63, 0x20000")
        for i in range(n):
            self(f"v_writelane_b32 v{vtmp}, s{64+2*i}, {i}")
        self(f"v_and_b32 v{vtmp+1}, 63, v0")
        self(f"v_lshlrev_b32 v{vtmp+1}, 2, v{vtmp+1}")
        self(f"s_lshl_b32 s58, s2, 2")
        self(f"s_add_u32 s58, s58, s{wave_sgpr}")
        self(f"s_lshl_b32 s58, s58, 8")
        self(f"buffer_store_dword v{vtmp}, v{vtmp+1}, s[60:63], s58 offen")
        self("s_waitcnt vmcnt(0)")

    def finalize(self, check=True):
        out = []
        hist = []
        pos = 0
        vm = []
        lg = []
        errors = []
        def need(ins):
            n = 0
            for (p, pr) in reversed(hist):
                d = pos - p - 1
                if d >= 20: break
                req = required(pr, ins)
                if req - d > n: n = req - d
            return n
        for ins in self.ins:
            if isinstance(ins, _Comment):
                if ins.text == "; @save": saved = (list(vm), list(lg))
                elif ins.text == "; @restore": vm, lg = list(saved[0]), list(saved[1])
                elif ins.text == "; @reset": vm, lg, hist = [], [], []
                out.append("    " + ins.text); continue
            if ins.label:
                out.append(ins.text)
                continue
            if ins.directive:
                out.append(ins.text); continue
            n = need(ins)
            while n > 0:
                k = min(n, 16)
                out.append(f"    s_nop {k-1}")
                pos += k; n -= k
            if check:
                touched = ins.src | ins.dst
                if ins.op == "s_waitcnt":
                    m = re.search(r"vmcnt\((\d+)\)", ins.text)
                    if m:
                        k = int(m.group(1)); vm = vm[len(vm) - k:] if k < len(vm) else vm
                        if k == 0: vm = []
                    m = re.search(r"lgkmcnt\((\d+)\)", ins.text)
                    if m:
                        k = int(m.group(1))
                        if k == 0: lg = []
                        else:
                            sm = [x for x in lg if x.kind == "smem"]
                            dsl = [x for x in lg if x.kind != "smem"]
                            dsl = dsl[len(dsl) - k:] if k < len(dsl) else dsl
                            lg = sm + dsl
                else:
                    for x in vm:
                        if ins.kind == "vmem" and ins.load and x.dst == ins.dst and not (x.dst & ins.src): continue
                        if x.dst & touched: errors.append(f"vm pending {x.text} touched by {ins.text}")
                    for x in lg:
                        if x.dst & touched: errors.append(f"lgkm pending {x.text} touched by {ins.text}")
                    if ins.kind == "vmem":
                        vm.append(ins)
                        if len(vm) > 63: errors.append(f"more than 63 vmem outstanding at {ins.text}")
                    if ins.kind in ("ds", "smem"):
                        lg.append(ins)
                        if ins.kind == "smem" and len(ins.dst) > 1: lg.append(ins)
                        if len(lg) > 15 and False: errors.append(f">15 lgkm outstanding at {ins.text}")
            out.append("    " + ins.text)
            hist.append((pos, ins))
            if ins.op == "s_nop":
                pos += int(ins.ops[0], 0) + 1
            else:
                pos += 1
            if len(hist) > 40: hist = hist[-40:]
        if errors:
            for e in errors[:20]: print("WAITCNT ERROR:", e)
            raise RuntimeError(f"{len(errors)} waitcnt errors in {self.name}")
        return "\n".join(out) + "\n"

class _Comment:
    def __init__(self, t): self.text = t

def vg(S):
    return {x for x in S if x[0] in ("v", "a")}
def sg(S):
    return {x for x in S if x[0] == "s"}

def required(p, c):
    r = 0
    if p.kind == "valu":
        w = vg(p.dst)
        if c.kind == "mfma" and (w & c.src): r = max(r, 2)
        if c.kind == "valu":
            if getattr(p, "trans", False) and not getattr(c, "trans", False) and (w & c.src): r = max(r, 1)
            if getattr(c, "dpp", False) and (w & c.src): r = max(r, 2)
            if getattr(c, "perm", False) and (w & c.src): r = max(r, 2)
            if c.base in ("v_readlane_b32", "v_readfirstlane_b32") and (w & c.src): r = max(r, 1)
            sw = sg(p.dst)
            if sw & c.src:
                r = max(r, 4 if c.base in ("v_readlane_b32", "v_writelane_b32") else 2)
        if c.kind == "vmem" and (sg(p.dst) & c.src): r = max(r, 5)
        if c.kind == "mfma" and ("s", "exec") in p.dst: r = max(r, 4)
    if p.kind == "mfma":
        P = p.passes
        if c.kind == "mfma":
            if p.dst & c.srcC:
                if p.dst == c.srcC and p.passes == c.passes: r = max(r, 0)
                else: r = max(r, {4: 6, 8: 10}[P])
            if p.dst & (c.srcA | c.srcB): r = max(r, {4: 8, 8: 12}[P])
            if (p.dst & c.dst) and p.dst != c.srcC: r = max(r, {4: 8, 8: 12}[P])
        elif c.kind in ("valu", "vmem", "ds"):
            if p.dst & (c.src | c.dst): r = max(r, {4: 8, 8: 12}[P])
            if c.kind == "valu" and (p.srcC & c.dst): r = max(r, {4: 3, 8: 7}[P])
            if c.kind in ("vmem", "ds") and (p.srcC & c.dst): r = max(r, {4: 3, 8: 7}[P])
    if p.kind == "vmem" and not p.load and getattr(p, "wide", False):
        if c.kind == "valu" and (p.data & c.dst): r = max(r, 2)
        elif c.kind in ("mfma", "ds", "vmem") and (p.data & c.dst): r = max(r, 2)
    if p.kind == "ds" and not p.load and c.kind in ("valu", "mfma") and p.op in ("ds_write_b128", "ds_write_b96"):
        pass
    if p.kind == "salu" and ("s", "m0") in p.dst:
        if c.kind == "vmem" and getattr(c, "lds", False): r = max(r, 1)
    return r

def desc(name, vgpr, accum, sgpr=102):
    return f""".section .rodata,"a"
.p2align 6
.amdhsa_kernel {name}
  .amdhsa_next_free_vgpr {vgpr}
  .amdhsa_next_free_sgpr {sgpr}
  .amdhsa_accum_offset {accum}
  .amdhsa_group_segment_fixed_size 0
  .amdhsa_kernarg_size 104
  .amdhsa_user_sgpr_count 2
  .amdhsa_user_sgpr_kernarg_segment_ptr 1
  .amdhsa_system_sgpr_workgroup_id_x 1
  .amdhsa_float_denorm_mode_32 3
.end_amdhsa_kernel
"""
def head(name):
    return f""".text
.globl {name}
.p2align 8
.type {name},@function
{name}:
"""
```

```python
import sys, os, struct
from asmdsl import *

NAME = "adaLN_cond__spectral_fnet__dense_activation_relu__prompt"
WS_MOD = 0
WS_SYNC = 0x4000
WS_U   = 0x10000
WS_X2  = WS_U + 0x200000
WS_H2  = WS_X2 + 0x200000
WS_H   = WS_H2 + 0x200000
H_BYTES = 2048 * 1792 * 2
WS_DBG = 0x1000000
STAMPS = bool(int(os.environ.get('STAMPS', '0')))
PLAIN = bool(int(os.environ.get('PLAIN', '0')))
def envint(k, d): return int(os.environ.get(k, d))
W1S = [int(x) for x in os.environ.get('W1S', '4,0,4,4,4,4,4,8').split(',')]
W2S = [int(x) for x in os.environ.get('W2S', '0,0,0,0,0,0,0,4,10').split(',')]
WARM = envint('WARM', 1)
THR = envint('THR', 64)
SC = "sc1"

LDS_S = 131072
XN, RS1 = LDS_S, 192
OUTB, OUTS = LDS_S + 12288, 144
GB_ = LDS_S
YB, YSTRIDE = LDS_S + 8192, 4880
MODL = YB + 4 * YSTRIDE
LDS_TOTAL = 163840
assert MODL + 3072 <= LDS_TOTAL

def fconst(x): return hex(struct.unpack("<I", struct.pack("<f", x))[0])

def srd(K, r, lo, size, add=0):
    if add:
        K(f"s_add_u32 s{r}, s{lo}, {add}")
        K(f"s_addc_u32 s{r+1}, s{lo+1}, 0")
    else:
        K(f"s_mov_b32 s{r}, s{lo}")
        K(f"s_mov_b32 s{r+1}, s{lo+1}")
    K(f"s_mov_b32 s{r+2}, {size}")
    K(f"s_mov_b32 s{r+3}, 0x20000")

def interleave(K, A, B, ratio):
    bi = 0
    for x in A:
        K(x)
        for _ in range(ratio):
            if bi < len(B):
                K(B[bi]); bi += 1
    while bi < len(B):
        K(B[bi]); bi += 1

class Buf:
    def __init__(self): self.L = []
    def __call__(self, text):
        for ln in text.split("\n"):
            ln = ln.strip()
            if ln: self.L.append(ln)

PX, PWS, PW1, PW2, POUT, PDBG, PC, PWM = 4, 6, 8, 10, 12, 14, 16, 18
SW8, SW, SX, SL, SSPIN = 20, 21, 22, 23, 24
R_X, R_U, R_MOD, R_A, R_B, SYNC = 28, 32, 36, 40, 44, 48

def gsync(K, lbl, own_off, nlines, target, poll_addr, mid=None, st_ba=None):
    K("s_barrier")
    if st_ba is not None: K.stamp(st_ba)
    K(f"""
    s_cmp_lg_u32 s{SW8}, 0
    s_cbranch_scc1 {lbl}_A
    {own_off}
    v_mov_b32 v12, 1
    v_mov_b32 v13, s52
    s_mov_b64 exec, 1
    buffer_atomic_add v12, v13, s[{SYNC}:{SYNC+3}], 0 offen
    s_mov_b64 exec, -1
    {lbl}_A:
    """)
    K("; @save")
    if mid is not None: mid()
    K(f"""
    s_cmp_lg_u32 s{SW8}, 0
    s_cbranch_scc1 {lbl}_W
    {poll_addr}
    s_mov_b64 exec, {hex((1 << nlines) - 1)}
    {lbl}_P:
    buffer_load_dword v14, v13, s[{SYNC}:{SYNC+3}], 0 offen sc1
    s_waitcnt vmcnt(0)
    s_sub_u32 s{SSPIN}, s{SSPIN}, 1
    s_cbranch_scc1 {lbl}_X
    v_cmp_gt_u32 vcc, {target}, v14
    s_cbranch_vccnz {lbl}_P
    {lbl}_X:
    s_mov_b64 exec, -1
    {lbl}_W:
    """)
    K("s_barrier")

def unpack8(K, src, dst):
    for p in range(4):
        K(f"v_lshlrev_b32 v{dst+2*p}, 16, v{src+p}")
        K(f"v_and_b32 v{dst+2*p+1}, 0xffff0000, v{src+p}")

def gen():
    kname = f"{NAME}_kernel" if PLAIN else "main_kernel"
    K = Kernel(kname); K.stamps_on = STAMPS
    K.stamp(0, real=True); K.stamp(1)
    K(f"""
    s_load_dwordx2 s[{PX}:{PX+1}], s[0:1], 0
    s_load_dwordx2 s[{PWS}:{PWS+1}], s[0:1], 96
    s_load_dwordx4 s[{PW1}:{PW1+3}], s[0:1], 48
    s_load_dwordx4 s[{PC}:{PC+3}], s[0:1], 64
    s_load_dwordx4 s[{POUT}:{POUT+3}], s[0:1], 80
    s_cmp_ge_u32 s2, 256
    s_cbranch_scc1 L_END
    v_and_b32 v1, 63, v0
    v_lshrrev_b32 v4, 6, v0
    v_readfirstlane_b32 s{SW8}, v4
    s_and_b32 s{SX}, s2, 7
    s_lshr_b32 s{SL}, s2, 3
    s_mov_b32 s{SSPIN}, 400000
    v_lshrrev_b32 v2, 4, v1
    v_and_b32 v3, 15, v1
    s_and_b32 s{SW}, s{SW8}, 3
    s_cmp_ge_u32 s{SW8}, 4
    s_cbranch_scc1 L_HELPER
    """)
    X = 8; CB = 72; T = 88
    K(f"""
    s_and_b32 s54, s2, 31
    s_lshr_b32 s55, s2, 5
    v_lshrrev_b32 v5, 3, v1
    v_and_b32 v6, 7, v1
    s_lshl_b32 s52, s{SW}, 4
    v_add_u32 v7, s52, v5
    v_lshlrev_b32 v4, 15, v7
    v_lshl_add_u32 v4, v6, 4, v4
    s_lshl_b32 s52, s54, 10
    v_add_u32 v4, s52, v4
    v_add_u32 v7, 0x40000, v4
    """)
    for j in range(8):
        K(f"s_add_u32 s{56+j}, s55, {j}")
        K(f"s_and_b32 s{56+j}, s{56+j}, 7")
        K(f"s_lshl_b32 s{56+j}, s{56+j}, 7")
    K("s_waitcnt lgkmcnt(0)")
    srd(K, R_X, PX, 0x200000)
    LD = Buf()
    for j in range(8):
        for u in range(2):
            LD(f"buffer_load_dwordx4 {v(X+(j*2+u)*4,4)}, v{4 if u == 0 else 7}, s[{R_X}:{R_X+3}], s{56+j} offen")
    vo, vsl, vc, vd, vb, vf, vd8, vst = T, T+1, T+2, T+3, T+4, T+5, T+6, T+7
    tt = T+8
    vw, vr, vow, vor = T+16, T+17, T+18, T+19
    C = Buf()
    C(f"""
    s_lshr_b32 s52, s{SW}, 1
    s_lshl_b32 s52, s52, 5
    v_and_b32 v{vo}, 31, v1
    v_add_u32 v{vo}, s52, v{vo}
    v_lshrrev_b32 v{vsl}, 1, v{vo}
    v_and_b32 v{vc}, 1, v{vo}
    v_cvt_f32_u32 v{vd}, v{vsl}
    v_mul_f32 v{vd}, {fconst(1/64)}, v{vd}
    v_mul_u32_u24 v{vb}, s54, v{vsl}
    v_cvt_f32_u32 v{vb}, v{vb}
    v_mul_f32 v{vb}, {fconst(1/2048)}, v{vb}
    v_cvt_f32_u32 v{vf}, v{vc}
    v_fmac_f32 v{vb}, 0.25, v{vf}
    v_cmp_eq_u32 vcc, 1, v{vo}
    v_mov_b32 v{vd8}, 0.5
    v_mov_b32 v{vst}, 0
    v_cndmask_b32 v{vd}, v{vd}, v{vd8}, vcc
    v_cndmask_b32 v{vb}, v{vb}, v{vst}, vcc
    v_lshrrev_b32 v{vf}, 5, v1
    v_cvt_f32_u32 v{vf}, v{vf}
    v_mul_f32 v{vd8}, {fconst(8.0)}, v{vd}
    v_fma_f32 v{vf}, v{vf}, v{vd8}, v{vb}
    """)
    for st in range(4):
        for j in range(8):
            C(f"v_cos_f32 v{tt+j}, v{vf}")
            C(f"v_add_f32 v{vf}, v{vf}, v{vd}")
        C(f"v_add_f32 v{vf}, v{vf}, v{vd8}")
        for p in range(4):
            C(f"v_cvt_pk_bf16_f32 v{CB+st*4+p}, v{tt+2*p}, v{tt+2*p+1}")
    C(f"""
    s_lshl_b32 s52, s{SW}, 4
    v_add_u32 v{vw}, s52, v5
    v_mul_u32_u24 v{vw}, {RS1}, v{vw}
    v_lshl_add_u32 v{vw}, v6, 4, v{vw}
    v_add_u32 v{vw}, {XN}, v{vw}
    v_lshrrev_b32 v{tt}, 5, v1
    v_lshlrev_b32 v{tt}, 3, v{tt}
    v_bfe_u32 v{tt+1}, v1, 2, 2
    v_add_u32 v{tt}, v{tt}, v{tt+1}
    v_mul_u32_u24 v{vr}, {RS1}, v{tt}
    v_bfe_u32 v{tt}, v1, 4, 1
    v_lshlrev_b32 v{tt}, 5, v{tt}
    v_add_u32 v{vr}, v{vr}, v{tt}
    v_and_b32 v{tt}, 3, v1
    v_lshl_add_u32 v{vr}, v{tt}, 3, v{vr}
    s_and_b32 s52, s{SW}, 1
    s_lshl_b32 s52, s52, 6
    s_add_u32 s52, s52, {XN}
    v_add_u32 v{vr}, s52, v{vr}
    v_mul_u32_u24 v{vow}, {OUTS}, v{vo}
    v_lshrrev_b32 v{tt}, 5, v1
    v_lshl_add_u32 v{vow}, v{tt}, 4, v{vow}
    s_and_b32 s52, s{SW}, 1
    s_lshl_b32 s52, s52, 6
    s_add_u32 s52, s52, {OUTB}
    v_add_u32 v{vow}, s52, v{vow}
    s_lshl_b32 s52, s{SW}, 4
    v_add_u32 v{tt}, s52, v5
    v_mul_u32_u24 v{vor}, {OUTS}, v{tt}
    v_lshl_add_u32 v{vor}, v6, 4, v{vor}
    v_add_u32 v{vor}, {OUTB}, v{vor}
    v_lshrrev_b32 v{tt+1}, 1, v{tt}
    v_lshlrev_b32 v{vst}, 6, v{tt+1}
    v_and_b32 v{tt+1}, 1, v{tt}
    v_add_u32 v{vst}, v{vst}, v{tt+1}
    s_lshl_b32 s52, s54, 1
    v_add_u32 v{vst}, s52, v{vst}
    v_lshlrev_b32 v{vst}, 10, v{vst}
    v_lshl_add_u32 v{vst}, v6, 4, v{vst}
    s_lshl_b32 s53, s55, 7
    s_mov_b32 s52, 0x3f803f80
    """)
    interleave(K, LD.L, C.L, 9)
    srd(K, R_U, PWS, 0x200000, WS_U)
    srd(K, SYNC, PWS, 5120, WS_SYNC)
    srd(K, R_MOD, PWS, 12288)
    K.stamp(2)
    S0, Q0, S1_, Q1 = T+20, T+21, T+22, T+23
    acc = [(S0, Q0), (S1_, Q1)]
    for j in range(8):
        K(f"s_waitcnt vmcnt({14-2*j})")
        for c4 in range(4):
            for u in range(2):
                x = X+(j*2+u)*4+c4
                first = (j == 0 and c4 == 0)
                K(f"v_dot2_f32_bf16 v{acc[u][0]}, v{x}, s52, {'0' if first else 'v%d' % acc[u][0]}")
                K(f"v_dot2_f32_bf16 v{acc[u][1]}, v{x}, v{x}, {'0' if first else 'v%d' % acc[u][1]}")
    K.stamp(3)
    N = T+24
    un = Buf()
    for u in range(2):
        for c4 in range(4):
            x = X+u*4+c4
            un(f"v_lshlrev_b32 v{N+u*8+2*c4}, 16, v{x}")
            un(f"v_and_b32 v{N+u*8+2*c4+1}, 0xffff0000, v{x}")
    ui = 0
    for perm in ("quad_perm:[1,0,3,2]", "quad_perm:[2,3,0,1]", "row_half_mirror"):
        for r in (S0, Q0, S1_, Q1):
            K(f"v_add_f32_dpp v{r}, v{r}, v{r} {perm} row_mask:0xf bank_mask:0xf")
        for _ in range(2): K(un.L[ui]); ui += 1
    for u in range(2):
        K(f"v_mul_f32 v{acc[u][0]}, {fconst(1/512)}, v{acc[u][0]}")
        K(f"v_mul_f32 v{acc[u][1]}, {fconst(1/512)}, v{acc[u][1]}")
    for u in range(2): K(f"v_fma_f32 v{acc[u][1]}, -v{acc[u][0]}, v{acc[u][0]}, v{acc[u][1]}")
    for u in range(2): K(f"v_max_f32 v{acc[u][1]}, 0, v{acc[u][1]}")
    for u in range(2): K(f"v_add_f32 v{acc[u][1]}, {fconst(1e-5)}, v{acc[u][1]}")
    for u in range(2): K(f"v_rsq_f32 v{acc[u][1]}, v{acc[u][1]}")
    while ui < len(un.L): K(un.L[ui]); ui += 1
    for u in range(2): K(f"v_mul_f32 v{acc[u][0]}, v{acc[u][0]}, v{acc[u][1]}")
    for u in range(2):
        sm, sq = acc[u]
        for e in range(8):
            K(f"v_fma_f32 v{N+u*8+e}, v{N+u*8+e}, v{sq}, -v{sm}")
        P = X+16+u*4
        for c4 in range(4):
            K(f"v_cvt_pk_bf16_f32 v{P+c4}, v{N+u*8+2*c4}, v{N+u*8+2*c4+1}")
        K(f"ds_write_b128 v{vw}, {v(P,4)} offset:{u*8*RS1}")
    K("s_waitcnt lgkmcnt(0)")
    K.stamp(4)
    K("s_barrier")
    AF = X
    for st in range(4):
        for rd in range(2):
            K(f"ds_read_b64_tr_b16 {v(AF+st*4+rd*2,2)}, v{vr} offset:{(16*st+4*rd)*RS1}")
    ACC = X+32
    for st in range(4):
        K(f"s_waitcnt lgkmcnt({6-2*st})")
        K(f"v_mfma_f32_32x32x16_bf16 {v(ACC,16)}, {v(AF+st*4,4)}, {v(CB+st*4,4)}, {'0' if st==0 else v(ACC,16)}")
    sstore = 53
    K(f"s_mov_b32 s62, s53")
    K(f"""
    s_lshl_b32 s54, s{SX}, 2
    s_and_b32 s55, s{SL}, 3
    s_add_u32 s54, s54, s55
    s_lshr_b32 s55, s{SL}, 2
    s_lshl_b32 s56, s55, 2
    s_add_u32 s56, s56, s{SW}
    s_lshl_b32 s57, s56, 6
    s_cmp_eq_u32 s54, 0
    s_cbranch_scc1 P2_SLOT0
    s_add_u32 s58, s54, s57
    s_sub_u32 s59, 2048, s58
    s_branch P2_TOKD
    P2_SLOT0:
    s_cmp_lt_u32 s56, 16
    s_cbranch_scc1 P2_SLOT0A
    s_sub_u32 s58, s57, {64*16-32}
    s_sub_u32 s59, 2048, s58
    s_branch P2_TOKD
    P2_SLOT0A:
    s_mov_b32 s58, s57
    s_sub_u32 s59, 2048, s57
    s_cmp_eq_u32 s56, 0
    s_cselect_b32 s59, 1024, s59
    P2_TOKD:
    s_lshl_b32 s58, s58, 10
    s_lshl_b32 s59, s59, 10
    s_or_b32 s63, s54, s56
    """)
    PK = X+48
    for q in range(4):
        K(f"v_cvt_pk_bf16_f32 v{PK+2*q}, v{ACC+4*q}, v{ACC+4*q+1}")
        K(f"v_cvt_pk_bf16_f32 v{PK+2*q+1}, v{ACC+4*q+2}, v{ACC+4*q+3}")
    for pr in range(2):
        K(f"v_permlane32_swap_b32 v{PK+4*pr}, v{PK+4*pr+2}")
        K(f"v_permlane32_swap_b32 v{PK+4*pr+1}, v{PK+4*pr+3}")
    for pr in range(2):
        K(f"ds_write_b128 v{vow}, {v(PK+4*pr,4)} offset:{pr*32}")
    K("s_waitcnt lgkmcnt(0)")
    K("s_barrier")
    K(f"ds_read_b128 {v(X,4)}, v{vor}")
    K(f"ds_read_b128 {v(X+4,4)}, v{vor} offset:{8*OUTS}")
    K(f"s_add_u32 s61, s62, {256*1024}")
    K("s_waitcnt lgkmcnt(1)")
    K(f"buffer_store_dwordx4 {v(X,4)}, v{vst}, s[{R_U}:{R_U+3}], s62 offen {SC}")
    K("s_waitcnt lgkmcnt(0)")
    K(f"buffer_store_dwordx4 {v(X+4,4)}, v{vst}, s[{R_U}:{R_U+3}], s61 offen {SC}")
    RAW, FR, K1F, XA, XB, MSH = 16, 80, 144, 152, 156, 160
    AS, CC, CS, CN, TWC, TWS, MM, MP, SA = 184, 192, 200, 208, 216, 224, 232, 236, 240
    K(f"v_lshlrev_b32 v6, 4, v1")
    K(f"buffer_load_dwordx4 {v(XA,4)}, v6, s[{R_X}:{R_X+3}], s58 offen")
    K(f"buffer_load_dwordx4 {v(XB,4)}, v6, s[{R_X}:{R_X+3}], s59 offen")
    K.stamp(5)
    GW, GR, YW, YN, YM, YS, HW, HR = 248, 249, 250, 251, 252, 253, 254, 255
    def p2_consts():
        f, p0, p1, a0, a1 = 8, 9, 10, 11, 15
        K(f"""
        v_lshrrev_b32 v16, 1, v3
        v_and_b32 v17, 1, v3
        s_lshl_b32 s52, s55, 2
        v_add_u32 v16, s52, v16
        v_cvt_f32_u32 v18, v17
        v_mul_f32 v18, 0.25, v18
        v_cvt_f32_u32 v{f}, v16
        v_mov_b32 v{a0}, 1.0
        v_mov_b32 v{a1}, 1.0
        s_cmp_eq_u32 s54, 0
        s_cbranch_scc1 P2_C0
        v_mul_f32 v{f}, {fconst(1/32)}, v{f}
        v_mov_b32 v{p0}, v18
        v_add_f32 v{p1}, {fconst(-0.25)}, v18
        s_branch P2_CD
        P2_C0:
        s_cmp_lt_u32 s55, 4
        s_cbranch_scc0 P2_C0B
        v_mul_f32 v{f}, {fconst(1/32)}, v{f}
        v_mov_b32 v{p0}, v18
        v_mov_b32 v{p1}, 0
        v_mov_b32 v{a1}, 0
        v_cmp_eq_u32 vcc, 0, v16
        v_add_f32 v18, v18, v18
        v_cndmask_b32 v{f}, v{f}, v18, vcc
        v_mov_b32 v18, 0
        v_cndmask_b32 v{p0}, v{p0}, v18, vcc
        s_branch P2_CD
        P2_C0B:
        v_add_f32 v{f}, v{f}, v{f}
        v_add_f32 v{f}, {fconst(-31.0)}, v{f}
        v_mul_f32 v{f}, {fconst(1/64)}, v{f}
        v_mov_b32 v{p0}, 0
        v_mov_b32 v{p1}, v18
        v_mov_b32 v{a0}, 0
        P2_CD:
        v_cmp_gt_u32 vcc, 8, v3
        v_mov_b32 v18, 0
        v_cndmask_b32 v{a0}, v18, v{a0}, vcc
        v_cndmask_b32 v{a1}, v18, v{a1}, vcc
        v_lshlrev_b32 v16, 2, v2
        v_cvt_f32_u32 v16, v16
        v_mul_f32 v16, v16, v{f}
        """)
        for st in range(2):
            for jj in range(4):
                t = 20 + 2*(jj % 2)
                K(f"v_add_f32 v{t}, v16, v{p0}")
                K(f"v_add_f32 v{t+1}, v16, v{p1}")
                K(f"v_cos_f32 v{t}, v{t}")
                K(f"v_cos_f32 v{t+1}, v{t+1}")
                K(f"v_add_f32 v16, v16, v{f}")
                K(f"v_mul_f32 v{t}, v{t}, v{a0}")
                K(f"v_mul_f32 v{t+1}, v{t+1}, v{a1}")
                K(f"v_cvt_pk_bf16_f32 v{AS+st*4+jj}, v{t}, v{t+1}")
            if st == 0:
                K(f"v_mul_f32 v17, {fconst(12.0)}, v{f}")
                K(f"v_add_f32 v16, v16, v17")
        K(f"""
        v_cvt_f32_u32 v8, v3
        v_mul_f32 v8, {fconst(1/32)}, v8
        v_lshlrev_b32 v9, 3, v2
        v_cvt_f32_u32 v9, v9
        v_mul_f32 v9, v9, v8
        """)
        for p in range(4):
            K(f"v_add_f32 v10, v9, v8")
            K(f"v_cos_f32 v16, v9")
            K(f"v_cos_f32 v17, v10")
            K(f"v_sin_f32 v18, v9")
            K(f"v_sin_f32 v19, v10")
            K(f"v_add_f32 v9, v10, v8")
            K(f"v_cvt_pk_bf16_f32 v{CC+p}, v16, v17")
            K(f"v_cvt_pk_bf16_f32 v{CS+p}, v18, v19")
        for p in range(4):
            K(f"v_xor_b32 v{CC+4+p}, 0x80000000, v{CC+p}")
            K(f"v_xor_b32 v{CS+4+p}, 0x80000000, v{CS+p}")
            K(f"v_xor_b32 v{CN+p}, 0x80008000, v{CS+p}")
            K(f"v_xor_b32 v{CN+4+p}, 0x00008000, v{CS+p}")
        K(f"v_lshlrev_b32 v8, 2, v2")
        for tau in range(2):
            K(f"v_add_u32 v9, {16*tau}, v3")
            for r in range(4):
                K(f"v_add_u32 v{16+r}, {r}, v8")
            for r in range(4):
                K(f"v_mul_u32_u24 v{16+r}, v{16+r}, v9")
            for r in range(4):
                K(f"v_cvt_f32_u32 v{16+r}, v{16+r}")
            for r in range(4):
                K(f"v_mul_f32 v{16+r}, {fconst(1/512)}, v{16+r}")
            for r in range(4):
                K(f"v_cos_f32 v{TWC+tau*4+r}, v{16+r}")
                K(f"v_sin_f32 v{TWS+tau*4+r}, v{16+r}")
        for jj in range(4): K(f"v_add_u32 v{16+jj}, {jj}, v8")
        for jj in range(4): K(f"v_mul_u32_u24 v{16+jj}, v{16+jj}, v3")
        for jj in range(4): K(f"v_cvt_f32_u32 v{16+jj}, v{16+jj}")
        for jj in range(4): K(f"v_mul_f32 v{16+jj}, {fconst(1/16)}, v{16+jj}")
        for jj in range(4):
            K(f"v_cos_f32 v{20+jj}, v{16+jj}")
            K(f"v_sin_f32 v{24+jj}, v{16+jj}")
        for p in range(2):
            K(f"v_cvt_pk_bf16_f32 v{MM+p}, v{20+2*p}, v{21+2*p}")
            K(f"v_cvt_pk_bf16_f32 v{MM+2+p}, v{24+2*p}, v{25+2*p}")
        for p in range(2):
            K(f"v_xor_b32 v{MP+p}, 0x80008000, v{MM+2+p}")
            K(f"v_mov_b32 v{MP+2+p}, v{MM+p}")
        K(f"""
        v_lshlrev_b32 v{GW}, 12, v2
        v_lshl_add_u32 v{GW}, v3, 4, v{GW}
        s_lshl_b32 s52, s{SW}, 8
        s_add_u32 s52, s52, {GB_}
        v_add_u32 v{GW}, s52, v{GW}
        v_lshlrev_b32 v8, 3, v2
        v_bfe_u32 v9, v1, 2, 2
        v_add_u32 v8, v8, v9
        v_lshlrev_b32 v{GR}, 5, v8
        v_and_b32 v9, 3, v1
        v_lshl_add_u32 v{GR}, v9, 3, v{GR}
        s_lshl_b32 s52, s{SW}, 11
        s_add_u32 s52, s52, {GB_}
        v_add_u32 v{GR}, s52, v{GR}
        s_mul_i32 s52, s{SW}, {YSTRIDE}
        s_add_u32 s52, s52, {YB}
        v_mul_u32_u24 v{YW}, 144, v3
        v_lshl_add_u32 v{YW}, v2, 4, v{YW}
        v_add_u32 v{YW}, s52, v{YW}
        v_lshrrev_b32 v8, 2, v1
        v_lshlrev_b32 v8, 4, v8
        v_lshl_add_u32 v{YN}, v1, 5, v8
        v_add_u32 v{YN}, s52, v{YN}
        v_sub_u32 v8, 63, v1
        v_lshrrev_b32 v9, 2, v8
        v_lshlrev_b32 v9, 4, v9
        v_lshl_add_u32 v{YM}, v8, 5, v9
        v_add_u32 v{YM}, s52, v{YM}
        v_sub_u32 v8, 64, v1
        v_and_b32 v8, 63, v8
        v_lshrrev_b32 v9, 2, v8
        v_lshlrev_b32 v9, 4, v9
        v_lshl_add_u32 v{YS}, v8, 5, v9
        v_add_u32 v{YS}, s52, v{YS}
        v_add_u32 v{HW}, s52, v6
        v_and_b32 v8, 7, v1
        v_lshrrev_b32 v9, 1, v8
        v_mul_u32_u24 v{HR}, {YSTRIDE}, v9
        v_and_b32 v9, 1, v8
        v_mul_u32_u24 v9, 1088, v9
        v_add_u32 v{HR}, v{HR}, v9
        v_lshrrev_b32 v9, 3, v1
        v_lshl_add_u32 v{HR}, v9, 4, v{HR}
        s_lshr_b32 s52, s{SW}, 1
        s_mul_i32 s52, s52, 2176
        s_and_b32 s53, s{SW}, 1
        s_lshl_b32 s53, s53, 9
        s_add_u32 s52, s52, s53
        s_add_u32 s52, s52, {YB}
        v_add_u32 v{HR}, s52, v{HR}
        s_lshl_b32 s52, s54, 16
        v_lshlrev_b32 v4, 13, v2
        v_lshl_add_u32 v4, v3, 4, v4
        s_lshl_b32 s53, s{SW}, 8
        s_add_u32 s52, s52, s53
        v_add_u32 v4, s52, v4
        v_lshlrev_b32 v5, 5, v3
        s_lshl_b32 s53, s{SW}, 9
        v_add_u32 v5, s53, v5
        v_lshlrev_b32 v7, 5, v1
        s_movk_i32 s60, 0x1000
        s_mov_b32 s61, 0x8000
        s_mov_b32 s62, 0x9000
        s_add_u32 s57, s{SW}, 2
        s_lshl_b32 s57, s57, 11
        """)
    K("s_waitcnt vmcnt(0)")
    K.stamp(6)
    gsync(K, "S1", f"s_lshl_b32 s52, s{SX}, 7", 8, 32, "v_lshlrev_b32 v13, 7, v1", mid=p2_consts)
    K.stamp(7)
    for st in range(2):
        for j in range(8):
            so = ["0", "s60", "s61", "s62"][st*2 + j//4]
            K(f"buffer_load_dwordx4 {v(RAW+st*32+j*4,4)}, v4, s[{R_U}:{R_U+3}], {so} offen offset:{(j%4)*1024} {SC}")
            if st == 0 and j == 3:
                K(f"buffer_load_dwordx4 {v(K1F,4)}, v5, s[{R_MOD}:{R_MOD+3}], 0 offen offset:2048 {SC}")
                K(f"buffer_load_dwordx4 {v(K1F+4,4)}, v5, s[{R_MOD}:{R_MOD+3}], 0 offen offset:2064 {SC}")
    K(f"buffer_load_dwordx4 {v(MSH,4)}, v7, s[{R_MOD}:{R_MOD+3}], s57 offen {SC}")
    K(f"buffer_load_dwordx4 {v(MSH+4,4)}, v7, s[{R_MOD}:{R_MOD+3}], s57 offen offset:16 {SC}")
    K(f"s_mov_b32 s52, 0x05040100")
    K(f"s_mov_b32 s53, 0x07060302")
    K.stamp(8)
    def rowfft(GRf, GIf, outR, outI, have_imag):
        TR, TI, TP, W2 = 96, 104, 112, 120
        for tau in range(2):
            K(f"v_mfma_f32_16x16x32_bf16 {v(TR+tau*4,4)}, {v(GRf,4)}, {v(CC+tau*4,4)}, 0")
            K(f"v_mfma_f32_16x16x32_bf16 {v(TI+tau*4,4)}, {v(GRf,4)}, {v(CN+tau*4,4)}, 0")
        if have_imag:
            for tau in range(2):
                K(f"v_mfma_f32_16x16x32_bf16 {v(TR+tau*4,4)}, {v(GIf,4)}, {v(CS+tau*4,4)}, {v(TR+tau*4,4)}")
                K(f"v_mfma_f32_16x16x32_bf16 {v(TI+tau*4,4)}, {v(GIf,4)}, {v(CC+tau*4,4)}, {v(TI+tau*4,4)}")
        for tau in range(2):
            for r in range(4):
                i = tau*4+r
                K(f"v_mul_f32 v{W2+i}, v{TR+i}, v{TWC+i}")
                K(f"v_mul_f32 v{W2+8+i}, v{TI+i}, v{TWC+i}")
            for r in range(4):
                i = tau*4+r
                K(f"v_fma_f32 v{W2+i}, v{TI+i}, v{TWS+i}, v{W2+i}")
                K(f"v_fma_f32 v{W2+8+i}, -v{TR+i}, v{TWS+i}, v{W2+8+i}")
            K(f"v_cvt_pk_bf16_f32 v{TP+tau*4+0}, v{W2+tau*4+0}, v{W2+tau*4+1}")
            K(f"v_cvt_pk_bf16_f32 v{TP+tau*4+1}, v{W2+tau*4+2}, v{W2+tau*4+3}")
            K(f"v_cvt_pk_bf16_f32 v{TP+tau*4+2}, v{W2+8+tau*4+0}, v{W2+8+tau*4+1}")
            K(f"v_cvt_pk_bf16_f32 v{TP+tau*4+3}, v{W2+8+tau*4+2}, v{W2+8+tau*4+3}")
        for tau in range(2):
            K(f"v_mfma_f32_16x16x32_bf16 {v(outR+tau*4,4)}, {v(TP+tau*4,4)}, {v(MM,4)}, 0")
        if outI is not None:
            for tau in range(2):
                K(f"v_mfma_f32_16x16x32_bf16 {v(outI+tau*4,4)}, {v(TP+tau*4,4)}, {v(MP,4)}, 0")
    K("; @save")
    K(f"""
    s_cmp_lg_u32 s63, 0
    s_cbranch_scc1 P2_NOSA
    buffer_load_dwordx4 {v(128,4)}, v7, s[{R_MOD}:{R_MOD+3}], 0 offen {SC}
    buffer_load_dwordx4 {v(132,4)}, v7, s[{R_MOD}:{R_MOD+3}], 0 offen offset:16 {SC}
    s_waitcnt vmcnt(0)
    """)
    for p in range(4): K(f"v_cvt_pk_bf16_f32 v{136+p}, v{128+2*p}, v{129+2*p}")
    unpack8(K, 136, 128)
    for e in range(8): K(f"v_mul_f32 v{128+e}, {fconst(2048.0)}, v{128+e}")
    for p in range(4): K(f"v_cvt_pk_bf16_f32 v{136+p}, v{128+2*p}, v{129+2*p}")
    K(f"""
    ds_write_b128 v{HW}, {v(136,4)}
    v_add_u32 v8, {YB - GB_}, v{GR}
    s_waitcnt lgkmcnt(0)
    ds_read_b64_tr_b16 {v(140,2)}, v8
    ds_read_b64_tr_b16 {v(142,2)}, v8 offset:128
    s_waitcnt lgkmcnt(0)
    """)
    rowfft(140, None, SA, None, False)
    K("P2_NOSA:")
    K("; @restore")
    K(f"s_waitcnt vmcnt(10)")
    K.stamp(9)
    KP = 168
    for p in range(4): K(f"v_cvt_pk_bf16_f32 v{KP+p}, v{K1F+2*p}, v{K1F+2*p+1}")
    def perms(st):
        for i in range(8):
            for p in range(4):
                c4, hb = i//2, i%2
                K(f"v_perm_b32 v{FR+st*32+i*4+p}, v{RAW+st*32+(2*p+1)*4+c4}, v{RAW+st*32+(2*p)*4+c4}, s{52+hb}")
    perms(0)
    unpack8(K, KP, K1F)
    for e in range(8): K(f"v_add_f32 v{K1F+e}, 1.0, v{K1F+e}")
    ACC = 172
    ACC = RAW
    for i in range(8):
        K(f"v_mfma_f32_16x16x32_bf16 {v(ACC+i*4,4)}, {v(AS,4)}, {v(FR+i*4,4)}, 0")
        if i < 4: K(f"v_cvt_pk_bf16_f32 v{KP+i}, v{K1F+2*i}, v{K1F+2*i+1}")
    K(f"s_waitcnt vmcnt(2)")
    perms(1)
    unpack8(K, KP, K1F)
    for i in range(8):
        K(f"v_mfma_f32_16x16x32_bf16 {v(ACC+i*4,4)}, {v(AS+4,4)}, {v(FR+32+i*4,4)}, {v(ACC+i*4,4)}")
    K(f"s_waitcnt vmcnt(0)")
    for p in range(4): K(f"v_cvt_pk_bf16_f32 v{KP+p}, v{MSH+2*p}, v{MSH+2*p+1}")
    K("; @save")
    K(f"""
    s_cmp_lg_u32 s{SW}, 2
    s_cbranch_scc1 P2_NOK2
    """)
    unpack8(K, KP, MSH)
    for e in range(8): K(f"v_add_f32 v{MSH+e}, 1.0, v{MSH+e}")
    for p in range(4): K(f"v_cvt_pk_bf16_f32 v{KP+p}, v{MSH+2*p}, v{MSH+2*p+1}")
    K("P2_NOK2:")
    K("; @restore")
    K(f"""
    s_lshl_b32 s57, s{SW}, 10
    s_add_u32 s57, s57, {MODL}
    v_add_u32 v8, s57, v6
    s_cmp_eq_u32 s{SW}, 3
    s_cbranch_scc1 P2_NOMW
    ds_write_b128 v8, {v(KP,4)}
    P2_NOMW:
    """)
    GP = RAW+32
    K("s_mov_b32 exec_hi, 0")
    for r in range(4):
        for i in range(8):
            K(f"v_mul_f32 v{ACC+i*4+r}, v{ACC+i*4+r}, v{K1F+i}")
        for p in range(4):
            K(f"v_cvt_pk_bf16_f32 v{GP+r*4+p}, v{ACC+(2*p)*4+r}, v{ACC+(2*p+1)*4+r}")
        K(f"ds_write_b128 v{GW}, {v(GP+r*4,4)} offset:{r*1024}")
    K("s_mov_b64 exec, -1")
    K("s_waitcnt lgkmcnt(0)")
    K("s_barrier")
    K.stamp(10)
    GRf, GIf = 80, 84
    GAP, SBP, K2P = 160, 164, 168
    K(f"""
    ds_read_b64_tr_b16 {v(GRf,2)}, v{GR}
    ds_read_b64_tr_b16 {v(GRf+2,2)}, v{GR} offset:128
    ds_read_b64_tr_b16 {v(GIf,2)}, v{GR} offset:1024
    ds_read_b64_tr_b16 {v(GIf+2,2)}, v{GR} offset:1152
    v_add_u32 v8, {MODL}, v6
    ds_read_b128 {v(GAP,4)}, v8
    ds_read_b128 {v(SBP,4)}, v8 offset:1024
    ds_read_b128 {v(K2P,4)}, v8 offset:2048
    """)
    XF = [88, 32]
    for side, xr in enumerate((XA, XB)): unpack8(K, xr, XF[side])
    K("s_waitcnt lgkmcnt(3)")
    YR, YI = 16, 24
    rowfft(GRf, GIf, YR, YI, True)
    GA, K2R, SB = 144, 176, 136
    K("s_waitcnt lgkmcnt(0)")
    NA, BL, YA_, YB2 = 40, 48, 64, 72
    A2 = 2432
    K("; @save")
    K(f"""
    s_cmp_lg_u32 s63, 0
    s_cbranch_scc1 P2_REG
    """)
    unpack8(K, GAP, GA)
    for e in range(8):
        K(f"v_add_f32 v{YR+e}, v{YR+e}, v{SA+e}")
    for tau in range(2):
        K(f"ds_write_b128 v{YW}, {v(YR+tau*4,4)} offset:{tau*64}")
        K(f"ds_write_b128 v{YW}, {v(YI+tau*4,4)} offset:{A2+tau*64}")
    K("s_waitcnt lgkmcnt(0)")
    for (off, dst) in ((0, YA_), (A2, YB2)):
        K(f"ds_read_b128 {v(NA,4)}, v{YN} offset:{off}")
        K(f"ds_read_b128 {v(NA+4,4)}, v{YN} offset:{off+16}")
        K(f"ds_read_b128 {v(BL,4)}, v{YM} offset:{off}")
        K(f"ds_read_b128 {v(BL+4,4)}, v{YM} offset:{off+16}")
        K(f"ds_read_b32 v{BL+8}, v{YS} offset:{off}")
        K("s_waitcnt lgkmcnt(0)")
        for i in range(8):
            src = BL+8 if i == 0 else BL+8-i
            K(f"v_add_f32 v{dst+i}, v{NA+i}, v{src}")
        for i in range(8):
            K(f"v_mul_f32 v{dst+i}, 0.5, v{dst+i}")
    for i in range(8):
        K(f"v_fma_f32 v{XF[1]+i}, v{GA+i}, v{YB2+i}, v{XF[1]+i}")
    unpack8(K, K2P, K2R); unpack8(K, SBP, SB)
    K("s_branch P2_EPI")
    K("P2_REG:")
    K("; @restore")
    for tau in range(2):
        K(f"ds_write_b128 v{YW}, {v(YR+tau*4,4)} offset:{tau*64}")
    unpack8(K, GAP, GA)
    K("s_waitcnt lgkmcnt(0)")
    K(f"ds_read_b128 {v(YA_,4)}, v{YN}")
    K(f"ds_read_b128 {v(YA_+4,4)}, v{YN} offset:16")
    K(f"ds_read_b128 {v(BL,4)}, v{YM}")
    K(f"ds_read_b128 {v(BL+4,4)}, v{YM} offset:16")
    K(f"ds_read_b32 v{BL+8}, v{YS}")
    unpack8(K, K2P, K2R); unpack8(K, SBP, SB)
    K("s_waitcnt lgkmcnt(0)")
    for i in range(8):
        src = BL+8 if i == 0 else BL+8-i
        K(f"v_fma_f32 v{XF[1]+i}, v{GA+i}, v{src}, v{XF[1]+i}")
    K("P2_EPI:")
    for i in range(8):
        K(f"v_fma_f32 v{XF[0]+i}, v{GA+i}, v{YA_+i}, v{XF[0]+i}")
    X2P = [80, 84]
    for side in range(2):
        for c4 in range(4):
            K(f"v_cvt_pk_bf16_f32 v{X2P[side]+c4}, v{XF[side]+2*c4}, v{XF[side]+2*c4+1}")
    K("s_mov_b32 s52, 0x3f803f80")
    ST = [104, 105, 106, 107]
    for c4 in range(4):
        for side in range(2):
            x = X2P[side]+c4
            K(f"v_dot2_f32_bf16 v{ST[2*side]}, v{x}, s52, {'0' if c4==0 else 'v%d'%ST[2*side]}")
            K(f"v_dot2_f32_bf16 v{ST[2*side+1]}, v{x}, v{x}, {'0' if c4==0 else 'v%d'%ST[2*side+1]}")
    K(f"ds_write_b128 v{HW}, {v(X2P[0],4)}")
    K(f"ds_write_b128 v{HW}, {v(X2P[1],4)} offset:1088")
    steps = ("quad_perm:[1,0,3,2]", "quad_perm:[2,3,0,1]", "row_half_mirror", "row_mirror")
    for si, perm in enumerate(steps):
        for r in ST:
            K(f"v_add_f32_dpp v{r}, v{r}, v{r} {perm} row_mask:0xf bank_mask:0xf")
        side, half = si // 2, si % 2
        for c4 in range(2*half, 2*half+2):
            K(f"v_lshlrev_b32 v{XF[side]+2*c4}, 16, v{X2P[side]+c4}")
            K(f"v_and_b32 v{XF[side]+2*c4+1}, 0xffff0000, v{X2P[side]+c4}")
    for swap in ("v_permlane16_swap_b32", "v_permlane32_swap_b32"):
        for i, r in enumerate(ST): K(f"v_mov_b32 v{108+i}, v{r}")
        for i, r in enumerate(ST): K(f"{swap} v{r}, v{108+i}")
        for i, r in enumerate(ST): K(f"v_add_f32 v{r}, v{r}, v{108+i}")
    for side in range(2):
        K(f"v_mul_f32 v{ST[2*side]}, {fconst(1/512)}, v{ST[2*side]}")
        K(f"v_mul_f32 v{ST[2*side+1]}, {fconst(1/512)}, v{ST[2*side+1]}")
    for side in range(2): K(f"v_fma_f32 v{ST[2*side+1]}, -v{ST[2*side]}, v{ST[2*side]}, v{ST[2*side+1]}")
    for side in range(2): K(f"v_max_f32 v{ST[2*side+1]}, 0, v{ST[2*side+1]}")
    for side in range(2): K(f"v_add_f32 v{ST[2*side+1]}, {fconst(1e-5)}, v{ST[2*side+1]}")
    for side in range(2): K(f"v_rsq_f32 v{ST[2*side+1]}, v{ST[2*side+1]}")
    HP = [112, 116]
    for side in range(2):
        for e in range(8):
            K(f"v_sub_f32 v{XF[side]+e}, v{XF[side]+e}, v{ST[2*side]}")
    for side in range(2):
        for e in range(8):
            K(f"v_mul_f32 v{XF[side]+e}, v{XF[side]+e}, v{ST[2*side+1]}")
        for e in range(8):
            K(f"v_fma_f32 v{XF[side]+e}, v{XF[side]+e}, v{K2R+e}, v{SB+e}")
        for c4 in range(4):
            K(f"v_cvt_pk_bf16_f32 v{HP[side]+c4}, v{XF[side]+2*c4}, v{XF[side]+2*c4+1}")
        K(f"ds_write_b128 v{HW}, {v(HP[side],4)} offset:{2176+1088*side}")
    srd(K, R_A, PWS, 0x400000, WS_X2)
    K(f"""
    v_lshrrev_b32 v8, 3, v1
    v_lshlrev_b32 v8, 8, v8
    v_and_b32 v9, 7, v1
    v_lshl_add_u32 v8, v9, 4, v8
    s_lshl_b32 s52, s54, 2
    s_lshr_b32 s53, s55, 1
    s_add_u32 s52, s52, s53
    s_lshl_b32 s52, s52, 14
    s_and_b32 s53, s55, 1
    s_lshl_b32 s53, s53, 7
    s_add_u32 s52, s52, s53
    s_and_b32 s53, s{SW}, 1
    s_lshl_b32 s53, s53, 13
    s_add_u32 s52, s52, s53
    s_lshr_b32 s53, s{SW}, 1
    s_lshl_b32 s53, s53, 21
    s_add_u32 s52, s52, s53
    s_add_u32 s53, s52, 4096
    s_waitcnt lgkmcnt(0)
    """)
    K("s_barrier")
    for i in range(4):
        K(f"ds_read_b128 {v(16+4*i,4)}, v{HR} offset:{i*128}")
    for i in range(4):
        K(f"s_waitcnt lgkmcnt({3-i})")
        K(f"buffer_store_dwordx4 {v(16+4*i,4)}, v8, s[{R_A}:{R_A+3}], s{52 + i//2} offen offset:{(i%2)*2048} {SC}")
    K.stamp(11)
    K(f"""
    s_bfe_u32 s54, s{SL}, 0x10001
    s_lshl_b32 s55, s{SX}, 1
    s_add_u32 s54, s54, s55
    s_and_b32 s55, s{SL}, 1
    s_lshr_b32 s52, s{SL}, 2
    s_lshl_b32 s52, s52, 1
    s_add_u32 s55, s55, s52
    s_lshl_b32 s56, s54, 3
    s_lshl_b32 s52, s{SW}, 1
    s_add_u32 s56, s56, s52
    s_lshl_b32 s57, s56, 14
    s_add_u32 s58, s57, 16384
    """)
    RA = 248
    def p3_setup():
        K(f"""
        v_lshlrev_b32 v7, 4, v1
        v_bfe_u32 v4, v1, 2, 2
        v_and_b32 v6, 1, v2
        v_lshl_add_u32 v6, v6, 2, v4
        v_lshlrev_b32 v6, 1, v6
        v_lshl_add_u32 v4, v2, 3, v4
        v_lshlrev_b32 v4, 8, v4
        v_bfe_u32 v8, v1, 1, 1
        v_lshl_add_u32 v4, v8, 4, v4
        v_and_b32 v8, 1, v1
        v_lshl_add_u32 v4, v8, 3, v4
        """)
        for tau in range(7):
            K(f"v_xor_b32 v8, {2*tau}, v6")
            K(f"v_lshl_add_u32 v{RA+tau}, v8, 4, v4")
        srd(K, R_U, PWS, 0x200000, WS_H2)
        srd(K, R_B, PWS, H_BYTES, WS_H)
    K("s_waitcnt vmcnt(0)")
    gsync(K, "S2", f"s_lshl_b32 s52, s54, 7\n s_add_u32 s52, s52, 1024", 1, 16,
          f"s_lshl_b32 s52, s54, 7\n s_add_u32 s52, s52, 1024\n v_mov_b32 v13, s52", mid=p3_setup)
    K.stamp(12)
    ACT, AF, ACC = 64, 192, 8
    def issue3(ks):
        out = []
        for u in range(2):
            out.append(f"buffer_load_dwordx4 {v(ACT+(ks*2+u)*4,4)}, v7, s[{R_U}:{R_U+3}], s{57+u} offen offset:{(ks%4)*1024} {SC}")
        if ks % 4 == 3:
            out[-1] += f"\n s_add_u32 s57, s57, 4096\n s_add_u32 s58, s58, 4096"
        return out
    PRE3 = envint('PRE3', 6)
    for ks in range(PRE3):
        for x in issue3(ks): K(x)
    def read3(ks, tau, rd):
        buf = ks % 2
        o = (ks % 8) * 8192
        return f"ds_read_b64_tr_b16 {v(AF+buf*28+tau*4+rd*2,2)}, v{RA+tau} offset:{o+rd*1024}"
    for tau in range(7):
        for rd in range(2): K(read3(0, tau, rd))
    issued = PRE3
    for ks in range(16):
        pend = []
        if issued < 16:
            pend = issue3(issued); issued += 1
        nout_before = (issued - 1 - ks) * 2 - len(pend)
        K(f"s_waitcnt vmcnt({max(0, nout_before)})")
        if ks == 0: K.stamp(13)
        buf = ks % 2
        for tau in range(7):
            K(f"s_waitcnt lgkmcnt({12 if ks < 15 else 12-2*tau})")
            for u in range(2):
                d = ACC+(u*7+tau)*4
                K(f"v_mfma_f32_16x16x32_bf16 {v(d,4)}, {v(AF+buf*28+tau*4,4)}, {v(ACT+(ks*2+u)*4,4)}, {'0' if ks==0 else v(d,4)}")
                if ks < 15:
                    if ks == 7 and u == 0: K(f"v_add_u32 v{RA+tau}, 0x10000, v{RA+tau}")
                    K(read3(ks+1, tau, u))
            if pend and tau in (2, 5): K(pend.pop(0))
    K("s_barrier")
    K.stamp(14)
    PKR = 64
    K(f"""
    v_and_b32 v4, 1, v2
    v_lshlrev_b32 v4, 9, v4
    v_lshrrev_b32 v5, 1, v2
    v_lshl_add_u32 v4, v5, 8, v4
    v_lshl_add_u32 v4, v3, 4, v4
    s_and_b32 s60, s55, 1
    v_lshlrev_b32 v6, 8, v5
    v_lshl_add_u32 v6, v3, 4, v6
    v_and_b32 v5, 1, v2
    v_mul_u32_u24 v5, 57344, v5
    v_add_u32 v6, v6, v5
    s_mul_i32 s52, s55, 7
    s_add_u32 s57, s52, s60
    s_lshr_b32 s57, s57, 1
    s_lshl_b32 s57, s57, 10
    s_mul_i32 s53, s56, 57344
    s_add_u32 s57, s57, s53
    s_add_u32 s58, s57, 57344
    s_lshr_b32 s59, s52, 1
    s_cmp_eq_u32 s60, 0
    s_cselect_b32 s61, 3, 0
    s_add_u32 s59, s59, s61
    s_lshl_b32 s59, s59, 10
    s_add_u32 s59, s59, s53
    s_lshl_b32 s60, s60, 9
    s_add_u32 s59, s59, s60
    """)
    for u in range(2):
        for tau in range(7):
            d = ACC+(u*7+tau)*4
            for r in range(4):
                K(f"v_max_f32 v{d+r}, 0, v{d+r}")
            b = PKR+(u*3+tau//2)*4+(tau%2)*2 if tau < 6 else PKR+24+u*2
            K(f"v_cvt_pk_bf16_f32 v{b}, v{d}, v{d+1}")
            K(f"v_cvt_pk_bf16_f32 v{b+1}, v{d+2}, v{d+3}")
            if tau % 2 == 1:
                b = PKR+(u*3+tau//2)*4
                K(f"v_permlane16_swap_b32 v{b}, v{b+2}")
                K(f"v_permlane16_swap_b32 v{b+1}, v{b+3}")
                K(f"buffer_store_dwordx4 {v(b,4)}, v4, s[{R_B}:{R_B+3}], s{57+u} offen offset:{(tau//2)*1024} {SC}")
    b = PKR+24
    K(f"v_permlane16_swap_b32 v{b}, v{b+2}")
    K(f"v_permlane16_swap_b32 v{b+1}, v{b+3}")
    K(f"buffer_store_dwordx4 {v(b,4)}, v6, s[{R_B}:{R_B+3}], s59 offen {SC}")
    K.stamp(15)
    K(f"""
    s_and_b32 s56, s55, 1
    s_lshl_b32 s56, s56, 2
    s_lshl_b32 s52, s54, 3
    s_add_u32 s56, s56, s52
    s_lshr_b32 s55, s55, 1
    """)
    NSLOT, SLOT = 10, 4096
    ACC4, AF4, RING, NR = 8, 72, 104, 8
    RA4 = 232
    def p4_setup():
        K(f"""
        v_lshlrev_b32 v7, 4, v1
        s_mul_i32 s57, s56, 57344
        s_mul_i32 s52, s{SW}, {14*1024}
        s_add_u32 s57, s57, s52
        s_add_u32 s58, s57, 57344
        s_add_u32 s59, s58, 57344
        s_add_u32 s60, s59, 57344
        v_lshrrev_b32 v4, 3, v1
        v_and_b32 v5, 7, v1
        v_bfe_u32 v6, v1, 4, 1
        v_lshlrev_b32 v6, 1, v6
        v_xor_b32 v8, v5, v6
        v_xor_b32 v9, 4, v8
        v_lshlrev_b32 v4, 10, v4
        s_lshl_b32 s52, s55, 7
        v_add_u32 v4, s52, v4
        v_lshl_add_u32 v5, v8, 4, v4
        v_lshl_add_u32 v6, v9, 4, v4
        s_mul_i32 s61, s{SW}, {448*1024}
        s_add_u32 s61, s61, {10*32*1024}
        s_mul_i32 s62, s{SW}, {NSLOT*SLOT}
        v_bfe_u32 v9, v1, 2, 2
        v_bfe_u32 v10, v1, 3, 1
        v_and_b32 v11, 1, v2
        v_lshl_add_u32 v10, v11, 1, v10
        v_lshlrev_b32 v10, 1, v10
        v_lshl_add_u32 v9, v2, 3, v9
        v_lshlrev_b32 v9, 7, v9
        v_bfe_u32 v11, v1, 1, 1
        v_lshl_add_u32 v9, v11, 4, v9
        v_and_b32 v11, 1, v1
        v_lshl_add_u32 v9, v11, 3, v9
        v_add_u32 v9, s62, v9
        """)
        for tau in range(4):
            K(f"v_xor_b32 v11, {2*tau}, v10")
            K(f"v_lshl_add_u32 v{RA4+tau}, v11, 4, v9")
        srd(K, R_X, PW2, 1792*1024)
        srd(K, R_A, PWS, 0x200000, WS_X2)
        K(f"""
        v_and_b32 v9, 1, v2
        v_lshlrev_b32 v9, 1, v9
        v_lshrrev_b32 v10, 1, v2
        v_add_u32 v9, v9, v10
        v_lshlrev_b32 v248, 8, v9
        v_lshl_add_u32 v248, v3, 4, v248
        v_lshlrev_b32 v249, 4, v9
        """)
    K("s_waitcnt vmcnt(0)")
    gsync(K, "S3", f"s_lshl_b32 s52, s54, 7\n s_add_u32 s52, s52, 3072", 1, 16,
          f"s_lshl_b32 s52, s54, 7\n s_add_u32 s52, s52, 3072\n v_mov_b32 v13, s52", mid=p4_setup)
    K.stamp(16)
    def act(ks, u): return v(RING+((ks % NR)*4+u)*4, 4)
    def issue4(ks):
        out = []
        for u in range(4):
            out.append(f"buffer_load_dwordx4 {act(ks,u)}, v7, s[{R_B}:{R_B+3}], s{57+u} offen offset:{(ks%4)*1024} {SC}")
        if ks % 4 == 3:
            out[-1] += "".join(f"\n s_add_u32 s{57+u}, s{57+u}, 4096" for u in range(4))
        return out
    def read4(ks, tau, rd):
        buf = ks % 2
        o = (ks % NSLOT) * SLOT
        return f"ds_read_b64_tr_b16 {v(AF4+buf*16+tau*4+rd*2,2)}, v{RA4+tau} offset:{o+rd*512}"
    def dma4(ks):
        slot = ks % NSLOT
        out = []
        for m in range(4):
            out.append(f"s_add_u32 m0, s62, {slot*SLOT + m*1024}\n buffer_load_dwordx4 v{5 + (m&1)}, s[{R_X}:{R_X+3}], s61 offen lds\n s_add_u32 s61, s61, 8192")
        return out
    ops = []
    for ks in range(NR):
        for x in issue4(ks): K(x); ops.append(("act", ks))
    for tau in range(4):
        for rd in range(2): K(read4(0, tau, rd))
    pend = []
    for ks in range(14):
        need = lambda o: (o == ("act", ks)) or (o == ("dma", ks+1))
        idx = max(i for i, o in enumerate(ops) if need(o))
        K(f"s_waitcnt vmcnt({min(63, len(ops)-1-idx)})")
        if ks == 0: K.stamp(17)
        buf = ks % 2
        for tau in range(4):
            K(f"s_waitcnt lgkmcnt({6 if ks < 13 else 6-2*tau})")
            for u in range(4):
                d = ACC4+(u*4+tau)*4
                K(f"v_mfma_f32_16x16x32_bf16 {v(d,4)}, {v(AF4+buf*16+tau*4,4)}, {act(ks,u)}, {'0' if ks==0 else v(d,4)}")
                if ks < 13 and u < 2: K(read4(ks+1, tau, u))
                elif pend:
                    kind, kk, text = pend.pop(0); K(text); ops.append((kind, kk))
        while pend:
            kind, kk, text = pend.pop(0); K(text); ops.append((kind, kk))
        if ks + NSLOT < 14: pend += [("dma", ks+NSLOT, t) for t in dma4(ks+NSLOT)]
        if ks + NR < 14: pend += [("act", ks+NR, t) for t in issue4(ks+NR)]
        if ks == 7:
            K(f"""
            s_add_u32 s52, s56, s{SW}
            s_lshl_b32 s52, s52, 14
            s_lshl_b32 s53, s55, 11
            s_add_u32 s52, s52, s53
            """)
            K(f"buffer_load_dwordx4 {v(240,4)}, v248, s[{R_A}:{R_A+3}], s52 offen {SC}"); ops.append(("epi", 0))
            K(f"buffer_load_dwordx4 {v(244,4)}, v248, s[{R_A}:{R_A+3}], s52 offen offset:1024 {SC}"); ops.append(("epi", 0))
    K("s_barrier")
    K(f"""
    v_lshlrev_b32 v106, 1, v249
    s_lshl_b32 s53, s55, 8
    s_add_u32 s53, s53, {5*2048}
    """)
    GBF = 208
    for pr in range(2):
        K(f"buffer_load_dwordx4 {v(GBF+pr*8,4)}, v106, s[{R_MOD}:{R_MOD+3}], s53 offen offset:{pr*128} {SC}")
        K(f"buffer_load_dwordx4 {v(GBF+pr*8+4,4)}, v106, s[{R_MOD}:{R_MOD+3}], s53 offen offset:{pr*128+16} {SC}")
    K(f"""
    v_lshlrev_b32 v104, 4, v1
    s_lshl_b32 s52, s{SW}, 12
    v_add_u32 v105, s52, v104
    """)
    for u in range(4):
        for tau in range(4):
            K(f"ds_write_b128 v105, {v(ACC4+(u*4+tau)*4,4)} offset:{u*16384+tau*1024}")
    K("s_waitcnt lgkmcnt(0)")
    K("s_barrier")
    K(f"""
    s_lshl_b32 s52, s{SW}, 14
    v_add_u32 v105, s52, v104
    """)
    RD = 136
    for tau in range(4):
        for src in range(4):
            K(f"ds_read_b128 {v(RD+(src*4+tau)*4,4)}, v105 offset:{src*4096+tau*1024}")
    K(f"""
    s_add_u32 s52, s56, s{SW}
    s_lshl_b32 s52, s52, 4
    v_add_u32 v109, s52, v3
    v_lshrrev_b32 v40, 6, v109
    v_bfe_u32 v41, v109, 1, 5
    v_and_b32 v42, 1, v109
    v_lshlrev_b32 v43, 6, v41
    v_add_u32 v44, v40, v43
    v_cmp_eq_u32 vcc, 0, v40
    v_subrev_u32 v45, {64*16-32}, v43
    v_cmp_lt_u32 s[52:53], 15, v41
    v_cndmask_b32 v45, v43, v45, s[52:53]
    v_cndmask_b32 v44, v44, v45, vcc
    v_sub_u32 v45, 2048, v44
    v_lshrrev_b32 v46, 1, v109
    v_cmp_eq_u32 vcc, 0, v46
    v_mov_b32 v47, 1024
    v_cndmask_b32 v45, v45, v47, vcc
    v_cmp_eq_u32 vcc, 1, v42
    v_cndmask_b32 v44, v44, v45, vcc
    v_lshlrev_b32 v44, 10, v44
    v_add_u32 v44, v44, v249
    s_lshl_b32 s52, s55, 7
    """)
    srd(K, R_X, POUT, 0x200000)
    K("s_waitcnt vmcnt(0)")
    GBP = 48
    for pr in range(2):
        for p in range(4): K(f"v_cvt_pk_bf16_f32 v{GBP+pr*4+p}, v{GBF+pr*8+2*p}, v{GBF+pr*8+2*p+1}")
    XF4, GF4 = 8, 24
    XRs = [240, 244]
    for pr in range(2):
        unpack8(K, XRs[pr], XF4+pr*8)
        unpack8(K, GBP+pr*4, GF4+pr*8)
    for tau in range(4):
        K(f"s_waitcnt lgkmcnt({12-4*tau})")
        for r in range(4):
            x = RD+tau*4+r
            K(f"v_add_f32 v{x}, v{x}, v{RD+(4+tau)*4+r}")
            K(f"v_add_f32 v{RD+(8+tau)*4+r}, v{RD+(8+tau)*4+r}, v{RD+(12+tau)*4+r}")
        for r in range(4):
            x = RD+tau*4+r
            K(f"v_add_f32 v{x}, v{x}, v{RD+(8+tau)*4+r}")
    for pr in range(2):
        A_, B_ = RD+(2*pr)*4, RD+(2*pr+1)*4
        for r in range(4):
            K(f"v_permlane16_swap_b32 v{A_+r}, v{B_+r}")
        for e in range(8):
            K(f"v_fma_f32 v{XF4+pr*8+e}, v{GF4+pr*8+e}, v{A_+e}, v{XF4+pr*8+e}")
        for c in range(4):
            K(f"v_cvt_pk_bf16_f32 v{56+pr*4+c}, v{XF4+pr*8+2*c}, v{XF4+pr*8+2*c+1}")
        K(f"buffer_store_dwordx4 {v(56+pr*4,4)}, v44, s[{R_X}:{R_X+3}], s52 offen offset:{pr*64}")
    if STAMPS:
        K("s_waitcnt vmcnt(0)")
        K("s_memtime s[100:101]")
        K("s_memrealtime s[62:63]")
        K("s_waitcnt lgkmcnt(0)")
        K("s_mov_b32 s65, s62")
        dump(K)
    K("s_endpgm")

    K("L_HELPER:")
    K.reset_state()
    K("s_waitcnt lgkmcnt(0)")
    K(f"v_lshlrev_b32 v7, 4, v1")
    K("v_mov_b32 v60, 0")
    K("v_mov_b32 v61, 0")
    K("; @save")
    K(f"""
    s_or_b32 s52, s2, s{SW}
    s_cmp_lg_u32 s52, 0
    s_cbranch_scc1 H_NOINIT
    """)
    srd(K, R_A, PWS, 0x6000)
    srd(K, R_B, PDBG, 256)
    K(f"""
    v_mov_b32 v12, 0
    v_mov_b32 v13, 0
    v_mov_b32 v14, 0
    v_mov_b32 v15, 0
    s_movk_i32 s52, 0x4000
    """)
    for i in range(5):
        K(f"buffer_store_dwordx4 v[12:15], v7, s[{R_A}:{R_A+3}], s52 offen sc1")
        K(f"s_add_u32 s52, s52, 1024")
    K("s_mov_b32 s52, 0")
    for i in range(12):
        K(f"buffer_store_dwordx4 v[12:15], v7, s[{R_A}:{R_A+3}], s52 offen sc1")
        K(f"s_add_u32 s52, s52, 1024")
    K(f"""
    s_waitcnt vmcnt(0)
    v_mov_b32 v12, 1
    s_mov_b64 exec, 1
    buffer_store_dword v12, v13, s[{R_B}:{R_B+3}], 0 offen sc1
    s_mov_b64 exec, -1
    H_NOINIT:
    """)
    K("; @restore")
    W, CV, AC, T = 16, 32, 40, 48
    K("; @save")
    K(f"""
    s_cmp_ge_u32 s2, 192
    s_cbranch_scc1 H_NOMOD
    s_mul_i32 s52, s2, 1366
    s_lshr_b32 s52, s52, 16
    s_mul_i32 s53, s52, 48
    s_sub_u32 s53, s2, s53
    """)
    srd(K, R_A, PC, 1024)
    srd(K, R_B, PWM, 512*6144)
    K(f"""
    v_lshrrev_b32 v8, 3, v1
    v_and_b32 v9, 7, v1
    s_lshl_b32 s54, s52, 7
    s_lshl_b32 s55, s{SW}, 5
    s_add_u32 s54, s54, s55
    v_add_u32 v10, s54, v8
    v_mul_u32_u24 v11, 6144, v10
    v_lshl_add_u32 v11, v9, 4, v11
    s_lshl_b32 s59, s53, 7
    v_lshlrev_b32 v10, 1, v10
    """)
    for it in range(4):
        K(f"buffer_load_ushort v{CV+it}, v10, s[{R_A}:{R_A+3}], 0 offen offset:{it*16}")
    for it in range(4):
        K(f"buffer_load_dwordx4 {v(W+it*4,4)}, v11, s[{R_B}:{R_B+3}], s59 offen")
        if it < 3: K(f"s_add_u32 s59, s59, {8*6144}")
    K("s_waitcnt vmcnt(4)")
    for it in range(4): K(f"v_lshlrev_b32 v{CV+it}, 16, v{CV+it}")
    for it in range(4): K(f"v_mul_f32 v{T+it}, {fconst(-1.4426950408889634)}, v{CV+it}")
    for it in range(4): K(f"v_exp_f32 v{T+it}, v{T+it}")
    for it in range(4): K(f"v_add_f32 v{T+it}, 1.0, v{T+it}")
    for it in range(4): K(f"v_rcp_f32 v{T+it}, v{T+it}")
    for it in range(4): K(f"v_mul_f32 v{T+it}, v{CV+it}, v{T+it}")
    for it in range(4): K(f"v_cvt_pk_bf16_f32 v{CV+it}, v{T+it}, 0")
    for it in range(4): K(f"v_lshlrev_b32 v{CV+4+it}, 16, v{CV+it}")
    for it in range(4):
        K(f"s_waitcnt vmcnt({3-it})")
        for c4 in range(4):
            K(f"v_dot2_f32_bf16 v{AC+2*c4}, v{W+it*4+c4}, v{CV+it}, {'0' if it==0 else 'v%d'%(AC+2*c4)}")
            K(f"v_dot2_f32_bf16 v{AC+2*c4+1}, v{W+it*4+c4}, v{CV+4+it}, {'0' if it==0 else 'v%d'%(AC+2*c4+1)}")
    for e in range(8):
        K(f"v_add_f32_dpp v{AC+e}, v{AC+e}, v{AC+e} row_ror:8 row_mask:0xf bank_mask:0xf")
    for swap in ("v_permlane16_swap_b32", "v_permlane32_swap_b32"):
        for e in range(8): K(f"v_mov_b32 v{T+e}, v{AC+e}")
        for e in range(8): K(f"{swap} v{AC+e}, v{T+e}")
        for e in range(8): K(f"v_add_f32 v{AC+e}, v{AC+e}, v{T+e}")
    K(f"v_mov_b32 v60, v{AC}")
    for e in range(1, 8):
        K(f"v_cmp_eq_u32 vcc, {e}, v8")
        K(f"v_cndmask_b32 v60, v60, v{AC+e}, vcc")
    K(f"""
    v_lshlrev_b32 v61, 3, v9
    v_add_u32 v61, v61, v8
    v_lshlrev_b32 v61, 2, v61
    s_lshl_b32 s52, s53, 8
    v_add_u32 v61, s52, v61
    H_NOMOD:
    """)
    K("; @restore")
    K(f"""
    s_and_b32 s55, s{SL}, 1
    s_lshr_b32 s52, s{SL}, 2
    s_lshl_b32 s52, s52, 1
    s_add_u32 s55, s55, s52
    s_lshr_b32 s52, s{SW}, 1
    s_lshl_b32 s52, s52, 3
    v_lshl_add_u32 v4, v2, 1, s52
    v_xor_b32 v4, v4, v3
    s_and_b32 s52, s55, 1
    s_lshl_b32 s52, s52, 1
    v_add_u32 v6, s52, v4
    v_subrev_u32 v12, 14, v6
    v_cmp_le_u32 vcc, 14, v6
    v_cndmask_b32 v6, v6, v12, vcc
    v_mul_u32_u24 v5, 3584, v2
    v_lshl_add_u32 v5, v6, 4, v5
    s_mul_i32 s52, s55, 224
    v_add_u32 v5, s52, v5
    v_cmp_gt_u32 vcc, 14, v4
    v_mov_b32 v6, 0x40000000
    v_cndmask_b32 v5, v6, v5, vcc
    s_mul_i32 s56, s{SW}, {4*3584}
    s_lshl_b32 s57, s{SW}, 10
    s_mul_i32 s58, s{SL}, 57344
    s_mul_i32 s52, s{SW}, 14336
    s_add_u32 s58, s58, s52
    """)
    srd(K, R_X, PW1, 512*3584)
    srd(K, R_U, PW2, 1792*1024)
    state = dict(w1=0, w2=0, out=0)
    def throttle():
        if state['out'] >= THR:
            K(f"s_waitcnt vmcnt({THR-1})"); state['out'] = THR-1
    def w1dma(n):
        for _ in range(n):
            throttle()
            K(f"s_mov_b32 m0, s57")
            K(f"buffer_load_dwordx4 v5, s[{R_X}:{R_X+3}], s56 offen lds")
            K(f"s_add_u32 s56, s56, {16*3584}")
            K(f"s_add_u32 s57, s57, 4096")
            state['w1'] += 1; state['out'] += 1
    def w2pf(n):
        for _ in range(n):
            throttle()
            K(f"buffer_load_dwordx4 v[8:11], v7, s[{R_U}:{R_U+3}], s58 offen")
            K(f"s_add_u32 s58, s58, 1024")
            state['w2'] += 1; state['out'] += 1
    def seg(i):
        if i < len(W1S): w1dma(W1S[i])
        if i < len(W2S): w2pf(W2S[i])
    if WARM:
        K(f"""
        s_and_b32 s52, s2, 127
        s_mul_i32 s52, s52, 14336
        s_lshl_b32 s53, s{SW}, 12
        s_add_u32 s52, s52, s53
        s_cmp_ge_u32 s2, 128
        s_cbranch_scc1 H_WARM2
        """)
        for i in range(4): K(f"buffer_load_dwordx4 v[8:11], v7, s[{R_X}:{R_X+3}], s52 offen offset:{i*1024}")
        K("s_branch H_WARMD")
        K("H_WARM2:")
        K("; @save")
        for i in range(4): K(f"buffer_load_dwordx4 v[8:11], v7, s[{R_U}:{R_U+3}], s52 offen offset:{i*1024}")
        K("; @restore")
        K("H_WARMD:")
        state['out'] += 4
    seg(0)
    K.stamp(2)
    K("s_barrier")
    K("; @save")
    K(f"""
    s_cmp_lg_u32 s{SW}, 1
    s_cbranch_scc1 H_NOPOLL
    """)
    srd(K, R_A, PDBG, 256)
    K(f"""
    v_mov_b32 v13, 0
    H_POLL:
    buffer_load_dword v12, v13, s[{R_A}:{R_A+3}], 0 offen sc1
    s_waitcnt vmcnt(0)
    v_readfirstlane_b32 s52, v12
    s_sub_u32 s{SSPIN}, s{SSPIN}, 1
    s_cbranch_scc1 H_NOPOLL
    s_cmp_eq_u32 s52, 0
    s_cbranch_scc1 H_POLL
    H_NOPOLL:
    """)
    K("; @restore")
    seg(1)
    K.stamp(4)
    K("s_barrier")
    K("; @save")
    K(f"""
    s_cmp_ge_u32 s2, 192
    s_cbranch_scc1 H_NOAT
    """)
    srd(K, R_A, PWS, 12288)
    K(f"""
    buffer_atomic_add_f32 v60, v61, s[{R_A}:{R_A+3}], 0 offen
    s_waitcnt vmcnt(0)
    H_NOAT:
    """)
    K("; @restore")
    seg(2)
    K.stamp(6)
    K("s_barrier")
    seg(3)
    K("s_barrier")
    K.stamp(7)
    seg(4)
    K("s_barrier")
    K.stamp(10)
    seg(5)
    K("s_barrier")
    K.stamp(11)
    seg(6)
    K("s_barrier")
    w1dma(W1S[7] if len(W1S) > 7 else 0)
    assert state['w1'] == 32, state
    K(f"s_waitcnt vmcnt(0)"); state['out'] = 0
    w2pf(W2S[7])
    K("s_barrier")
    K.stamp(12)
    w2pf(W2S[8])
    assert state['w2'] == 14, state
    K(f"""
    s_lshr_b32 s55, s55, 1
    v_lshrrev_b32 v4, 3, v1
    v_and_b32 v5, 7, v1
    v_bfe_u32 v6, v1, 4, 1
    v_lshlrev_b32 v6, 1, v6
    v_xor_b32 v12, v5, v6
    v_xor_b32 v13, 4, v12
    v_lshlrev_b32 v4, 10, v4
    s_lshl_b32 s52, s55, 7
    v_add_u32 v4, s52, v4
    v_lshl_add_u32 v5, v12, 4, v4
    v_lshl_add_u32 v6, v13, 4, v4
    s_mul_i32 s61, s{SW}, {448*1024}
    s_mul_i32 s62, s{SW}, {10*4096}
    """)
    K.stamp(13)
    K("s_barrier")
    K.stamp(14)
    THR2 = envint('THR2', 8)
    out = state['out']
    for i in range(40):
        if out >= THR2:
            K(f"s_waitcnt vmcnt({THR2-1})"); out = THR2-1
        if i == envint('RING_BA', 12):
            K("s_barrier")
        K(f"s_mov_b32 m0, s62")
        K(f"buffer_load_dwordx4 v{5 + (i&1)}, s[{R_U}:{R_U+3}], s61 offen lds")
        K(f"s_add_u32 s61, s61, 8192")
        K(f"s_add_u32 s62, s62, 1024")
        out += 1
    K("s_waitcnt vmcnt(0)")
    K.stamp(15)
    K("s_barrier")
    K.stamp(16)
    K("s_barrier")
    K("s_barrier")
    if STAMPS:
        K("s_memtime s[100:101]")
        K("s_memrealtime s[62:63]")
        K("s_waitcnt lgkmcnt(0)")
        K("s_mov_b32 s65, s62")
        dump(K)
    K("L_END:")
    K("s_endpgm")
    return K

def dump(K):
    n = 19
    K("s_waitcnt vmcnt(0) lgkmcnt(0)")
    K(f"s_add_u32 s52, s{PWS}, {WS_DBG}")
    K(f"s_addc_u32 s53, s{PWS+1}, 0")
    K("s_mov_b32 s54, 0x1000000")
    K("s_mov_b32 s55, 0x20000")
    for i in range(n):
        K(f"v_writelane_b32 v250, s{64+2*i}, {i}")
    K(f"v_writelane_b32 v250, s65, 20")
    K(f"v_and_b32 v251, 63, v0")
    K(f"v_lshlrev_b32 v251, 2, v251")
    K(f"s_lshl_b32 s56, s2, 3")
    K(f"s_add_u32 s56, s56, s{SW8}")
    K(f"s_lshl_b32 s56, s56, 8")
    K(f"buffer_store_dword v250, v251, s[52:55], s56 offen")
    K("s_waitcnt vmcnt(0)")

if __name__ == "__main__":
    K = gen()
    txt = "; adaLN + FNet (FFT factorised, MFMA) + ReLU FFN, one persistent launch\n"
    if PLAIN: txt += f"; @launch grid=(256,1,1) block=(512,1,1) lds={LDS_TOTAL}\n"
    else: txt += f"; @launch kernel=main_kernel grid=(256,1,1) block=(512,1,1) lds={LDS_TOTAL}\n"
    txt += '.amdgcn_target "amdgcn-amd-amdhsa--gfx950"\n'
    txt += head(K.name) + K.finalize() + desc(K.name, 256, 256)
    out = sys.argv[1] if len(sys.argv) > 1 else f"cdna_kernels/{NAME}.s"
    open(out, "w").write(txt)
    print("wrote", out, len(txt))
```

```python
import sys, os, struct
from asmdsl import *

NAME = "adaLN_cond__spectral_fnet__dense_activation_relu__prompt"
WS_MOD = 0
WS_SYNC = 0x4000
WS_U   = 0x10000
WS_X2  = WS_U + 0x200000
WS_H2  = WS_X2 + 0x200000
WS_H   = WS_H2 + 0x200000
H_BYTES = 2048 * 1792 * 2
WS_DBG = 0x1000000
STAMPS = bool(int(os.environ.get('STAMPS', '0')))
PLAIN = bool(int(os.environ.get('PLAIN', '0')))
def envint(k, d): return int(os.environ.get(k, d))
W1S = [int(x) for x in os.environ.get('W1S', '4,0,4,4,4,4,4,8').split(',')]
W2S = [int(x) for x in os.environ.get('W2S', '0,0,0,0,0,0,0,4,10').split(',')]
WARM = envint('WARM', 0)
THR = envint('THR', 3)
SC = "sc1"

LDS_S = 131072
XN, RS1 = LDS_S, 192
OUTB, OUTS = LDS_S + 12288, 144
GB_ = LDS_S
YB, YSTRIDE = LDS_S + 8192, 4880
MODL = YB + 4 * YSTRIDE
LDS_TOTAL = 163840
assert MODL + 3072 <= LDS_TOTAL

NSLOT_ = 9
def fconst(x): return hex(struct.unpack("<I", struct.pack("<f", x))[0])

def srd(K, r, lo, size, add=0):
    if add:
        K(f"s_add_u32 s{r}, s{lo}, {add}")
        K(f"s_addc_u32 s{r+1}, s{lo+1}, 0")
    else:
        K(f"s_mov_b32 s{r}, s{lo}")
        K(f"s_mov_b32 s{r+1}, s{lo+1}")
    K(f"s_mov_b32 s{r+2}, {size}")
    K(f"s_mov_b32 s{r+3}, 0x20000")

def interleave(K, A, B, ratio):
    bi = 0
    for x in A:
        K(x)
        for _ in range(ratio):
            if bi < len(B):
                K(B[bi]); bi += 1
    while bi < len(B):
        K(B[bi]); bi += 1

class Buf:
    def __init__(self): self.L = []
    def __call__(self, text):
        for ln in text.split("\n"):
            ln = ln.strip()
            if ln: self.L.append(ln)

PX, PWS, PW1, PW2, POUT, PDBG, PC, PWM = 4, 6, 8, 10, 12, 14, 16, 18
SW8, SW, SX, SL, SSPIN = 20, 21, 22, 23, 24
R_X, R_U, R_MOD, R_A, R_B, SYNC = 28, 32, 36, 40, 44, 48

def gsync(K, lbl, own_off, nlines, target, cnt_addr, is_leader, rel_addr, nrel, my_rel, w_arr, n_arr, w_rel, mid=None):
    K(f"""
    v_mov_b32 v12, {LSY}
    v_mov_b32 v13, 1
    s_mov_b64 exec, 1
    ds_add_rtn_u32 v14, v12, v13 offset:{4*w_arr}
    s_waitcnt lgkmcnt(0)
    v_readfirstlane_b32 s27, v14
    s_cmp_lg_u32 s27, {n_arr-1}
    s_cbranch_scc1 {lbl}_A
    {own_off}
    v_mov_b32 v14, s52
    buffer_atomic_add v13, v14, s[{SYNC}:{SYNC+3}], 0 offen
    {lbl}_A:
    s_mov_b64 exec, -1
    """)
    K("; @save")
    if mid is not None: mid()
    K(f"""
    s_cmp_lg_u32 s{SW8}, 0
    s_cbranch_scc1 {lbl}_W
    {is_leader}
    s_cbranch_scc0 {lbl}_O
    {cnt_addr}
    s_mov_b64 exec, {hex((1 << nlines) - 1)}
    {lbl}_P:
    buffer_load_dword v14, v13, s[{SYNC}:{SYNC+3}], 0 offen sc1
    s_waitcnt vmcnt(0)
    s_sub_u32 s{SSPIN}, s{SSPIN}, 1
    s_cbranch_scc1 {lbl}_R
    v_cmp_gt_u32 vcc, {target}, v14
    s_cbranch_vccnz {lbl}_P
    {lbl}_R:
    s_mov_b64 exec, {hex((1 << nrel) - 1)}
    {rel_addr}
    v_mov_b32 v14, 1
    buffer_store_dword v14, v13, s[{SYNC}:{SYNC+3}], 0 offen sc1
    s_branch {lbl}_X
    {lbl}_O:
    {my_rel}
    s_mov_b64 exec, 1
    {lbl}_Q:
    buffer_load_dword v14, v13, s[{SYNC}:{SYNC+3}], 0 offen sc1
    s_waitcnt vmcnt(0)
    v_readfirstlane_b32 s27, v14
    s_sub_u32 s{SSPIN}, s{SSPIN}, 1
    s_cbranch_scc1 {lbl}_X
    s_cmp_eq_u32 s27, 0
    s_cbranch_scc1 {lbl}_Q
    {lbl}_X:
    s_mov_b64 exec, 1
    v_mov_b32 v12, {LSY}
    v_mov_b32 v13, 1
    ds_write_b32 v12, v13 offset:{4*w_rel}
    s_mov_b64 exec, -1
    s_branch {lbl}_D
    {lbl}_W:
    v_mov_b32 v12, {LSY}
    """)
    lwait(K, w_rel, 1, 12, 14, st=27)
    K(f"{lbl}_D:")

SYNC_BYTES = 88 * 128

LSY = MODL + 3072
VSY, VONE, VTMP = 244, 245, 246
_lcnt = [0]
def lsy_regs(K, a, o):
    K(f"v_mov_b32 v{a}, {LSY}")
    K(f"v_mov_b32 v{o}, 1")
def larrive(K, word, a, o):
    K(f"""
    s_mov_b64 exec, 1
    ds_add_u32 v{a}, v{o} offset:{4*word}
    s_mov_b64 exec, -1
    """)
def lwait(K, word, n, a, t, st=53):
    _lcnt[0] += 1
    L = f"LW{_lcnt[0]}"
    K(f"""
    {L}:
    ds_read_b32 v{t}, v{a} offset:{4*word}
    s_waitcnt lgkmcnt(0)
    v_readfirstlane_b32 s{st}, v{t}
    s_cmp_lt_u32 s{st}, {n}
    s_cbranch_scc1 {L}
    """)
def lsync(K, word, a=12, o=13, t=14):
    lsy_regs(K, a, o)
    larrive(K, word, a, o)
    lwait(K, word, 4, a, t, st=27)

def unpack8(K, src, dst):
    for p in range(4):
        K(f"v_lshlrev_b32 v{dst+2*p}, 16, v{src+p}")
        K(f"v_and_b32 v{dst+2*p+1}, 0xffff0000, v{src+p}")

def gen():
    kname = f"{NAME}_kernel" if PLAIN else "main_kernel"
    K = Kernel(kname); K.stamps_on = STAMPS
    K.stamp(0, real=True); K.stamp(1)
    K(f"""
    s_load_dwordx2 s[{PX}:{PX+1}], s[0:1], 0
    s_load_dwordx2 s[{PWS}:{PWS+1}], s[0:1], 96
    s_load_dwordx4 s[{PW1}:{PW1+3}], s[0:1], 48
    s_load_dwordx4 s[{PC}:{PC+3}], s[0:1], 64
    s_load_dwordx4 s[{POUT}:{POUT+3}], s[0:1], 80
    s_cmp_ge_u32 s2, 256
    s_cbranch_scc1 L_END
    v_and_b32 v1, 63, v0
    v_lshrrev_b32 v4, 6, v0
    v_readfirstlane_b32 s{SW8}, v4
    s_and_b32 s{SX}, s2, 7
    s_lshr_b32 s{SL}, s2, 3
    s_mov_b32 s{SSPIN}, 400000
    v_lshrrev_b32 v2, 4, v1
    v_and_b32 v3, 15, v1
    s_and_b32 s{SW}, s{SW8}, 3
    v_lshlrev_b32 v4, 2, v1
    v_add_u32 v4, {LSY}, v4
    v_mov_b32 v5, 0
    s_mov_b64 exec, 0xffff
    ds_write_b32 v4, v5
    s_mov_b64 exec, -1
    s_waitcnt lgkmcnt(0)
    s_barrier
    s_cmp_ge_u32 s{SW8}, 4
    s_cbranch_scc1 L_HELPER
    """)
    X = 8; CB = 72; T = 88
    K(f"""
    s_and_b32 s54, s2, 31
    s_lshr_b32 s55, s2, 5
    v_lshrrev_b32 v5, 3, v1
    v_and_b32 v6, 7, v1
    s_lshl_b32 s52, s{SW}, 4
    v_add_u32 v7, s52, v5
    v_lshlrev_b32 v4, 15, v7
    v_lshl_add_u32 v4, v6, 4, v4
    s_lshl_b32 s52, s54, 10
    v_add_u32 v4, s52, v4
    v_add_u32 v7, 0x40000, v4
    """)
    for j in range(8):
        K(f"s_add_u32 s{56+j}, s55, {j}")
        K(f"s_and_b32 s{56+j}, s{56+j}, 7")
        K(f"s_lshl_b32 s{56+j}, s{56+j}, 7")
    K("s_waitcnt lgkmcnt(0)")
    srd(K, R_X, PX, 0x200000)
    LD = Buf()
    for j in range(8):
        for u in range(2):
            LD(f"buffer_load_dwordx4 {v(X+(j*2+u)*4,4)}, v{4 if u == 0 else 7}, s[{R_X}:{R_X+3}], s{56+j} offen{' nt' if envint('XNT',0) else ''}")
    vo, vsl, vc, vd, vb, vf, vd8, vst = T, T+1, T+2, T+3, T+4, T+5, T+6, T+7
    tt = T+8
    vw, vr, vow, vor = T+16, T+17, T+18, T+19
    C = Buf()
    C(f"""
    s_lshr_b32 s52, s{SW}, 1
    s_lshl_b32 s52, s52, 5
    v_and_b32 v{vo}, 31, v1
    v_add_u32 v{vo}, s52, v{vo}
    v_lshrrev_b32 v{vsl}, 1, v{vo}
    v_and_b32 v{vc}, 1, v{vo}
    v_cvt_f32_u32 v{vd}, v{vsl}
    v_mul_f32 v{vd}, {fconst(1/64)}, v{vd}
    v_mul_u32_u24 v{vb}, s54, v{vsl}
    v_cvt_f32_u32 v{vb}, v{vb}
    v_mul_f32 v{vb}, {fconst(1/2048)}, v{vb}
    v_cvt_f32_u32 v{vf}, v{vc}
    v_fmac_f32 v{vb}, 0.25, v{vf}
    v_cmp_eq_u32 vcc, 1, v{vo}
    v_mov_b32 v{vd8}, 0.5
    v_mov_b32 v{vst}, 0
    v_cndmask_b32 v{vd}, v{vd}, v{vd8}, vcc
    v_cndmask_b32 v{vb}, v{vb}, v{vst}, vcc
    v_lshrrev_b32 v{vf}, 5, v1
    v_cvt_f32_u32 v{vf}, v{vf}
    v_mul_f32 v{vd8}, {fconst(8.0)}, v{vd}
    v_fma_f32 v{vf}, v{vf}, v{vd8}, v{vb}
    """)
    for st in range(4):
        for j in range(8):
            C(f"v_cos_f32 v{tt+j}, v{vf}")
            C(f"v_add_f32 v{vf}, v{vf}, v{vd}")
        C(f"v_add_f32 v{vf}, v{vf}, v{vd8}")
        for p in range(4):
            C(f"v_cvt_pk_bf16_f32 v{CB+st*4+p}, v{tt+2*p}, v{tt+2*p+1}")
    C(f"""
    s_lshl_b32 s52, s{SW}, 4
    v_add_u32 v{vw}, s52, v5
    v_mul_u32_u24 v{vw}, {RS1}, v{vw}
    v_lshl_add_u32 v{vw}, v6, 4, v{vw}
    v_add_u32 v{vw}, {XN}, v{vw}
    v_lshrrev_b32 v{tt}, 5, v1
    v_lshlrev_b32 v{tt}, 3, v{tt}
    v_bfe_u32 v{tt+1}, v1, 2, 2
    v_add_u32 v{tt}, v{tt}, v{tt+1}
    v_mul_u32_u24 v{vr}, {RS1}, v{tt}
    v_bfe_u32 v{tt}, v1, 4, 1
    v_lshlrev_b32 v{tt}, 5, v{tt}
    v_add_u32 v{vr}, v{vr}, v{tt}
    v_and_b32 v{tt}, 3, v1
    v_lshl_add_u32 v{vr}, v{tt}, 3, v{vr}
    s_and_b32 s52, s{SW}, 1
    s_lshl_b32 s52, s52, 6
    s_add_u32 s52, s52, {XN}
    v_add_u32 v{vr}, s52, v{vr}
    v_mul_u32_u24 v{vow}, {OUTS}, v{vo}
    v_lshrrev_b32 v{tt}, 5, v1
    v_lshl_add_u32 v{vow}, v{tt}, 4, v{vow}
    s_and_b32 s52, s{SW}, 1
    s_lshl_b32 s52, s52, 6
    s_add_u32 s52, s52, {OUTB}
    v_add_u32 v{vow}, s52, v{vow}
    s_lshl_b32 s52, s{SW}, 4
    v_add_u32 v{tt}, s52, v5
    v_mul_u32_u24 v{vor}, {OUTS}, v{tt}
    v_lshl_add_u32 v{vor}, v6, 4, v{vor}
    v_add_u32 v{vor}, {OUTB}, v{vor}
    v_lshrrev_b32 v{tt+1}, 1, v{tt}
    v_lshlrev_b32 v{vst}, 6, v{tt+1}
    v_and_b32 v{tt+1}, 1, v{tt}
    v_add_u32 v{vst}, v{vst}, v{tt+1}
    s_lshl_b32 s52, s54, 1
    v_add_u32 v{vst}, s52, v{vst}
    v_lshlrev_b32 v{vst}, 10, v{vst}
    v_lshl_add_u32 v{vst}, v6, 4, v{vst}
    s_lshl_b32 s53, s55, 7
    s_mov_b32 s52, 0x3f803f80
    """)
    interleave(K, LD.L, C.L, 9)
    srd(K, R_U, PWS, 0x200000, WS_U)
    srd(K, SYNC, PWS, SYNC_BYTES, WS_SYNC)
    srd(K, R_MOD, PWS, 12288)
    K.stamp(2)
    S0, Q0, S1_, Q1 = T+20, T+21, T+22, T+23
    acc = [(S0, Q0), (S1_, Q1)]
    for j in range(8):
        K(f"s_waitcnt vmcnt({14-2*j})")
        for c4 in range(4):
            for u in range(2):
                x = X+(j*2+u)*4+c4
                first = (j == 0 and c4 == 0)
                K(f"v_dot2_f32_bf16 v{acc[u][0]}, v{x}, s52, {'0' if first else 'v%d' % acc[u][0]}")
                K(f"v_dot2_f32_bf16 v{acc[u][1]}, v{x}, v{x}, {'0' if first else 'v%d' % acc[u][1]}")
    K.stamp(3)
    N = T+24
    un = Buf()
    for u in range(2):
        for c4 in range(4):
            x = X+u*4+c4
            un(f"v_lshlrev_b32 v{N+u*8+2*c4}, 16, v{x}")
            un(f"v_and_b32 v{N+u*8+2*c4+1}, 0xffff0000, v{x}")
    ui = 0
    for perm in ("quad_perm:[1,0,3,2]", "quad_perm:[2,3,0,1]", "row_half_mirror"):
        for r in (S0, Q0, S1_, Q1):
            K(f"v_add_f32_dpp v{r}, v{r}, v{r} {perm} row_mask:0xf bank_mask:0xf")
        for _ in range(2): K(un.L[ui]); ui += 1
    for u in range(2):
        K(f"v_mul_f32 v{acc[u][0]}, {fconst(1/512)}, v{acc[u][0]}")
        K(f"v_mul_f32 v{acc[u][1]}, {fconst(1/512)}, v{acc[u][1]}")
    for u in range(2): K(f"v_fma_f32 v{acc[u][1]}, -v{acc[u][0]}, v{acc[u][0]}, v{acc[u][1]}")
    for u in range(2): K(f"v_max_f32 v{acc[u][1]}, 0, v{acc[u][1]}")
    for u in range(2): K(f"v_add_f32 v{acc[u][1]}, {fconst(1e-5)}, v{acc[u][1]}")
    for u in range(2): K(f"v_rsq_f32 v{acc[u][1]}, v{acc[u][1]}")
    while ui < len(un.L): K(un.L[ui]); ui += 1
    for u in range(2): K(f"v_mul_f32 v{acc[u][0]}, v{acc[u][0]}, v{acc[u][1]}")
    for u in range(2):
        sm, sq = acc[u]
        for e in range(8):
            K(f"v_fma_f32 v{N+u*8+e}, v{N+u*8+e}, v{sq}, -v{sm}")
        P = X+16+u*4
        for c4 in range(4):
            K(f"v_cvt_pk_bf16_f32 v{P+c4}, v{N+u*8+2*c4}, v{N+u*8+2*c4+1}")
        K(f"ds_write_b128 v{vw}, {v(P,4)} offset:{u*8*RS1}")
    K.stamp(4)
    lsync(K, 0, a=T+40, o=T+41, t=T+42)
    AF = X
    for st in range(4):
        for rd in range(2):
            K(f"ds_read_b64_tr_b16 {v(AF+st*4+rd*2,2)}, v{vr} offset:{(16*st+4*rd)*RS1}")
    ACC = X+32
    for st in range(4):
        K(f"s_waitcnt lgkmcnt({6-2*st})")
        K(f"v_mfma_f32_32x32x16_bf16 {v(ACC,16)}, {v(AF+st*4,4)}, {v(CB+st*4,4)}, {'0' if st==0 else v(ACC,16)}")
    sstore = 53
    K(f"s_mov_b32 s62, s53")
    K(f"""
    s_lshl_b32 s54, s{SX}, 2
    s_and_b32 s55, s{SL}, 3
    s_add_u32 s54, s54, s55
    s_lshr_b32 s55, s{SL}, 2
    s_lshl_b32 s56, s55, 2
    s_add_u32 s56, s56, s{SW}
    s_lshl_b32 s57, s56, 6
    s_cmp_eq_u32 s54, 0
    s_cbranch_scc1 P2_SLOT0
    s_add_u32 s58, s54, s57
    s_sub_u32 s59, 2048, s58
    s_branch P2_TOKD
    P2_SLOT0:
    s_cmp_lt_u32 s56, 16
    s_cbranch_scc1 P2_SLOT0A
    s_sub_u32 s58, s57, {64*16-32}
    s_sub_u32 s59, 2048, s58
    s_branch P2_TOKD
    P2_SLOT0A:
    s_mov_b32 s58, s57
    s_sub_u32 s59, 2048, s57
    s_cmp_eq_u32 s56, 0
    s_cselect_b32 s59, 1024, s59
    P2_TOKD:
    s_lshl_b32 s58, s58, 10
    s_lshl_b32 s59, s59, 10
    s_or_b32 s63, s54, s56
    """)
    PK = X+48
    for q in range(4):
        K(f"v_cvt_pk_bf16_f32 v{PK+2*q}, v{ACC+4*q}, v{ACC+4*q+1}")
        K(f"v_cvt_pk_bf16_f32 v{PK+2*q+1}, v{ACC+4*q+2}, v{ACC+4*q+3}")
    for pr in range(2):
        K(f"v_permlane32_swap_b32 v{PK+4*pr}, v{PK+4*pr+2}")
        K(f"v_permlane32_swap_b32 v{PK+4*pr+1}, v{PK+4*pr+3}")
    for pr in range(2):
        K(f"ds_write_b128 v{vow}, {v(PK+4*pr,4)} offset:{pr*32}")
    lsync(K, 1, a=T+40, o=T+41, t=T+42)
    K(f"ds_read_b128 {v(X,4)}, v{vor}")
    K(f"ds_read_b128 {v(X+4,4)}, v{vor} offset:{8*OUTS}")
    K(f"s_add_u32 s61, s62, {256*1024}")
    K("s_waitcnt lgkmcnt(1)")
    K(f"buffer_store_dwordx4 {v(X,4)}, v{vst}, s[{R_U}:{R_U+3}], s62 offen {SC}")
    K("s_waitcnt lgkmcnt(0)")
    K(f"buffer_store_dwordx4 {v(X+4,4)}, v{vst}, s[{R_U}:{R_U+3}], s61 offen {SC}")
    RAW, FR, K1F, XA, XB, MSH = 16, 80, 144, 152, 156, 160
    AS, CC, CS, CN, TWC, TWS, MM, MP, SA = 184, 192, 200, 208, 216, 224, 232, 236, 240
    K(f"v_lshlrev_b32 v6, 4, v1")
    K(f"buffer_load_dwordx4 {v(XA,4)}, v6, s[{R_X}:{R_X+3}], s58 offen")
    K(f"buffer_load_dwordx4 {v(XB,4)}, v6, s[{R_X}:{R_X+3}], s59 offen")
    K.stamp(5)
    GW, GR, YW, YN, YM, YS, HW, HR = 248, 249, 250, 251, 252, 253, 254, 255
    def p2_consts():
        f, p0, p1, a0, a1 = 8, 9, 10, 11, 15
        K(f"""
        v_lshrrev_b32 v16, 1, v3
        v_and_b32 v17, 1, v3
        s_lshl_b32 s52, s55, 2
        v_add_u32 v16, s52, v16
        v_cvt_f32_u32 v18, v17
        v_mul_f32 v18, 0.25, v18
        v_cvt_f32_u32 v{f}, v16
        v_mov_b32 v{a0}, 1.0
        v_mov_b32 v{a1}, 1.0
        s_cmp_eq_u32 s54, 0
        s_cbranch_scc1 P2_C0
        v_mul_f32 v{f}, {fconst(1/32)}, v{f}
        v_mov_b32 v{p0}, v18
        v_add_f32 v{p1}, {fconst(-0.25)}, v18
        s_branch P2_CD
        P2_C0:
        s_cmp_lt_u32 s55, 4
        s_cbranch_scc0 P2_C0B
        v_mul_f32 v{f}, {fconst(1/32)}, v{f}
        v_mov_b32 v{p0}, v18
        v_mov_b32 v{p1}, 0
        v_mov_b32 v{a1}, 0
        v_cmp_eq_u32 vcc, 0, v16
        v_add_f32 v18, v18, v18
        v_cndmask_b32 v{f}, v{f}, v18, vcc
        v_mov_b32 v18, 0
        v_cndmask_b32 v{p0}, v{p0}, v18, vcc
        s_branch P2_CD
        P2_C0B:
        v_add_f32 v{f}, v{f}, v{f}
        v_add_f32 v{f}, {fconst(-31.0)}, v{f}
        v_mul_f32 v{f}, {fconst(1/64)}, v{f}
        v_mov_b32 v{p0}, 0
        v_mov_b32 v{p1}, v18
        v_mov_b32 v{a0}, 0
        P2_CD:
        v_cmp_gt_u32 vcc, 8, v3
        v_mov_b32 v18, 0
        v_cndmask_b32 v{a0}, v18, v{a0}, vcc
        v_cndmask_b32 v{a1}, v18, v{a1}, vcc
        v_lshlrev_b32 v16, 2, v2
        v_cvt_f32_u32 v16, v16
        v_mul_f32 v16, v16, v{f}
        """)
        for st in range(2):
            for jj in range(4):
                t = 20 + 2*(jj % 2)
                K(f"v_add_f32 v{t}, v16, v{p0}")
                K(f"v_add_f32 v{t+1}, v16, v{p1}")
                K(f"v_cos_f32 v{t}, v{t}")
                K(f"v_cos_f32 v{t+1}, v{t+1}")
                K(f"v_add_f32 v16, v16, v{f}")
                K(f"v_mul_f32 v{t}, v{t}, v{a0}")
                K(f"v_mul_f32 v{t+1}, v{t+1}, v{a1}")
                K(f"v_cvt_pk_bf16_f32 v{AS+st*4+jj}, v{t}, v{t+1}")
            if st == 0:
                K(f"v_mul_f32 v17, {fconst(12.0)}, v{f}")
                K(f"v_add_f32 v16, v16, v17")
        K(f"""
        v_cvt_f32_u32 v8, v3
        v_mul_f32 v8, {fconst(1/32)}, v8
        v_lshlrev_b32 v9, 3, v2
        v_cvt_f32_u32 v9, v9
        v_mul_f32 v9, v9, v8
        """)
        for p in range(4):
            K(f"v_add_f32 v10, v9, v8")
            K(f"v_cos_f32 v16, v9")
            K(f"v_cos_f32 v17, v10")
            K(f"v_sin_f32 v18, v9")
            K(f"v_sin_f32 v19, v10")
            K(f"v_add_f32 v9, v10, v8")
            K(f"v_cvt_pk_bf16_f32 v{CC+p}, v16, v17")
            K(f"v_cvt_pk_bf16_f32 v{CS+p}, v18, v19")
        for p in range(4):
            K(f"v_xor_b32 v{CC+4+p}, 0x80000000, v{CC+p}")
            K(f"v_xor_b32 v{CS+4+p}, 0x80000000, v{CS+p}")
            K(f"v_xor_b32 v{CN+p}, 0x80008000, v{CS+p}")
            K(f"v_xor_b32 v{CN+4+p}, 0x00008000, v{CS+p}")
        K(f"v_lshlrev_b32 v8, 2, v2")
        for tau in range(2):
            K(f"v_add_u32 v9, {16*tau}, v3")
            for r in range(4):
                K(f"v_add_u32 v{16+r}, {r}, v8")
            for r in range(4):
                K(f"v_mul_u32_u24 v{16+r}, v{16+r}, v9")
            for r in range(4):
                K(f"v_cvt_f32_u32 v{16+r}, v{16+r}")
            for r in range(4):
                K(f"v_mul_f32 v{16+r}, {fconst(1/512)}, v{16+r}")
            for r in range(4):
                K(f"v_cos_f32 v{TWC+tau*4+r}, v{16+r}")
                K(f"v_sin_f32 v{TWS+tau*4+r}, v{16+r}")
        for jj in range(4): K(f"v_add_u32 v{16+jj}, {jj}, v8")
        for jj in range(4): K(f"v_mul_u32_u24 v{16+jj}, v{16+jj}, v3")
        for jj in range(4): K(f"v_cvt_f32_u32 v{16+jj}, v{16+jj}")
        for jj in range(4): K(f"v_mul_f32 v{16+jj}, {fconst(1/16)}, v{16+jj}")
        for jj in range(4):
            K(f"v_cos_f32 v{20+jj}, v{16+jj}")
            K(f"v_sin_f32 v{24+jj}, v{16+jj}")
        for p in range(2):
            K(f"v_cvt_pk_bf16_f32 v{MM+p}, v{20+2*p}, v{21+2*p}")
            K(f"v_cvt_pk_bf16_f32 v{MM+2+p}, v{24+2*p}, v{25+2*p}")
        for p in range(2):
            K(f"v_xor_b32 v{MP+p}, 0x80008000, v{MM+2+p}")
            K(f"v_mov_b32 v{MP+2+p}, v{MM+p}")
        K(f"""
        v_lshlrev_b32 v{GW}, 12, v2
        v_lshl_add_u32 v{GW}, v3, 4, v{GW}
        s_lshl_b32 s52, s{SW}, 8
        s_add_u32 s52, s52, {GB_}
        v_add_u32 v{GW}, s52, v{GW}
        v_lshlrev_b32 v8, 3, v2
        v_bfe_u32 v9, v1, 2, 2
        v_add_u32 v8, v8, v9
        v_lshlrev_b32 v{GR}, 5, v8
        v_and_b32 v9, 3, v1
        v_lshl_add_u32 v{GR}, v9, 3, v{GR}
        s_lshl_b32 s52, s{SW}, 11
        s_add_u32 s52, s52, {GB_}
        v_add_u32 v{GR}, s52, v{GR}
        s_mul_i32 s52, s{SW}, {YSTRIDE}
        s_add_u32 s52, s52, {YB}
        v_mul_u32_u24 v{YW}, 144, v3
        v_lshl_add_u32 v{YW}, v2, 4, v{YW}
        v_add_u32 v{YW}, s52, v{YW}
        v_lshrrev_b32 v8, 2, v1
        v_lshlrev_b32 v8, 4, v8
        v_lshl_add_u32 v{YN}, v1, 5, v8
        v_add_u32 v{YN}, s52, v{YN}
        v_sub_u32 v8, 63, v1
        v_lshrrev_b32 v9, 2, v8
        v_lshlrev_b32 v9, 4, v9
        v_lshl_add_u32 v{YM}, v8, 5, v9
        v_add_u32 v{YM}, s52, v{YM}
        v_sub_u32 v8, 64, v1
        v_and_b32 v8, 63, v8
        v_lshrrev_b32 v9, 2, v8
        v_lshlrev_b32 v9, 4, v9
        v_lshl_add_u32 v{YS}, v8, 5, v9
        v_add_u32 v{YS}, s52, v{YS}
        v_add_u32 v{HW}, s52, v6
        v_and_b32 v8, 7, v1
        v_lshrrev_b32 v9, 1, v8
        v_mul_u32_u24 v{HR}, {YSTRIDE}, v9
        v_and_b32 v9, 1, v8
        v_mul_u32_u24 v9, 1088, v9
        v_add_u32 v{HR}, v{HR}, v9
        v_lshrrev_b32 v9, 3, v1
        v_lshl_add_u32 v{HR}, v9, 4, v{HR}
        s_lshr_b32 s52, s{SW}, 1
        s_mul_i32 s52, s52, 2176
        s_and_b32 s53, s{SW}, 1
        s_lshl_b32 s53, s53, 9
        s_add_u32 s52, s52, s53
        s_add_u32 s52, s52, {YB}
        v_add_u32 v{HR}, s52, v{HR}
        s_lshl_b32 s52, s54, 16
        v_lshlrev_b32 v4, 13, v2
        v_lshl_add_u32 v4, v3, 4, v4
        s_lshl_b32 s53, s{SW}, 8
        s_add_u32 s52, s52, s53
        v_add_u32 v4, s52, v4
        v_lshlrev_b32 v5, 5, v3
        s_lshl_b32 s53, s{SW}, 9
        v_add_u32 v5, s53, v5
        v_lshlrev_b32 v7, 5, v1
        s_movk_i32 s60, 0x1000
        s_mov_b32 s61, 0x8000
        s_mov_b32 s62, 0x9000
        s_add_u32 s57, s{SW}, 2
        s_lshl_b32 s57, s57, 11
        """)
    K("s_waitcnt vmcnt(0)")
    K.stamp(6)
    gsync(K, "S1", f"s_lshl_b32 s52, s{SX}, 7", 8, 32, "v_lshlrev_b32 v13, 7, v1", "s_cmp_eq_u32 s2, 0",
          "v_lshlrev_b32 v13, 7, v1\n v_add_u32 v13, 1024, v13", 16,
          "s_and_b32 s52, s2, 15\n s_lshl_b32 s52, s52, 7\n s_add_u32 s52, s52, 1024\n v_mov_b32 v13, s52", 2, 8, 3, mid=p2_consts)
    K.stamp(7)
    for st in range(2):
        for j in range(8):
            so = ["0", "s60", "s61", "s62"][st*2 + j//4]
            K(f"buffer_load_dwordx4 {v(RAW+st*32+j*4,4)}, v4, s[{R_U}:{R_U+3}], {so} offen offset:{(j%4)*1024} {SC}")
            if st == 0 and j == 3:
                K(f"buffer_load_dwordx4 {v(K1F,4)}, v5, s[{R_MOD}:{R_MOD+3}], 0 offen offset:2048 {SC}")
                K(f"buffer_load_dwordx4 {v(K1F+4,4)}, v5, s[{R_MOD}:{R_MOD+3}], 0 offen offset:2064 {SC}")
    K(f"buffer_load_dwordx4 {v(MSH,4)}, v7, s[{R_MOD}:{R_MOD+3}], s57 offen {SC}")
    K(f"buffer_load_dwordx4 {v(MSH+4,4)}, v7, s[{R_MOD}:{R_MOD+3}], s57 offen offset:16 {SC}")
    K(f"s_mov_b32 s52, 0x05040100")
    K(f"s_mov_b32 s53, 0x07060302")
    K.stamp(8)
    def rowfft(GRf, GIf, outR, outI, have_imag):
        TR, TI, TP, W2 = 96, 104, 112, 120
        for tau in range(2):
            K(f"v_mfma_f32_16x16x32_bf16 {v(TR+tau*4,4)}, {v(GRf,4)}, {v(CC+tau*4,4)}, 0")
            K(f"v_mfma_f32_16x16x32_bf16 {v(TI+tau*4,4)}, {v(GRf,4)}, {v(CN+tau*4,4)}, 0")
        if have_imag:
            for tau in range(2):
                K(f"v_mfma_f32_16x16x32_bf16 {v(TR+tau*4,4)}, {v(GIf,4)}, {v(CS+tau*4,4)}, {v(TR+tau*4,4)}")
                K(f"v_mfma_f32_16x16x32_bf16 {v(TI+tau*4,4)}, {v(GIf,4)}, {v(CC+tau*4,4)}, {v(TI+tau*4,4)}")
        for tau in range(2):
            for r in range(4):
                i = tau*4+r
                K(f"v_mul_f32 v{W2+i}, v{TR+i}, v{TWC+i}")
                K(f"v_mul_f32 v{W2+8+i}, v{TI+i}, v{TWC+i}")
            for r in range(4):
                i = tau*4+r
                K(f"v_fma_f32 v{W2+i}, v{TI+i}, v{TWS+i}, v{W2+i}")
                K(f"v_fma_f32 v{W2+8+i}, -v{TR+i}, v{TWS+i}, v{W2+8+i}")
            K(f"v_cvt_pk_bf16_f32 v{TP+tau*4+0}, v{W2+tau*4+0}, v{W2+tau*4+1}")
            K(f"v_cvt_pk_bf16_f32 v{TP+tau*4+1}, v{W2+tau*4+2}, v{W2+tau*4+3}")
            K(f"v_cvt_pk_bf16_f32 v{TP+tau*4+2}, v{W2+8+tau*4+0}, v{W2+8+tau*4+1}")
            K(f"v_cvt_pk_bf16_f32 v{TP+tau*4+3}, v{W2+8+tau*4+2}, v{W2+8+tau*4+3}")
        for tau in range(2):
            K(f"v_mfma_f32_16x16x32_bf16 {v(outR+tau*4,4)}, {v(TP+tau*4,4)}, {v(MM,4)}, 0")
        if outI is not None:
            for tau in range(2):
                K(f"v_mfma_f32_16x16x32_bf16 {v(outI+tau*4,4)}, {v(TP+tau*4,4)}, {v(MP,4)}, 0")
    K("; @save")
    K(f"""
    s_cmp_lg_u32 s63, 0
    s_cbranch_scc1 P2_NOSA
    buffer_load_dwordx4 {v(128,4)}, v7, s[{R_MOD}:{R_MOD+3}], 0 offen {SC}
    buffer_load_dwordx4 {v(132,4)}, v7, s[{R_MOD}:{R_MOD+3}], 0 offen offset:16 {SC}
    s_waitcnt vmcnt(0)
    """)
    for p in range(4): K(f"v_cvt_pk_bf16_f32 v{136+p}, v{128+2*p}, v{129+2*p}")
    unpack8(K, 136, 128)
    for e in range(8): K(f"v_mul_f32 v{128+e}, {fconst(2048.0)}, v{128+e}")
    for p in range(4): K(f"v_cvt_pk_bf16_f32 v{136+p}, v{128+2*p}, v{129+2*p}")
    K(f"""
    ds_write_b128 v{HW}, {v(136,4)}
    v_add_u32 v8, {YB - GB_}, v{GR}
    s_waitcnt lgkmcnt(0)
    ds_read_b64_tr_b16 {v(140,2)}, v8
    ds_read_b64_tr_b16 {v(142,2)}, v8 offset:128
    s_waitcnt lgkmcnt(0)
    """)
    rowfft(140, None, SA, None, False)
    K("P2_NOSA:")
    K("; @restore")
    K(f"s_waitcnt vmcnt(10)")
    K.stamp(9)
    KP = 168
    for p in range(4): K(f"v_cvt_pk_bf16_f32 v{KP+p}, v{K1F+2*p}, v{K1F+2*p+1}")
    def perms(st):
        for i in range(8):
            for p in range(4):
                c4, hb = i//2, i%2
                K(f"v_perm_b32 v{FR+st*32+i*4+p}, v{RAW+st*32+(2*p+1)*4+c4}, v{RAW+st*32+(2*p)*4+c4}, s{52+hb}")
    perms(0)
    unpack8(K, KP, K1F)
    for e in range(8): K(f"v_add_f32 v{K1F+e}, 1.0, v{K1F+e}")
    ACC = 172
    ACC = RAW
    for i in range(8):
        K(f"v_mfma_f32_16x16x32_bf16 {v(ACC+i*4,4)}, {v(AS,4)}, {v(FR+i*4,4)}, 0")
        if i < 4: K(f"v_cvt_pk_bf16_f32 v{KP+i}, v{K1F+2*i}, v{K1F+2*i+1}")
    K(f"s_waitcnt vmcnt(2)")
    perms(1)
    unpack8(K, KP, K1F)
    for i in range(8):
        K(f"v_mfma_f32_16x16x32_bf16 {v(ACC+i*4,4)}, {v(AS+4,4)}, {v(FR+32+i*4,4)}, {v(ACC+i*4,4)}")
    K(f"s_waitcnt vmcnt(0)")
    for p in range(4): K(f"v_cvt_pk_bf16_f32 v{KP+p}, v{MSH+2*p}, v{MSH+2*p+1}")
    K("; @save")
    K(f"""
    s_cmp_lg_u32 s{SW}, 2
    s_cbranch_scc1 P2_NOK2
    """)
    unpack8(K, KP, MSH)
    for e in range(8): K(f"v_add_f32 v{MSH+e}, 1.0, v{MSH+e}")
    for p in range(4): K(f"v_cvt_pk_bf16_f32 v{KP+p}, v{MSH+2*p}, v{MSH+2*p+1}")
    K("P2_NOK2:")
    K("; @restore")
    K(f"""
    s_lshl_b32 s57, s{SW}, 10
    s_add_u32 s57, s57, {MODL}
    v_add_u32 v8, s57, v6
    s_cmp_eq_u32 s{SW}, 3
    s_cbranch_scc1 P2_NOMW
    ds_write_b128 v8, {v(KP,4)}
    P2_NOMW:
    """)
    GP = RAW+32
    K("s_mov_b32 exec_hi, 0")
    for r in range(4):
        for i in range(8):
            K(f"v_mul_f32 v{ACC+i*4+r}, v{ACC+i*4+r}, v{K1F+i}")
        for p in range(4):
            K(f"v_cvt_pk_bf16_f32 v{GP+r*4+p}, v{ACC+(2*p)*4+r}, v{ACC+(2*p+1)*4+r}")
        K(f"ds_write_b128 v{GW}, {v(GP+r*4,4)} offset:{r*1024}")
    K("s_mov_b64 exec, -1")
    lsync(K, 4, a=8, o=9, t=10)
    K.stamp(10)
    GRf, GIf = 80, 84
    GAP, SBP, K2P = 160, 164, 168
    K(f"""
    ds_read_b64_tr_b16 {v(GRf,2)}, v{GR}
    ds_read_b64_tr_b16 {v(GRf+2,2)}, v{GR} offset:128
    ds_read_b64_tr_b16 {v(GIf,2)}, v{GR} offset:1024
    ds_read_b64_tr_b16 {v(GIf+2,2)}, v{GR} offset:1152
    v_add_u32 v8, {MODL}, v6
    ds_read_b128 {v(GAP,4)}, v8
    ds_read_b128 {v(SBP,4)}, v8 offset:1024
    ds_read_b128 {v(K2P,4)}, v8 offset:2048
    """)
    XF = [88, 32]
    for side, xr in enumerate((XA, XB)): unpack8(K, xr, XF[side])
    K("s_waitcnt lgkmcnt(3)")
    YR, YI = 16, 24
    rowfft(GRf, GIf, YR, YI, True)
    GA, K2R, SB = 144, 176, 136
    K("s_waitcnt lgkmcnt(0)")
    NA, BL, YA_, YB2 = 40, 48, 64, 72
    A2 = 2432
    K("; @save")
    K(f"""
    s_cmp_lg_u32 s63, 0
    s_cbranch_scc1 P2_REG
    """)
    unpack8(K, GAP, GA)
    for e in range(8):
        K(f"v_add_f32 v{YR+e}, v{YR+e}, v{SA+e}")
    for tau in range(2):
        K(f"ds_write_b128 v{YW}, {v(YR+tau*4,4)} offset:{tau*64}")
        K(f"ds_write_b128 v{YW}, {v(YI+tau*4,4)} offset:{A2+tau*64}")
    K("s_waitcnt lgkmcnt(0)")
    for (off, dst) in ((0, YA_), (A2, YB2)):
        K(f"ds_read_b128 {v(NA,4)}, v{YN} offset:{off}")
        K(f"ds_read_b128 {v(NA+4,4)}, v{YN} offset:{off+16}")
        K(f"ds_read_b128 {v(BL,4)}, v{YM} offset:{off}")
        K(f"ds_read_b128 {v(BL+4,4)}, v{YM} offset:{off+16}")
        K(f"ds_read_b32 v{BL+8}, v{YS} offset:{off}")
        K("s_waitcnt lgkmcnt(0)")
        for i in range(8):
            src = BL+8 if i == 0 else BL+8-i
            K(f"v_add_f32 v{dst+i}, v{NA+i}, v{src}")
        for i in range(8):
            K(f"v_mul_f32 v{dst+i}, 0.5, v{dst+i}")
    for i in range(8):
        K(f"v_fma_f32 v{XF[1]+i}, v{GA+i}, v{YB2+i}, v{XF[1]+i}")
    unpack8(K, K2P, K2R); unpack8(K, SBP, SB)
    K("s_branch P2_EPI")
    K("P2_REG:")
    K("; @restore")
    for tau in range(2):
        K(f"ds_write_b128 v{YW}, {v(YR+tau*4,4)} offset:{tau*64}")
    unpack8(K, GAP, GA)
    K("s_waitcnt lgkmcnt(0)")
    K(f"ds_read_b128 {v(YA_,4)}, v{YN}")
    K(f"ds_read_b128 {v(YA_+4,4)}, v{YN} offset:16")
    K(f"ds_read_b128 {v(BL,4)}, v{YM}")
    K(f"ds_read_b128 {v(BL+4,4)}, v{YM} offset:16")
    K(f"ds_read_b32 v{BL+8}, v{YS}")
    unpack8(K, K2P, K2R); unpack8(K, SBP, SB)
    K("s_waitcnt lgkmcnt(0)")
    for i in range(8):
        src = BL+8 if i == 0 else BL+8-i
        K(f"v_fma_f32 v{XF[1]+i}, v{GA+i}, v{src}, v{XF[1]+i}")
    K("P2_EPI:")
    for i in range(8):
        K(f"v_fma_f32 v{XF[0]+i}, v{GA+i}, v{YA_+i}, v{XF[0]+i}")
    X2P = [80, 84]
    for side in range(2):
        for c4 in range(4):
            K(f"v_cvt_pk_bf16_f32 v{X2P[side]+c4}, v{XF[side]+2*c4}, v{XF[side]+2*c4+1}")
    K("s_mov_b32 s52, 0x3f803f80")
    ST = [104, 105, 106, 107]
    for c4 in range(4):
        for side in range(2):
            x = X2P[side]+c4
            K(f"v_dot2_f32_bf16 v{ST[2*side]}, v{x}, s52, {'0' if c4==0 else 'v%d'%ST[2*side]}")
            K(f"v_dot2_f32_bf16 v{ST[2*side+1]}, v{x}, v{x}, {'0' if c4==0 else 'v%d'%ST[2*side+1]}")
    K(f"ds_write_b128 v{HW}, {v(X2P[0],4)}")
    K(f"ds_write_b128 v{HW}, {v(X2P[1],4)} offset:1088")
    steps = ("quad_perm:[1,0,3,2]", "quad_perm:[2,3,0,1]", "row_half_mirror", "row_mirror")
    for si, perm in enumerate(steps):
        for r in ST:
            K(f"v_add_f32_dpp v{r}, v{r}, v{r} {perm} row_mask:0xf bank_mask:0xf")
        side, half = si // 2, si % 2
        for c4 in range(2*half, 2*half+2):
            K(f"v_lshlrev_b32 v{XF[side]+2*c4}, 16, v{X2P[side]+c4}")
            K(f"v_and_b32 v{XF[side]+2*c4+1}, 0xffff0000, v{X2P[side]+c4}")
    for swap in ("v_permlane16_swap_b32", "v_permlane32_swap_b32"):
        for i, r in enumerate(ST): K(f"v_mov_b32 v{108+i}, v{r}")
        for i, r in enumerate(ST): K(f"{swap} v{r}, v{108+i}")
        for i, r in enumerate(ST): K(f"v_add_f32 v{r}, v{r}, v{108+i}")
    for side in range(2):
        K(f"v_mul_f32 v{ST[2*side]}, {fconst(1/512)}, v{ST[2*side]}")
        K(f"v_mul_f32 v{ST[2*side+1]}, {fconst(1/512)}, v{ST[2*side+1]}")
    for side in range(2): K(f"v_fma_f32 v{ST[2*side+1]}, -v{ST[2*side]}, v{ST[2*side]}, v{ST[2*side+1]}")
    for side in range(2): K(f"v_max_f32 v{ST[2*side+1]}, 0, v{ST[2*side+1]}")
    for side in range(2): K(f"v_add_f32 v{ST[2*side+1]}, {fconst(1e-5)}, v{ST[2*side+1]}")
    for side in range(2): K(f"v_rsq_f32 v{ST[2*side+1]}, v{ST[2*side+1]}")
    HP = [112, 116]
    for side in range(2):
        for e in range(8):
            K(f"v_sub_f32 v{XF[side]+e}, v{XF[side]+e}, v{ST[2*side]}")
    for side in range(2):
        for e in range(8):
            K(f"v_mul_f32 v{XF[side]+e}, v{XF[side]+e}, v{ST[2*side+1]}")
        for e in range(8):
            K(f"v_fma_f32 v{XF[side]+e}, v{XF[side]+e}, v{K2R+e}, v{SB+e}")
        for c4 in range(4):
            K(f"v_cvt_pk_bf16_f32 v{HP[side]+c4}, v{XF[side]+2*c4}, v{XF[side]+2*c4+1}")
        K(f"ds_write_b128 v{HW}, {v(HP[side],4)} offset:{2176+1088*side}")
    srd(K, R_A, PWS, 0x400000, WS_X2)
    K(f"""
    v_lshrrev_b32 v8, 3, v1
    v_lshlrev_b32 v8, 8, v8
    v_and_b32 v9, 7, v1
    v_lshl_add_u32 v8, v9, 4, v8
    s_lshl_b32 s52, s54, 2
    s_lshr_b32 s53, s55, 1
    s_add_u32 s52, s52, s53
    s_lshl_b32 s52, s52, 14
    s_and_b32 s53, s55, 1
    s_lshl_b32 s53, s53, 7
    s_add_u32 s52, s52, s53
    s_and_b32 s53, s{SW}, 1
    s_lshl_b32 s53, s53, 13
    s_add_u32 s52, s52, s53
    s_lshr_b32 s53, s{SW}, 1
    s_lshl_b32 s53, s53, 21
    s_add_u32 s52, s52, s53
    s_add_u32 s53, s52, 4096
    """)
    lsync(K, 5, a=12, o=13, t=14)
    for i in range(4):
        K(f"ds_read_b128 {v(16+4*i,4)}, v{HR} offset:{i*128}")
    for i in range(4):
        K(f"s_waitcnt lgkmcnt({3-i})")
        K(f"buffer_store_dwordx4 {v(16+4*i,4)}, v8, s[{R_A}:{R_A+3}], s{52 + i//2} offen offset:{(i%2)*2048} {SC}")
    K.stamp(11)
    K(f"""
    s_bfe_u32 s54, s{SL}, 0x10001
    s_lshl_b32 s55, s{SX}, 1
    s_add_u32 s54, s54, s55
    s_and_b32 s55, s{SL}, 1
    s_lshr_b32 s52, s{SL}, 2
    s_lshl_b32 s52, s52, 1
    s_add_u32 s55, s55, s52
    s_lshl_b32 s56, s54, 3
    s_lshl_b32 s52, s{SW}, 1
    s_add_u32 s56, s56, s52
    s_lshl_b32 s57, s56, 14
    s_add_u32 s58, s57, 16384
    """)
    RA = 248
    def p3_setup():
        K(f"""
        v_lshlrev_b32 v7, 4, v1
        v_bfe_u32 v4, v1, 2, 2
        v_and_b32 v6, 1, v2
        v_lshl_add_u32 v6, v6, 2, v4
        v_lshlrev_b32 v6, 1, v6
        v_lshl_add_u32 v4, v2, 3, v4
        v_lshlrev_b32 v4, 8, v4
        v_bfe_u32 v8, v1, 1, 1
        v_lshl_add_u32 v4, v8, 4, v4
        v_and_b32 v8, 1, v1
        v_lshl_add_u32 v4, v8, 3, v4
        """)
        for tau in range(7):
            K(f"v_xor_b32 v8, {2*tau}, v6")
            K(f"v_lshl_add_u32 v{RA+tau}, v8, 4, v4")
        srd(K, R_U, PWS, 0x200000, WS_H2)
        srd(K, R_B, PWS, H_BYTES, WS_H)
    K("s_waitcnt vmcnt(0)")
    gsync(K, "S2", f"s_lshl_b32 s52, s54, 7\n s_add_u32 s52, s52, 3072", 1, 16,
          f"s_lshl_b32 s52, s54, 7\n s_add_u32 s52, s52, 3072\n v_mov_b32 v13, s52",
          f"s_and_b32 s52, s{SL}, 29\n s_cmp_eq_u32 s52, 0",
          f"s_lshl_b32 s52, s54, 7\n s_add_u32 s52, s52, 5120\n v_mov_b32 v13, s52", 1,
          f"s_lshl_b32 s52, s54, 7\n s_add_u32 s52, s52, 5120\n v_mov_b32 v13, s52", 6, 4, 7, mid=p3_setup)
    K.stamp(12)
    ACT, AF, ACC = 64, 192, 8
    def issue3(ks):
        out = []
        for u in range(2):
            out.append(f"buffer_load_dwordx4 {v(ACT+(ks*2+u)*4,4)}, v7, s[{R_U}:{R_U+3}], s{57+u} offen offset:{(ks%4)*1024} {SC}")
        if ks % 4 == 3:
            out[-1] += f"\n s_add_u32 s57, s57, 4096\n s_add_u32 s58, s58, 4096"
        return out
    PRE3 = envint('PRE3', 6)
    for ks in range(PRE3):
        for x in issue3(ks): K(x)
    def read3(ks, tau, rd):
        buf = ks % 2
        o = (ks % 8) * 8192
        return f"ds_read_b64_tr_b16 {v(AF+buf*28+tau*4+rd*2,2)}, v{RA+tau} offset:{o+rd*1024}"
    K(f"v_mov_b32 v12, {LSY}")
    lwait(K, 8, 4, 12, 14, st=27)
    for tau in range(7):
        for rd in range(2): K(read3(0, tau, rd))
    issued = PRE3
    for ks in range(16):
        pend = []
        if issued < 16:
            pend = issue3(issued); issued += 1
        nout_before = (issued - 1 - ks) * 2 - len(pend)
        K(f"s_waitcnt vmcnt({max(0, nout_before)})")
        if ks == 0: K.stamp(13)
        buf = ks % 2
        for tau in range(7):
            K(f"s_waitcnt lgkmcnt({12 if ks < 15 else 12-2*tau})")
            for u in range(2):
                d = ACC+(u*7+tau)*4
                K(f"v_mfma_f32_16x16x32_bf16 {v(d,4)}, {v(AF+buf*28+tau*4,4)}, {v(ACT+(ks*2+u)*4,4)}, {'0' if ks==0 else v(d,4)}")
                if ks < 15:
                    if ks == 7 and u == 0: K(f"v_add_u32 v{RA+tau}, 0x10000, v{RA+tau}")
                    K(read3(ks+1, tau, u))
            if pend and tau in (2, 5): K(pend.pop(0))
    lsy_regs(K, 4, 5)
    larrive(K, 9, 4, 5)
    K.stamp(14)
    PKR = 64
    K(f"""
    v_and_b32 v4, 1, v2
    v_lshlrev_b32 v4, 9, v4
    v_lshrrev_b32 v5, 1, v2
    v_lshl_add_u32 v4, v5, 8, v4
    v_lshl_add_u32 v4, v3, 4, v4
    s_and_b32 s60, s55, 1
    v_lshlrev_b32 v6, 8, v5
    v_lshl_add_u32 v6, v3, 4, v6
    v_and_b32 v5, 1, v2
    v_mul_u32_u24 v5, 57344, v5
    v_add_u32 v6, v6, v5
    s_mul_i32 s52, s55, 7
    s_add_u32 s57, s52, s60
    s_lshr_b32 s57, s57, 1
    s_lshl_b32 s57, s57, 10
    s_mul_i32 s53, s56, 57344
    s_add_u32 s57, s57, s53
    s_add_u32 s58, s57, 57344
    s_lshr_b32 s59, s52, 1
    s_cmp_eq_u32 s60, 0
    s_cselect_b32 s61, 3, 0
    s_add_u32 s59, s59, s61
    s_lshl_b32 s59, s59, 10
    s_add_u32 s59, s59, s53
    s_lshl_b32 s60, s60, 9
    s_add_u32 s59, s59, s60
    """)
    for u in range(2):
        for tau in range(7):
            d = ACC+(u*7+tau)*4
            for r in range(4):
                K(f"v_max_f32 v{d+r}, 0, v{d+r}")
            b = PKR+(u*3+tau//2)*4+(tau%2)*2 if tau < 6 else PKR+24+u*2
            K(f"v_cvt_pk_bf16_f32 v{b}, v{d}, v{d+1}")
            K(f"v_cvt_pk_bf16_f32 v{b+1}, v{d+2}, v{d+3}")
            if tau % 2 == 1:
                b = PKR+(u*3+tau//2)*4
                K(f"v_permlane16_swap_b32 v{b}, v{b+2}")
                K(f"v_permlane16_swap_b32 v{b+1}, v{b+3}")
                K(f"buffer_store_dwordx4 {v(b,4)}, v4, s[{R_B}:{R_B+3}], s{57+u} offen offset:{(tau//2)*1024} {SC}")
    b = PKR+24
    K(f"v_permlane16_swap_b32 v{b}, v{b+2}")
    K(f"v_permlane16_swap_b32 v{b+1}, v{b+3}")
    K(f"buffer_store_dwordx4 {v(b,4)}, v6, s[{R_B}:{R_B+3}], s59 offen {SC}")
    K.stamp(15)
    K(f"""
    s_and_b32 s56, s55, 1
    s_lshl_b32 s56, s56, 2
    s_lshl_b32 s52, s54, 3
    s_add_u32 s56, s56, s52
    s_lshr_b32 s55, s55, 1
    """)
    NSLOT, SLOT = NSLOT_, 4096
    ACC4, AF4, RING, NR = 8, 72, 104, 8
    RA4 = 232
    def p4_setup():
        K(f"""
        v_lshlrev_b32 v7, 4, v1
        s_mul_i32 s57, s56, 57344
        s_mul_i32 s52, s{SW}, {14*1024}
        s_add_u32 s57, s57, s52
        s_add_u32 s58, s57, 57344
        s_add_u32 s59, s58, 57344
        s_add_u32 s60, s59, 57344
        v_lshrrev_b32 v4, 3, v1
        v_and_b32 v5, 7, v1
        v_bfe_u32 v6, v1, 4, 1
        v_lshlrev_b32 v6, 1, v6
        v_xor_b32 v8, v5, v6
        v_xor_b32 v9, 4, v8
        v_lshlrev_b32 v4, 10, v4
        s_lshl_b32 s52, s55, 7
        v_add_u32 v4, s52, v4
        v_lshl_add_u32 v5, v8, 4, v4
        v_lshl_add_u32 v6, v9, 4, v4
        s_mul_i32 s61, s{SW}, {448*1024}
        s_add_u32 s61, s61, {NSLOT*32*1024}
        s_mul_i32 s62, s{SW}, {NSLOT*SLOT}
        v_bfe_u32 v9, v1, 2, 2
        v_bfe_u32 v10, v1, 3, 1
        v_and_b32 v11, 1, v2
        v_lshl_add_u32 v10, v11, 1, v10
        v_lshlrev_b32 v10, 1, v10
        v_lshl_add_u32 v9, v2, 3, v9
        v_lshlrev_b32 v9, 7, v9
        v_bfe_u32 v11, v1, 1, 1
        v_lshl_add_u32 v9, v11, 4, v9
        v_and_b32 v11, 1, v1
        v_lshl_add_u32 v9, v11, 3, v9
        v_add_u32 v9, s62, v9
        """)
        for tau in range(4):
            K(f"v_xor_b32 v11, {2*tau}, v10")
            K(f"v_lshl_add_u32 v{RA4+tau}, v11, 4, v9")
        srd(K, R_X, PW2, 1792*1024)
        srd(K, R_A, PWS, 0x200000, WS_X2)
        K(f"""
        v_and_b32 v9, 1, v2
        v_lshlrev_b32 v9, 1, v9
        v_lshrrev_b32 v10, 1, v2
        v_add_u32 v9, v9, v10
        v_lshlrev_b32 v248, 8, v9
        v_lshl_add_u32 v248, v3, 4, v248
        v_lshlrev_b32 v249, 4, v9
        """)
    K("s_waitcnt vmcnt(0)")
    gsync(K, "S3", f"s_lshl_b32 s52, s54, 7\n s_add_u32 s52, s52, 7168", 1, 16,
          f"s_lshl_b32 s52, s54, 7\n s_add_u32 s52, s52, 7168\n v_mov_b32 v13, s52",
          f"s_and_b32 s52, s{SL}, 29\n s_cmp_eq_u32 s52, 0",
          f"s_lshl_b32 s52, s54, 7\n s_add_u32 s52, s52, 9216\n v_mov_b32 v13, s52", 1,
          f"s_lshl_b32 s52, s54, 7\n s_add_u32 s52, s52, 9216\n v_mov_b32 v13, s52", 10, 4, 11, mid=p4_setup)
    K.stamp(16)
    def act(ks, u): return v(RING+((ks % NR)*4+u)*4, 4)
    def issue4(ks):
        out = []
        for u in range(4):
            out.append(f"buffer_load_dwordx4 {act(ks,u)}, v7, s[{R_B}:{R_B+3}], s{57+u} offen offset:{(ks%4)*1024} {SC}")
        if ks % 4 == 3:
            out[-1] += "".join(f"\n s_add_u32 s{57+u}, s{57+u}, 4096" for u in range(4))
        return out
    def read4(ks, tau, rd):
        buf = ks % 2
        o = (ks % NSLOT) * SLOT
        return f"ds_read_b64_tr_b16 {v(AF4+buf*16+tau*4+rd*2,2)}, v{RA4+tau} offset:{o+rd*512}"
    def dma4(ks):
        slot = ks % NSLOT
        out = []
        for m in range(4):
            out.append(f"s_add_u32 m0, s62, {slot*SLOT + m*1024}\n buffer_load_dwordx4 v{5 + (m&1)}, s[{R_X}:{R_X+3}], s61 offen lds\n s_add_u32 s61, s61, 8192")
        return out
    ops = []
    for ks in range(NR):
        for x in issue4(ks): K(x); ops.append(("act", ks))
    K(f"v_mov_b32 v12, {LSY}")
    lwait(K, 12, 4, 12, 14, st=27)
    for tau in range(4):
        for rd in range(2): K(read4(0, tau, rd))
    pend = []
    for ks in range(14):
        need = lambda o: (o == ("act", ks)) or (o == ("dma", ks+1))
        idx = max(i for i, o in enumerate(ops) if need(o))
        K(f"s_waitcnt vmcnt({min(63, len(ops)-1-idx)})")
        if ks == 0: K.stamp(17)
        buf = ks % 2
        for tau in range(4):
            K(f"s_waitcnt lgkmcnt({6 if ks < 13 else 6-2*tau})")
            for u in range(4):
                d = ACC4+(u*4+tau)*4
                K(f"v_mfma_f32_16x16x32_bf16 {v(d,4)}, {v(AF4+buf*16+tau*4,4)}, {act(ks,u)}, {'0' if ks==0 else v(d,4)}")
                if ks < 13 and u < 2: K(read4(ks+1, tau, u))
                elif pend:
                    kind, kk, text = pend.pop(0); K(text); ops.append((kind, kk))
        while pend:
            kind, kk, text = pend.pop(0); K(text); ops.append((kind, kk))
        if ks + NSLOT < 14: pend += [("dma", ks+NSLOT, t) for t in dma4(ks+NSLOT)]
        if ks + NR < 14: pend += [("act", ks+NR, t) for t in issue4(ks+NR)]
        if ks == 7:
            K(f"""
            s_add_u32 s52, s56, s{SW}
            s_lshl_b32 s52, s52, 14
            s_lshl_b32 s53, s55, 11
            s_add_u32 s52, s52, s53
            """)
            K(f"buffer_load_dwordx4 {v(240,4)}, v248, s[{R_A}:{R_A+3}], s52 offen {SC}"); ops.append(("epi", 0))
            K(f"buffer_load_dwordx4 {v(244,4)}, v248, s[{R_A}:{R_A+3}], s52 offen offset:1024 {SC}"); ops.append(("epi", 0))
    K("s_barrier")
    K(f"""
    v_lshlrev_b32 v106, 1, v249
    s_lshl_b32 s53, s55, 8
    s_add_u32 s53, s53, {5*2048}
    """)
    GBF = 208
    for pr in range(2):
        K(f"buffer_load_dwordx4 {v(GBF+pr*8,4)}, v106, s[{R_MOD}:{R_MOD+3}], s53 offen offset:{pr*128} {SC}")
        K(f"buffer_load_dwordx4 {v(GBF+pr*8+4,4)}, v106, s[{R_MOD}:{R_MOD+3}], s53 offen offset:{pr*128+16} {SC}")
    K(f"""
    v_lshlrev_b32 v104, 4, v1
    s_lshl_b32 s52, s{SW}, 12
    v_add_u32 v105, s52, v104
    """)
    for u in range(4):
        for tau in range(4):
            K(f"ds_write_b128 v105, {v(ACC4+(u*4+tau)*4,4)} offset:{u*16384+tau*1024}")
    K("s_waitcnt lgkmcnt(0)")
    K("s_barrier")
    K(f"""
    s_lshl_b32 s52, s{SW}, 14
    v_add_u32 v105, s52, v104
    """)
    RD = 136
    for tau in range(4):
        for src in range(4):
            K(f"ds_read_b128 {v(RD+(src*4+tau)*4,4)}, v105 offset:{src*4096+tau*1024}")
    K(f"""
    s_add_u32 s52, s56, s{SW}
    s_lshl_b32 s52, s52, 4
    v_add_u32 v109, s52, v3
    v_lshrrev_b32 v40, 6, v109
    v_bfe_u32 v41, v109, 1, 5
    v_and_b32 v42, 1, v109
    v_lshlrev_b32 v43, 6, v41
    v_add_u32 v44, v40, v43
    v_cmp_eq_u32 vcc, 0, v40
    v_subrev_u32 v45, {64*16-32}, v43
    v_cmp_lt_u32 s[52:53], 15, v41
    v_cndmask_b32 v45, v43, v45, s[52:53]
    v_cndmask_b32 v44, v44, v45, vcc
    v_sub_u32 v45, 2048, v44
    v_lshrrev_b32 v46, 1, v109
    v_cmp_eq_u32 vcc, 0, v46
    v_mov_b32 v47, 1024
    v_cndmask_b32 v45, v45, v47, vcc
    v_cmp_eq_u32 vcc, 1, v42
    v_cndmask_b32 v44, v44, v45, vcc
    v_lshlrev_b32 v44, 10, v44
    v_add_u32 v44, v44, v249
    s_lshl_b32 s52, s55, 7
    """)
    srd(K, R_X, POUT, 0x200000)
    K("s_waitcnt vmcnt(0)")
    GBP = 48
    for pr in range(2):
        for p in range(4): K(f"v_cvt_pk_bf16_f32 v{GBP+pr*4+p}, v{GBF+pr*8+2*p}, v{GBF+pr*8+2*p+1}")
    XF4, GF4 = 8, 24
    XRs = [240, 244]
    for pr in range(2):
        unpack8(K, XRs[pr], XF4+pr*8)
        unpack8(K, GBP+pr*4, GF4+pr*8)
    for tau in range(4):
        K(f"s_waitcnt lgkmcnt({12-4*tau})")
        for r in range(4):
            x = RD+tau*4+r
            K(f"v_add_f32 v{x}, v{x}, v{RD+(4+tau)*4+r}")
            K(f"v_add_f32 v{RD+(8+tau)*4+r}, v{RD+(8+tau)*4+r}, v{RD+(12+tau)*4+r}")
        for r in range(4):
            x = RD+tau*4+r
            K(f"v_add_f32 v{x}, v{x}, v{RD+(8+tau)*4+r}")
    for pr in range(2):
        A_, B_ = RD+(2*pr)*4, RD+(2*pr+1)*4
        for r in range(4):
            K(f"v_permlane16_swap_b32 v{A_+r}, v{B_+r}")
        for e in range(8):
            K(f"v_fma_f32 v{XF4+pr*8+e}, v{GF4+pr*8+e}, v{A_+e}, v{XF4+pr*8+e}")
        for c in range(4):
            K(f"v_cvt_pk_bf16_f32 v{56+pr*4+c}, v{XF4+pr*8+2*c}, v{XF4+pr*8+2*c+1}")
        K(f"buffer_store_dwordx4 {v(56+pr*4,4)}, v44, s[{R_X}:{R_X+3}], s52 offen offset:{pr*64}")
    if STAMPS:
        K("s_waitcnt vmcnt(0)")
        K("s_memtime s[100:101]")
        K("s_memrealtime s[62:63]")
        K("s_waitcnt lgkmcnt(0)")
        K("s_mov_b32 s65, s62")
        dump(K)
    K("s_endpgm")

    K("L_HELPER:")
    K.reset_state()
    K("s_waitcnt lgkmcnt(0)")
    K(f"v_lshlrev_b32 v7, 4, v1")
    K("v_mov_b32 v60, 0")
    K("v_mov_b32 v61, 0")
    if envint('TLB', 0):
        PG = envint('PG', 21)
        K("; @save")
        K(f"""
        s_cmp_lg_u32 s{SW}, {envint('TLBW', 3)}
        s_cbranch_scc1 H_NOTLB
        """)
        srd(K, R_A, PWS, WS_H + H_BYTES)
        K(f"v_lshlrev_b32 v8, {PG}, v1")
        K(f"buffer_load_dword v9, v8, s[{R_A}:{R_A+3}], 0 offen")
        srd(K, R_A, POUT, 0x200000)
        K(f"buffer_load_dword v9, v8, s[{R_A}:{R_A+3}], 0 offen")
        K(f"v_mov_b32 v10, 0x1ffffc")
        K(f"buffer_load_dword v9, v10, s[{R_A}:{R_A+3}], 0 offen")
        srd(K, R_A, PDBG, 256)
        K(f"v_mov_b32 v10, 0")
        K(f"buffer_load_dword v9, v10, s[{R_A}:{R_A+3}], 0 offen")
        srd(K, R_A, PW1, 512*3584)
        K(f"buffer_load_dword v9, v8, s[{R_A}:{R_A+3}], 0 offen")
        srd(K, R_A, PW2, 1792*1024)
        K(f"buffer_load_dword v9, v8, s[{R_A}:{R_A+3}], 0 offen")
        K("H_NOTLB:")
        K("; @restore")
    K("; @save")
    K(f"""
    s_or_b32 s52, s2, s{SW}
    s_cmp_lg_u32 s52, 0
    s_cbranch_scc1 H_NOINIT
    """)
    srd(K, R_A, PWS, 0x7000)
    srd(K, R_B, PDBG, 256)
    K(f"""
    v_mov_b32 v12, 0
    v_mov_b32 v13, 0
    v_mov_b32 v14, 0
    v_mov_b32 v15, 0
    s_movk_i32 s52, 0x4000
    """)
    for i in range(11):
        K(f"buffer_store_dwordx4 v[12:15], v7, s[{R_A}:{R_A+3}], s52 offen sc1")
        K(f"s_add_u32 s52, s52, 1024")
    K("s_mov_b32 s52, 0")
    for i in range(12):
        K(f"buffer_store_dwordx4 v[12:15], v7, s[{R_A}:{R_A+3}], s52 offen sc1")
        K(f"s_add_u32 s52, s52, 1024")
    K(f"""
    s_waitcnt vmcnt(0)
    v_mov_b32 v12, 1
    s_mov_b64 exec, 1
    buffer_store_dword v12, v13, s[{R_B}:{R_B+3}], 0 offen sc1
    s_mov_b64 exec, -1
    H_NOINIT:
    """)
    K("; @restore")
    K(f"""
    s_and_b32 s55, s{SL}, 1
    s_lshr_b32 s52, s{SL}, 2
    s_lshl_b32 s52, s52, 1
    s_add_u32 s55, s55, s52
    s_lshr_b32 s52, s{SW}, 1
    s_lshl_b32 s52, s52, 3
    v_lshl_add_u32 v4, v2, 1, s52
    v_xor_b32 v4, v4, v3
    s_and_b32 s52, s55, 1
    s_lshl_b32 s52, s52, 1
    v_add_u32 v6, s52, v4
    v_subrev_u32 v12, 14, v6
    v_cmp_le_u32 vcc, 14, v6
    v_cndmask_b32 v6, v6, v12, vcc
    v_mul_u32_u24 v5, 3584, v2
    v_lshl_add_u32 v5, v6, 4, v5
    s_mul_i32 s52, s55, 224
    v_add_u32 v5, s52, v5
    v_cmp_gt_u32 vcc, 14, v4
    v_mov_b32 v6, 0x40000000
    v_cndmask_b32 v5, v6, v5, vcc
    s_mul_i32 s56, s{SW}, {4*3584}
    s_lshl_b32 s57, s{SW}, 10
    s_mul_i32 s58, s{SL}, 57344
    s_mul_i32 s52, s{SW}, 14336
    s_add_u32 s58, s58, s52
    """)
    srd(K, R_X, PW1, 512*3584)
    srd(K, R_U, PW2, 1792*1024)
    state = dict(w1=0, w2=0, out=0)
    def throttle(thr=None):
        thr = thr or THR
        if state['out'] >= thr:
            K(f"s_waitcnt vmcnt({thr-1})"); state['out'] = thr-1
    def w1dma(n):
        for _ in range(n):
            throttle()
            K(f"s_mov_b32 m0, s57")
            K(f"buffer_load_dwordx4 v5, s[{R_X}:{R_X+3}], s56 offen lds")
            K(f"s_add_u32 s56, s56, {16*3584}")
            K(f"s_add_u32 s57, s57, 4096")
            state['w1'] += 1; state['out'] += 1
    def w2pf(n):
        for _ in range(n):
            throttle()
            K(f"buffer_load_dwordx4 v[8:11], v7, s[{R_U}:{R_U+3}], s58 offen")
            K(f"s_add_u32 s58, s58, 1024")
            state['w2'] += 1; state['out'] += 1
    W, CV, AC, T = 16, 32, 40, 48
    K("; @save")
    K(f"""
    s_cmp_ge_u32 s2, 192
    s_cbranch_scc1 H_NOMOD1
    s_mul_i32 s52, s2, 1366
    s_lshr_b32 s52, s52, 16
    s_mul_i32 s53, s52, 48
    s_sub_u32 s53, s2, s53
    """)
    srd(K, R_A, PC, 1024)
    srd(K, R_B, PWM, 512*6144)
    K(f"""
    v_lshrrev_b32 v16+46, 3, v1
    v_and_b32 v16+47, 7, v1
    s_lshl_b32 s54, s52, 7
    s_lshl_b32 s59, s{SW}, 5
    s_add_u32 s54, s54, s59
    v_add_u32 v10, s54, v62
    v_mul_u32_u24 v11, 6144, v10
    v_lshl_add_u32 v11, v63, 4, v11
    s_lshl_b32 s59, s53, 7
    v_lshlrev_b32 v10, 1, v10
    s_mov_b32 s60, s53
    """.replace("v16+46", "v62").replace("v16+47", "v63"))
    for it in range(4):
        K(f"buffer_load_ushort v{CV+it}, v10, s[{R_A}:{R_A+3}], 0 offen offset:{it*16}")
    for it in range(4):
        K(f"buffer_load_dwordx4 {v(W+it*4,4)}, v11, s[{R_B}:{R_B+3}], s59 offen")
        if it < 3: K(f"s_add_u32 s59, s59, {8*6144}")
    K("H_NOMOD1:")
    n1 = envint('N1', THR)
    for _ in range(n1):
        K(f"s_mov_b32 m0, s57")
        K(f"buffer_load_dwordx4 v5, s[{R_X}:{R_X+3}], s56 offen lds")
        K(f"s_add_u32 s56, s56, {16*3584}")
        K(f"s_add_u32 s57, s57, 4096")
        state['w1'] += 1
    state['out'] = n1
    K(f"""
    s_cmp_ge_u32 s2, 192
    s_cbranch_scc1 H_NOMOD2
    """)
    K(f"s_waitcnt vmcnt({n1+4})")
    for it in range(4): K(f"v_lshlrev_b32 v{CV+it}, 16, v{CV+it}")
    for it in range(4): K(f"v_mul_f32 v{T+it}, {fconst(-1.4426950408889634)}, v{CV+it}")
    for it in range(4): K(f"v_exp_f32 v{T+it}, v{T+it}")
    for it in range(4): K(f"v_add_f32 v{T+it}, 1.0, v{T+it}")
    for it in range(4): K(f"v_rcp_f32 v{T+it}, v{T+it}")
    for it in range(4): K(f"v_mul_f32 v{T+it}, v{CV+it}, v{T+it}")
    for it in range(4): K(f"v_cvt_pk_bf16_f32 v{CV+it}, v{T+it}, 0")
    for it in range(4): K(f"v_lshlrev_b32 v{CV+4+it}, 16, v{CV+it}")
    for it in range(4):
        K(f"s_waitcnt vmcnt({n1+3-it})")
        for c4 in range(4):
            K(f"v_dot2_f32_bf16 v{AC+2*c4}, v{W+it*4+c4}, v{CV+it}, {'0' if it==0 else 'v%d'%(AC+2*c4)}")
            K(f"v_dot2_f32_bf16 v{AC+2*c4+1}, v{W+it*4+c4}, v{CV+4+it}, {'0' if it==0 else 'v%d'%(AC+2*c4+1)}")
    for e in range(8):
        K(f"v_add_f32_dpp v{AC+e}, v{AC+e}, v{AC+e} row_ror:8 row_mask:0xf bank_mask:0xf")
    for swap in ("v_permlane16_swap_b32", "v_permlane32_swap_b32"):
        for e in range(8): K(f"v_mov_b32 v{T+e}, v{AC+e}")
        for e in range(8): K(f"{swap} v{AC+e}, v{T+e}")
        for e in range(8): K(f"v_add_f32 v{AC+e}, v{AC+e}, v{T+e}")
    K(f"v_mov_b32 v60, v{AC}")
    for e in range(1, 8):
        K(f"v_cmp_eq_u32 vcc, {e}, v62")
        K(f"v_cndmask_b32 v60, v60, v{AC+e}, vcc")
    K(f"""
    v_lshlrev_b32 v61, 3, v63
    v_add_u32 v61, v61, v62
    v_lshlrev_b32 v61, 2, v61
    s_lshl_b32 s52, s60, 8
    v_add_u32 v61, s52, v61
    H_NOMOD2:
    """)
    K("; @restore")
    K.stamp(2)
    w1dma(envint('N2', 2))
    K(f"""
    s_cmp_lg_u32 s{SW}, 0
    s_cbranch_scc1 H_FLW
    """)
    srd(K, R_A, PDBG, 256)
    K(f"""
    v_mov_b32 v13, 0
    H_POLL:
    buffer_load_dword v12, v13, s[{R_A}:{R_A+3}], 0 offen sc1
    s_waitcnt vmcnt(0)
    v_readfirstlane_b32 s52, v12
    s_sub_u32 s{SSPIN}, s{SSPIN}, 1
    s_cbranch_scc1 H_NOPOLL
    s_cmp_eq_u32 s52, 0
    s_cbranch_scc1 H_POLL
    H_NOPOLL:
    v_mov_b32 v12, {LSY}
    v_mov_b32 v13, 1
    s_mov_b64 exec, 1
    ds_write_b32 v12, v13 offset:52
    s_mov_b64 exec, -1
    s_branch H_FLD
    H_FLW:
    v_mov_b32 v12, {LSY}
    """)
    lwait(K, 13, 1, 12, 14, st=27)
    K("H_FLD:")
    K.stamp(4)
    K("; @save")
    K(f"""
    s_cmp_ge_u32 s2, 192
    s_cbranch_scc1 H_NOAT
    """)
    srd(K, R_A, PWS, 12288)
    K(f"""
    buffer_atomic_add_f32 v60, v61, s[{R_A}:{R_A+3}], 0 offen
    H_NOAT:
    """)
    K("; @restore")
    n3 = envint('N3', 1)
    for _ in range(n3):
        K(f"s_mov_b32 m0, s57")
        K(f"buffer_load_dwordx4 v5, s[{R_X}:{R_X+3}], s56 offen lds")
        K(f"s_add_u32 s56, s56, {16*3584}")
        K(f"s_add_u32 s57, s57, 4096")
        state['w1'] += 1
    K(f"s_waitcnt vmcnt({n3})")
    state['out'] = n3
    srd(K, SYNC, PWS, SYNC_BYTES, WS_SYNC)
    K(f"""
    v_mov_b32 v12, {LSY}
    v_mov_b32 v13, 1
    s_mov_b64 exec, 1
    ds_add_rtn_u32 v14, v12, v13 offset:8
    s_waitcnt lgkmcnt(0)
    v_readfirstlane_b32 s27, v14
    s_cmp_lg_u32 s27, 7
    s_cbranch_scc1 H_S1A
    s_lshl_b32 s52, s{SX}, 7
    v_mov_b32 v14, s52
    buffer_atomic_add v13, v14, s[{SYNC}:{SYNC+3}], 0 offen
    H_S1A:
    s_mov_b64 exec, -1
    """)
    state['out'] += 1
    K.stamp(6)
    if envint('GATE1', 0):
        w1dma(envint('W1EARLY', 0))
        K(f"v_mov_b32 v12, {LSY}")
        lwait(K, 3, 1, 12, 14, st=27)
    w1dma(32 - state['w1'])
    K("s_waitcnt vmcnt(0)"); state['out'] = 0
    lsy_regs(K, 12, 13)
    larrive(K, 8, 12, 13)
    K.stamp(12)
    if envint('GATE2', 0):
        lwait(K, 7, 1, 12, 14, st=27)
    w2pf(envint('W2PF', 14))
    K.stamp(13)
    K(f"""
    s_lshr_b32 s55, s55, 1
    v_lshrrev_b32 v4, 3, v1
    v_and_b32 v5, 7, v1
    v_bfe_u32 v6, v1, 4, 1
    v_lshlrev_b32 v6, 1, v6
    v_xor_b32 v14, v5, v6
    v_xor_b32 v15, 4, v14
    v_lshlrev_b32 v4, 10, v4
    s_lshl_b32 s52, s55, 7
    v_add_u32 v4, s52, v4
    v_lshl_add_u32 v5, v14, 4, v4
    v_lshl_add_u32 v6, v15, 4, v4
    s_mul_i32 s61, s{SW}, {448*1024}
    s_mul_i32 s62, s{SW}, {NSLOT_*4096}
    """)
    lwait(K, 9, 4, 12, 14, st=27)
    K.stamp(14)
    THR2 = envint('THR2', 8)
    out = state['out']
    for i in range(4*NSLOT_):
        if out >= THR2:
            K(f"s_waitcnt vmcnt({THR2-1})"); out = THR2-1
        K(f"s_mov_b32 m0, s62")
        K(f"buffer_load_dwordx4 v{5 + (i&1)}, s[{R_U}:{R_U+3}], s61 offen lds")
        K(f"s_add_u32 s61, s61, 8192")
        K(f"s_add_u32 s62, s62, 1024")
        out += 1
    K("s_waitcnt vmcnt(0)")
    if envint('RING2', 0):
        K.stamp(16)
        K(f"s_mul_i32 s61, s{SW}, {448*1024}")
        K(f"s_mul_i32 s62, s{SW}, {NSLOT_*4096}")
        out = 0
        for i in range(4*NSLOT_):
            if out >= THR2:
                K(f"s_waitcnt vmcnt({THR2-1})"); out = THR2-1
            K(f"s_mov_b32 m0, s62")
            K(f"buffer_load_dwordx4 v{5 + (i&1)}, s[{R_U}:{R_U+3}], s61 offen lds")
            K(f"s_add_u32 s61, s61, 8192")
            K(f"s_add_u32 s62, s62, 1024")
            out += 1
        K("s_waitcnt vmcnt(0)")
    larrive(K, 12, 12, 13)
    K.stamp(15)
    if STAMPS:
        K("s_memtime s[100:101]")
        K("s_memrealtime s[62:63]")
        K("s_waitcnt lgkmcnt(0)")
        K("s_mov_b32 s65, s62")
        dump(K)
    K("L_END:")
    K("s_endpgm")
    return K

def dump(K):
    n = 19
    K("s_waitcnt vmcnt(0) lgkmcnt(0)")
    K(f"s_add_u32 s52, s{PWS}, {WS_DBG}")
    K(f"s_addc_u32 s53, s{PWS+1}, 0")
    K("s_mov_b32 s54, 0x1000000")
    K("s_mov_b32 s55, 0x20000")
    for i in range(n):
        K(f"v_writelane_b32 v250, s{64+2*i}, {i}")
    K(f"v_writelane_b32 v250, s65, 20")
    K(f"v_and_b32 v251, 63, v0")
    K(f"v_lshlrev_b32 v251, 2, v251")
    K(f"s_lshl_b32 s56, s2, 3")
    K(f"s_add_u32 s56, s56, s{SW8}")
    K(f"s_lshl_b32 s56, s56, 8")
    K(f"buffer_store_dword v250, v251, s[52:55], s56 offen")
    K("s_waitcnt vmcnt(0)")

if __name__ == "__main__":
    K = gen()
    txt = "; adaLN + FNet (FFT factorised, MFMA) + ReLU FFN, one persistent launch\n"
    if PLAIN: txt += f"; @launch grid=(256,1,1) block=(512,1,1) lds={LDS_TOTAL}\n"
    else: txt += f"; @launch kernel=main_kernel grid=(256,1,1) block=(512,1,1) lds={LDS_TOTAL}\n"
    txt += '.amdgcn_target "amdgcn-amd-amdhsa--gfx950"\n'
    txt += head(K.name) + K.finalize() + desc(K.name, 256, 256)
    out = sys.argv[1] if len(sys.argv) > 1 else f"cdna_kernels/{NAME}.s"
    open(out, "w").write(txt)
    print("wrote", out, len(txt))
```

```python
import sys, os, struct
from asmdsl import *

NAME = "adaLN_cond__spectral_fnet__dense_activation_relu__prompt"
WS_MOD = 0
WS_SYNC = 0x4000
WS_U   = 0x10000
WS_X2  = WS_U + 0x200000
WS_H2  = WS_X2 + 0x200000
WS_H   = WS_H2 + 0x200000
H_BYTES = 2048 * 1792 * 2
PLAIN_DATA = int(os.environ.get('PLAIN_DATA', '0'))
SLOW_OFF = 0x1000000 if PLAIN_DATA else 0
WS_GX = 0x8000
WS_FL = 0x9000
WS_DBG = 0x3000000
STAMPS = bool(int(os.environ.get('STAMPS', '0')))
PLAIN = bool(int(os.environ.get('PLAIN', '0')))
def envint(k, d): return int(os.environ.get(k, d))
W1S = [int(x) for x in os.environ.get('W1S', '4,0,4,4,4,4,4,8').split(',')]
W2S = [int(x) for x in os.environ.get('W2S', '0,0,0,0,0,0,0,4,10').split(',')]
WARM = envint('WARM', 0)
THR = envint('THR', 3)
SC = "sc1"
LDM = os.environ.get('LDM', 'sc1').replace('_', ' ')

LDS_S = 131072
XN, RS1 = LDS_S, 192
OUTB, OUTS = LDS_S + 12288, 144
GB_ = LDS_S
YB, YSTRIDE = LDS_S + 8192, 4880
MODL = YB + 4 * YSTRIDE
LDS_TOTAL = 163840
assert MODL + 3072 <= LDS_TOTAL

NSLOT_ = 9
def fconst(x): return hex(struct.unpack("<I", struct.pack("<f", x))[0])

def srd(K, r, lo, size, add=0):
    if add:
        K(f"s_add_u32 s{r}, s{lo}, {add}")
        K(f"s_addc_u32 s{r+1}, s{lo+1}, 0")
    else:
        K(f"s_mov_b32 s{r}, s{lo}")
        K(f"s_mov_b32 s{r+1}, s{lo+1}")
    K(f"s_mov_b32 s{r+2}, {size}")
    K(f"s_mov_b32 s{r+3}, 0x20000")

def srd_fs(K, r, size, add):
    K(f"""
    s_cmp_eq_u32 s{SFAST}, 0
    s_cselect_b32 s27, {SLOW_OFF}, 0
    s_add_u32 s{r}, s{PWS}, s27
    s_addc_u32 s{r+1}, s{PWS+1}, 0
    s_add_u32 s{r}, s{r}, {add}
    s_addc_u32 s{r+1}, s{r+1}, 0
    s_mov_b32 s{r+2}, {size}
    s_mov_b32 s{r+3}, 0x20000
    """)

def interleave(K, A, B, ratio):
    bi = 0
    for x in A:
        K(x)
        for _ in range(ratio):
            if bi < len(B):
                K(B[bi]); bi += 1
    while bi < len(B):
        K(B[bi]); bi += 1

class Buf:
    def __init__(self): self.L = []
    def __call__(self, text):
        for ln in text.split("\n"):
            ln = ln.strip()
            if ln: self.L.append(ln)

PX, PWS, PW1, PW2, POUT, PDBG, PC, PWM = 4, 6, 8, 10, 12, 14, 16, 18
SW8, SW, SX, SL, SSPIN = 20, 21, 22, 23, 24
SFAST, SNONCE = 25, 26
R_X, R_U, R_MOD, R_A, R_B, SYNC = 28, 32, 36, 40, 44, 48

def gsync(K, lbl, own_off, nlines, target, cnt_addr, is_leader, rel_addr, nrel, my_rel, w_arr, n_arr, w_rel, mid=None):
    K(f"""
    v_mov_b32 v12, {LSY}
    v_mov_b32 v13, 1
    s_mov_b64 exec, 1
    ds_add_rtn_u32 v14, v12, v13 offset:{4*w_arr}
    s_waitcnt lgkmcnt(0)
    v_readfirstlane_b32 s27, v14
    s_cmp_lg_u32 s27, {n_arr-1}
    s_cbranch_scc1 {lbl}_A
    {own_off}
    v_mov_b32 v14, s52
    buffer_atomic_add v13, v14, s[{SYNC}:{SYNC+3}], 0 offen
    {lbl}_A:
    s_mov_b64 exec, -1
    """)
    K("; @save")
    if mid is not None: mid()
    K(f"""
    s_cmp_lg_u32 s{SW8}, 0
    s_cbranch_scc1 {lbl}_W
    {is_leader}
    s_cbranch_scc0 {lbl}_O
    {cnt_addr}
    s_mov_b64 exec, {hex((1 << nlines) - 1)}
    {lbl}_P:
    buffer_load_dword v14, v13, s[{SYNC}:{SYNC+3}], 0 offen sc1
    s_waitcnt vmcnt(0)
    s_sub_u32 s{SSPIN}, s{SSPIN}, 1
    s_cbranch_scc1 {lbl}_R
    v_cmp_gt_u32 vcc, {target}, v14
    s_cbranch_vccnz {lbl}_P
    {lbl}_R:
    s_mov_b64 exec, {hex((1 << nrel) - 1)}
    {rel_addr}
    v_mov_b32 v14, 1
    buffer_store_dword v14, v13, s[{SYNC}:{SYNC+3}], 0 offen sc1
    s_branch {lbl}_X
    {lbl}_O:
    {my_rel}
    s_mov_b64 exec, 1
    {lbl}_Q:
    buffer_load_dword v14, v13, s[{SYNC}:{SYNC+3}], 0 offen sc1
    s_waitcnt vmcnt(0)
    v_readfirstlane_b32 s27, v14
    s_sub_u32 s{SSPIN}, s{SSPIN}, 1
    s_cbranch_scc1 {lbl}_X
    s_cmp_eq_u32 s27, 0
    s_cbranch_scc1 {lbl}_Q
    {lbl}_X:
    s_mov_b64 exec, 1
    v_mov_b32 v12, {LSY}
    v_mov_b32 v13, 1
    ds_write_b32 v12, v13 offset:{4*w_rel}
    s_mov_b64 exec, -1
    s_branch {lbl}_D
    {lbl}_W:
    v_mov_b32 v12, {LSY}
    """)
    lwait(K, w_rel, 1, 12, 14, st=27)
    K(f"{lbl}_D:")

def gsync_group(K, lbl, which, base, w_arr, w_rel, mid):
    K(f"""
    s_cmp_eq_u32 s{SFAST}, 0
    s_cbranch_scc1 {lbl}_SLOW
    """)
    K("; @save")
    srd(K, SYNC, PWS, 0x10000)
    K(f"""
    v_mov_b32 v12, {LSY}
    v_mov_b32 v13, 1
    s_mov_b64 exec, 1
    ds_add_rtn_u32 v14, v12, v13 offset:{4*w_arr}
    s_waitcnt lgkmcnt(0)
    v_readfirstlane_b32 s27, v14
    s_lshl_b32 s52, s54, 7
    s_add_u32 s52, s52, {WS_FL + which*2048}
    s_cmp_lg_u32 s27, 3
    s_cbranch_scc1 {lbl}_FA
    s_and_b32 s53, s{SL}, 1
    s_lshr_b32 s63, s{SL}, 2
    s_lshl_b32 s63, s63, 1
    s_add_u32 s53, s53, s63
    s_lshl_b32 s53, s53, 2
    v_mov_b32 v14, s53
    v_mov_b32 v13, s{SNONCE}
    buffer_store_dword v13, v14, s[{SYNC}:{SYNC+3}], s52 offen
    {lbl}_FA:
    s_mov_b64 exec, -1
    s_mov_b32 s63, s52
    """)
    mid(f"{lbl}F")
    K(f"""
    s_cmp_lg_u32 s{SW8}, 0
    s_cbranch_scc1 {lbl}_FW
    v_lshlrev_b32 v13, 2, v1
    s_mov_b64 exec, 0xffff
    {lbl}_FP:
    buffer_load_dword v14, v13, s[{SYNC}:{SYNC+3}], s63 offen sc1
    s_waitcnt vmcnt(0)
    s_sub_u32 s{SSPIN}, s{SSPIN}, 1
    s_cbranch_scc1 {lbl}_FX
    v_cmp_ne_u32 vcc, s{SNONCE}, v14
    s_cbranch_vccnz {lbl}_FP
    {lbl}_FX:
    s_mov_b64 exec, 1
    v_mov_b32 v12, {LSY}
    v_mov_b32 v13, 1
    ds_write_b32 v12, v13 offset:{4*w_rel}
    s_mov_b64 exec, -1
    s_branch {lbl}_DONE
    {lbl}_FW:
    v_mov_b32 v12, {LSY}
    """)
    lwait(K, w_rel, 1, 12, 14, st=27)
    K(f"s_branch {lbl}_DONE")
    K(f"{lbl}_SLOW:")
    K("; @restore")
    srd(K, SYNC, PWS, SYNC_BYTES, WS_SYNC)
    gsync(K, lbl, f"s_lshl_b32 s52, s54, 7\n s_add_u32 s52, s52, {base*128}", 1, 16,
          f"s_lshl_b32 s52, s54, 7\n s_add_u32 s52, s52, {base*128}\n v_mov_b32 v13, s52",
          f"s_and_b32 s52, s{SL}, 29\n s_cmp_eq_u32 s52, 0",
          f"s_lshl_b32 s52, s54, 7\n s_add_u32 s52, s52, {(base+16)*128}\n v_mov_b32 v13, s52", 1,
          f"s_lshl_b32 s52, s54, 7\n s_add_u32 s52, s52, {(base+16)*128}\n v_mov_b32 v13, s52", w_arr, 4, w_rel, mid=lambda: mid(f"{lbl}S"))
    K(f"{lbl}_DONE:")

SYNC_BYTES = 88 * 128

LSY = MODL + 3072
VSY, VONE, VTMP = 244, 245, 246
_lcnt = [0]
def lsy_regs(K, a, o):
    K(f"v_mov_b32 v{a}, {LSY}")
    K(f"v_mov_b32 v{o}, 1")
def larrive(K, word, a, o):
    K(f"""
    s_mov_b64 exec, 1
    ds_add_u32 v{a}, v{o} offset:{4*word}
    s_mov_b64 exec, -1
    """)
def lwait(K, word, n, a, t, st=53):
    _lcnt[0] += 1
    L = f"LW{_lcnt[0]}"
    K(f"""
    {L}:
    ds_read_b32 v{t}, v{a} offset:{4*word}
    s_waitcnt lgkmcnt(0)
    v_readfirstlane_b32 s{st}, v{t}
    s_cmp_lt_u32 s{st}, {n}
    s_cbranch_scc1 {L}
    """)
def lsync(K, word, a=12, o=13, t=14):
    lsy_regs(K, a, o)
    larrive(K, word, a, o)
    lwait(K, word, 4, a, t, st=27)

def unpack8(K, src, dst):
    for p in range(4):
        K(f"v_lshlrev_b32 v{dst+2*p}, 16, v{src+p}")
        K(f"v_and_b32 v{dst+2*p+1}, 0xffff0000, v{src+p}")

P4ST = envint('P4ST', 0)
def gen():
    kname = f"{NAME}_kernel" if PLAIN else "main_kernel"
    K = Kernel(kname); K.stamps_on = STAMPS
    if P4ST:
        _orig = K.stamp
        def stamp(i, real=False, force=False):
            if force or i in (0, 1) or i >= 16 or getattr(K, 'in_helper', False): _orig(i, real)
        K.stamp = stamp
    K.stamp(0, real=True); K.stamp(1)
    K(f"""
    s_load_dwordx2 s[{PX}:{PX+1}], s[0:1], 0
    s_load_dwordx2 s[{PWS}:{PWS+1}], s[0:1], 96
    s_load_dwordx4 s[{PW1}:{PW1+3}], s[0:1], 48
    s_load_dwordx4 s[{PC}:{PC+3}], s[0:1], 64
    s_load_dwordx4 s[{POUT}:{POUT+3}], s[0:1], 80
    s_cmp_ge_u32 s2, 256
    s_cbranch_scc1 L_END
    v_and_b32 v1, 63, v0
    v_lshrrev_b32 v4, 6, v0
    v_readfirstlane_b32 s{SW8}, v4
    s_and_b32 s{SX}, s2, 7
    s_lshr_b32 s{SL}, s2, 3
    s_mov_b32 s{SSPIN}, 400000
    v_lshrrev_b32 v2, 4, v1
    v_and_b32 v3, 15, v1
    s_and_b32 s{SW}, s{SW8}, 3
    v_lshlrev_b32 v4, 2, v1
    v_add_u32 v4, {LSY}, v4
    v_mov_b32 v5, 0
    s_mov_b32 exec_hi, 0
    ds_write_b32 v4, v5
    s_mov_b64 exec, -1
    s_waitcnt lgkmcnt(0)
    s_barrier
    s_cmp_ge_u32 s{SW8}, 4
    s_cbranch_scc1 L_HELPER
    """)
    X = 8; CB = 72; T = 88
    K(f"""
    s_and_b32 s54, s2, 31
    s_lshr_b32 s55, s2, 5
    v_lshrrev_b32 v5, 3, v1
    v_and_b32 v6, 7, v1
    s_lshl_b32 s52, s{SW}, 4
    v_add_u32 v7, s52, v5
    v_lshlrev_b32 v4, 15, v7
    v_lshl_add_u32 v4, v6, 4, v4
    s_lshl_b32 s52, s54, 10
    v_add_u32 v4, s52, v4
    v_add_u32 v7, 0x40000, v4
    """)
    for j in range(8):
        K(f"s_add_u32 s{56+j}, s55, {j}")
        K(f"s_and_b32 s{56+j}, s{56+j}, 7")
        K(f"s_lshl_b32 s{56+j}, s{56+j}, 7")
    K("s_waitcnt lgkmcnt(0)")
    srd(K, R_X, PX, 0x200000)
    LD = Buf()
    for j in range(8):
        for u in range(2):
            LD(f"buffer_load_dwordx4 {v(X+(j*2+u)*4,4)}, v{4 if u == 0 else 7}, s[{R_X}:{R_X+3}], s{56+j} offen{' nt' if envint('XNT',0) else ''}")
    vo, vsl, vc, vd, vb, vf, vd8, vst = T, T+1, T+2, T+3, T+4, T+5, T+6, T+7
    tt = T+8
    vw, vr, vow, vor = T+16, T+17, T+18, T+19
    C = Buf()
    C(f"""
    s_lshr_b32 s52, s{SW}, 1
    s_lshl_b32 s52, s52, 5
    v_and_b32 v{vo}, 31, v1
    v_add_u32 v{vo}, s52, v{vo}
    v_lshrrev_b32 v{vsl}, 1, v{vo}
    v_and_b32 v{vc}, 1, v{vo}
    v_cvt_f32_u32 v{vd}, v{vsl}
    v_mul_f32 v{vd}, {fconst(1/64)}, v{vd}
    v_mul_u32_u24 v{vb}, s54, v{vsl}
    v_cvt_f32_u32 v{vb}, v{vb}
    v_mul_f32 v{vb}, {fconst(1/2048)}, v{vb}
    v_cvt_f32_u32 v{vf}, v{vc}
    v_fmac_f32 v{vb}, 0.25, v{vf}
    v_cmp_eq_u32 vcc, 1, v{vo}
    v_mov_b32 v{vd8}, 0.5
    v_mov_b32 v{vst}, 0
    v_cndmask_b32 v{vd}, v{vd}, v{vd8}, vcc
    v_cndmask_b32 v{vb}, v{vb}, v{vst}, vcc
    v_lshrrev_b32 v{vf}, 5, v1
    v_cvt_f32_u32 v{vf}, v{vf}
    v_mul_f32 v{vd8}, {fconst(8.0)}, v{vd}
    v_fma_f32 v{vf}, v{vf}, v{vd8}, v{vb}
    """)
    for st in range(4):
        for j in range(8):
            C(f"v_cos_f32 v{tt+j}, v{vf}")
            C(f"v_add_f32 v{vf}, v{vf}, v{vd}")
        C(f"v_add_f32 v{vf}, v{vf}, v{vd8}")
        for p in range(4):
            C(f"v_cvt_pk_bf16_f32 v{CB+st*4+p}, v{tt+2*p}, v{tt+2*p+1}")
    C(f"""
    s_lshl_b32 s52, s{SW}, 4
    v_add_u32 v{vw}, s52, v5
    v_mul_u32_u24 v{vw}, {RS1}, v{vw}
    v_lshl_add_u32 v{vw}, v6, 4, v{vw}
    v_add_u32 v{vw}, {XN}, v{vw}
    v_lshrrev_b32 v{tt}, 5, v1
    v_lshlrev_b32 v{tt}, 3, v{tt}
    v_bfe_u32 v{tt+1}, v1, 2, 2
    v_add_u32 v{tt}, v{tt}, v{tt+1}
    v_mul_u32_u24 v{vr}, {RS1}, v{tt}
    v_bfe_u32 v{tt}, v1, 4, 1
    v_lshlrev_b32 v{tt}, 5, v{tt}
    v_add_u32 v{vr}, v{vr}, v{tt}
    v_and_b32 v{tt}, 3, v1
    v_lshl_add_u32 v{vr}, v{tt}, 3, v{vr}
    s_and_b32 s52, s{SW}, 1
    s_lshl_b32 s52, s52, 6
    s_add_u32 s52, s52, {XN}
    v_add_u32 v{vr}, s52, v{vr}
    v_mul_u32_u24 v{vow}, {OUTS}, v{vo}
    v_lshrrev_b32 v{tt}, 5, v1
    v_lshl_add_u32 v{vow}, v{tt}, 4, v{vow}
    s_and_b32 s52, s{SW}, 1
    s_lshl_b32 s52, s52, 6
    s_add_u32 s52, s52, {OUTB}
    v_add_u32 v{vow}, s52, v{vow}
    s_lshl_b32 s52, s{SW}, 4
    v_add_u32 v{tt}, s52, v5
    v_mul_u32_u24 v{vor}, {OUTS}, v{tt}
    v_lshl_add_u32 v{vor}, v6, 4, v{vor}
    v_add_u32 v{vor}, {OUTB}, v{vor}
    v_lshrrev_b32 v{tt+1}, 1, v{tt}
    v_lshlrev_b32 v{vst}, 6, v{tt+1}
    v_and_b32 v{tt+1}, 1, v{tt}
    v_add_u32 v{vst}, v{vst}, v{tt+1}
    s_lshl_b32 s52, s54, 1
    v_add_u32 v{vst}, s52, v{vst}
    v_lshlrev_b32 v{vst}, 10, v{vst}
    v_lshl_add_u32 v{vst}, v6, 4, v{vst}
    s_lshl_b32 s53, s55, 7
    s_mov_b32 s52, 0x3f803f80
    """)
    interleave(K, LD.L, C.L, 9)
    srd(K, R_U, PWS, 0x200000, WS_U)
    srd(K, SYNC, PWS, SYNC_BYTES, WS_SYNC)
    srd(K, R_MOD, PWS, 12288)
    K.stamp(2)
    S0, Q0, S1_, Q1 = T+20, T+21, T+22, T+23
    acc = [(S0, Q0), (S1_, Q1)]
    for j in range(8):
        K(f"s_waitcnt vmcnt({14-2*j})")
        for c4 in range(4):
            for u in range(2):
                x = X+(j*2+u)*4+c4
                first = (j == 0 and c4 == 0)
                K(f"v_dot2_f32_bf16 v{acc[u][0]}, v{x}, s52, {'0' if first else 'v%d' % acc[u][0]}")
                K(f"v_dot2_f32_bf16 v{acc[u][1]}, v{x}, v{x}, {'0' if first else 'v%d' % acc[u][1]}")
    K.stamp(3)
    N = T+24
    un = Buf()
    for u in range(2):
        for c4 in range(4):
            x = X+u*4+c4
            un(f"v_lshlrev_b32 v{N+u*8+2*c4}, 16, v{x}")
            un(f"v_and_b32 v{N+u*8+2*c4+1}, 0xffff0000, v{x}")
    ui = 0
    for perm in ("quad_perm:[1,0,3,2]", "quad_perm:[2,3,0,1]", "row_half_mirror"):
        for r in (S0, Q0, S1_, Q1):
            K(f"v_add_f32_dpp v{r}, v{r}, v{r} {perm} row_mask:0xf bank_mask:0xf")
        for _ in range(2): K(un.L[ui]); ui += 1
    for u in range(2):
        K(f"v_mul_f32 v{acc[u][0]}, {fconst(1/512)}, v{acc[u][0]}")
        K(f"v_mul_f32 v{acc[u][1]}, {fconst(1/512)}, v{acc[u][1]}")
    for u in range(2): K(f"v_fma_f32 v{acc[u][1]}, -v{acc[u][0]}, v{acc[u][0]}, v{acc[u][1]}")
    for u in range(2): K(f"v_max_f32 v{acc[u][1]}, 0, v{acc[u][1]}")
    for u in range(2): K(f"v_add_f32 v{acc[u][1]}, {fconst(1e-5)}, v{acc[u][1]}")
    for u in range(2): K(f"v_rsq_f32 v{acc[u][1]}, v{acc[u][1]}")
    while ui < len(un.L): K(un.L[ui]); ui += 1
    for u in range(2): K(f"v_mul_f32 v{acc[u][0]}, v{acc[u][0]}, v{acc[u][1]}")
    for u in range(2):
        sm, sq = acc[u]
        for e in range(8):
            K(f"v_fma_f32 v{N+u*8+e}, v{N+u*8+e}, v{sq}, -v{sm}")
        P = X+16+u*4
        for c4 in range(4):
            K(f"v_cvt_pk_bf16_f32 v{P+c4}, v{N+u*8+2*c4}, v{N+u*8+2*c4+1}")
        K(f"ds_write_b128 v{vw}, {v(P,4)} offset:{u*8*RS1}")
    K.stamp(4)
    lsync(K, 0, a=T+40, o=T+41, t=T+42)
    AF = X
    for st in range(4):
        for rd in range(2):
            K(f"ds_read_b64_tr_b16 {v(AF+st*4+rd*2,2)}, v{vr} offset:{(16*st+4*rd)*RS1}")
    ACC = X+32
    for st in range(4):
        K(f"s_waitcnt lgkmcnt({6-2*st})")
        K(f"v_mfma_f32_32x32x16_bf16 {v(ACC,16)}, {v(AF+st*4,4)}, {v(CB+st*4,4)}, {'0' if st==0 else v(ACC,16)}")
    sstore = 53
    K(f"s_mov_b32 s62, s53")
    K(f"""
    s_lshl_b32 s54, s{SX}, 2
    s_and_b32 s55, s{SL}, 3
    s_add_u32 s54, s54, s55
    s_lshr_b32 s55, s{SL}, 2
    s_lshl_b32 s56, s55, 2
    s_add_u32 s56, s56, s{SW}
    s_lshl_b32 s57, s56, 6
    s_cmp_eq_u32 s54, 0
    s_cbranch_scc1 P2_SLOT0
    s_add_u32 s58, s54, s57
    s_sub_u32 s59, 2048, s58
    s_branch P2_TOKD
    P2_SLOT0:
    s_cmp_lt_u32 s56, 16
    s_cbranch_scc1 P2_SLOT0A
    s_sub_u32 s58, s57, {64*16-32}
    s_sub_u32 s59, 2048, s58
    s_branch P2_TOKD
    P2_SLOT0A:
    s_mov_b32 s58, s57
    s_sub_u32 s59, 2048, s57
    s_cmp_eq_u32 s56, 0
    s_cselect_b32 s59, 1024, s59
    P2_TOKD:
    s_lshl_b32 s58, s58, 10
    s_lshl_b32 s59, s59, 10
    s_or_b32 s63, s54, s56
    """)
    PK = X+48
    for q in range(4):
        K(f"v_cvt_pk_bf16_f32 v{PK+2*q}, v{ACC+4*q}, v{ACC+4*q+1}")
        K(f"v_cvt_pk_bf16_f32 v{PK+2*q+1}, v{ACC+4*q+2}, v{ACC+4*q+3}")
    for pr in range(2):
        K(f"v_permlane32_swap_b32 v{PK+4*pr}, v{PK+4*pr+2}")
        K(f"v_permlane32_swap_b32 v{PK+4*pr+1}, v{PK+4*pr+3}")
    for pr in range(2):
        K(f"ds_write_b128 v{vow}, {v(PK+4*pr,4)} offset:{pr*32}")
    lsync(K, 1, a=T+40, o=T+41, t=T+42)
    K(f"ds_read_b128 {v(X,4)}, v{vor}")
    K(f"ds_read_b128 {v(X+4,4)}, v{vor} offset:{8*OUTS}")
    K(f"s_add_u32 s61, s62, {256*1024}")
    K("s_waitcnt lgkmcnt(1)")
    K(f"buffer_store_dwordx4 {v(X,4)}, v{vst}, s[{R_U}:{R_U+3}], s62 offen {SC}")
    K("s_waitcnt lgkmcnt(0)")
    K(f"buffer_store_dwordx4 {v(X+4,4)}, v{vst}, s[{R_U}:{R_U+3}], s61 offen {SC}")
    RAW, FR, K1F, XA, XB, MSH = 16, 80, 144, 152, 156, 160
    AS, CC, CS, CN, TWC, TWS, MM, MP, SA = 184, 192, 200, 208, 216, 224, 232, 236, 240
    K(f"v_lshlrev_b32 v6, 4, v1")
    K(f"buffer_load_dwordx4 {v(XA,4)}, v6, s[{R_X}:{R_X+3}], s58 offen")
    K(f"buffer_load_dwordx4 {v(XB,4)}, v6, s[{R_X}:{R_X+3}], s59 offen")
    K.stamp(5)
    GW, GR, YW, YN, YM, YS, HW, HR = 248, 249, 250, 251, 252, 253, 254, 255
    def p2_consts():
        f, p0, p1, a0, a1 = 8, 9, 10, 11, 15
        K(f"""
        v_lshrrev_b32 v16, 1, v3
        v_and_b32 v17, 1, v3
        s_lshl_b32 s52, s55, 2
        v_add_u32 v16, s52, v16
        v_cvt_f32_u32 v18, v17
        v_mul_f32 v18, 0.25, v18
        v_cvt_f32_u32 v{f}, v16
        v_mov_b32 v{a0}, 1.0
        v_mov_b32 v{a1}, 1.0
        s_cmp_eq_u32 s54, 0
        s_cbranch_scc1 P2_C0
        v_mul_f32 v{f}, {fconst(1/32)}, v{f}
        v_mov_b32 v{p0}, v18
        v_add_f32 v{p1}, {fconst(-0.25)}, v18
        s_branch P2_CD
        P2_C0:
        s_cmp_lt_u32 s55, 4
        s_cbranch_scc0 P2_C0B
        v_mul_f32 v{f}, {fconst(1/32)}, v{f}
        v_mov_b32 v{p0}, v18
        v_mov_b32 v{p1}, 0
        v_mov_b32 v{a1}, 0
        v_cmp_eq_u32 vcc, 0, v16
        v_add_f32 v18, v18, v18
        v_cndmask_b32 v{f}, v{f}, v18, vcc
        v_mov_b32 v18, 0
        v_cndmask_b32 v{p0}, v{p0}, v18, vcc
        s_branch P2_CD
        P2_C0B:
        v_add_f32 v{f}, v{f}, v{f}
        v_add_f32 v{f}, {fconst(-31.0)}, v{f}
        v_mul_f32 v{f}, {fconst(1/64)}, v{f}
        v_mov_b32 v{p0}, 0
        v_mov_b32 v{p1}, v18
        v_mov_b32 v{a0}, 0
        P2_CD:
        v_cmp_gt_u32 vcc, 8, v3
        v_mov_b32 v18, 0
        v_cndmask_b32 v{a0}, v18, v{a0}, vcc
        v_cndmask_b32 v{a1}, v18, v{a1}, vcc
        v_lshlrev_b32 v16, 2, v2
        v_cvt_f32_u32 v16, v16
        v_mul_f32 v16, v16, v{f}
        """)
        for st in range(2):
            for jj in range(4):
                t = 20 + 2*(jj % 2)
                K(f"v_add_f32 v{t}, v16, v{p0}")
                K(f"v_add_f32 v{t+1}, v16, v{p1}")
                K(f"v_cos_f32 v{t}, v{t}")
                K(f"v_cos_f32 v{t+1}, v{t+1}")
                K(f"v_add_f32 v16, v16, v{f}")
                K(f"v_mul_f32 v{t}, v{t}, v{a0}")
                K(f"v_mul_f32 v{t+1}, v{t+1}, v{a1}")
                K(f"v_cvt_pk_bf16_f32 v{AS+st*4+jj}, v{t}, v{t+1}")
            if st == 0:
                K(f"v_mul_f32 v17, {fconst(12.0)}, v{f}")
                K(f"v_add_f32 v16, v16, v17")
        K(f"""
        v_cvt_f32_u32 v8, v3
        v_mul_f32 v8, {fconst(1/32)}, v8
        v_lshlrev_b32 v9, 3, v2
        v_cvt_f32_u32 v9, v9
        v_mul_f32 v9, v9, v8
        """)
        for p in range(4):
            K(f"v_add_f32 v10, v9, v8")
            K(f"v_cos_f32 v16, v9")
            K(f"v_cos_f32 v17, v10")
            K(f"v_sin_f32 v18, v9")
            K(f"v_sin_f32 v19, v10")
            K(f"v_add_f32 v9, v10, v8")
            K(f"v_cvt_pk_bf16_f32 v{CC+p}, v16, v17")
            K(f"v_cvt_pk_bf16_f32 v{CS+p}, v18, v19")
        for p in range(4):
            K(f"v_xor_b32 v{CC+4+p}, 0x80000000, v{CC+p}")
            K(f"v_xor_b32 v{CS+4+p}, 0x80000000, v{CS+p}")
            K(f"v_xor_b32 v{CN+p}, 0x80008000, v{CS+p}")
            K(f"v_xor_b32 v{CN+4+p}, 0x00008000, v{CS+p}")
        K(f"v_lshlrev_b32 v8, 2, v2")
        for tau in range(2):
            K(f"v_add_u32 v9, {16*tau}, v3")
            for r in range(4):
                K(f"v_add_u32 v{16+r}, {r}, v8")
            for r in range(4):
                K(f"v_mul_u32_u24 v{16+r}, v{16+r}, v9")
            for r in range(4):
                K(f"v_cvt_f32_u32 v{16+r}, v{16+r}")
            for r in range(4):
                K(f"v_mul_f32 v{16+r}, {fconst(1/512)}, v{16+r}")
            for r in range(4):
                K(f"v_cos_f32 v{TWC+tau*4+r}, v{16+r}")
                K(f"v_sin_f32 v{TWS+tau*4+r}, v{16+r}")
        for jj in range(4): K(f"v_add_u32 v{16+jj}, {jj}, v8")
        for jj in range(4): K(f"v_mul_u32_u24 v{16+jj}, v{16+jj}, v3")
        for jj in range(4): K(f"v_cvt_f32_u32 v{16+jj}, v{16+jj}")
        for jj in range(4): K(f"v_mul_f32 v{16+jj}, {fconst(1/16)}, v{16+jj}")
        for jj in range(4):
            K(f"v_cos_f32 v{20+jj}, v{16+jj}")
            K(f"v_sin_f32 v{24+jj}, v{16+jj}")
        for p in range(2):
            K(f"v_cvt_pk_bf16_f32 v{MM+p}, v{20+2*p}, v{21+2*p}")
            K(f"v_cvt_pk_bf16_f32 v{MM+2+p}, v{24+2*p}, v{25+2*p}")
        for p in range(2):
            K(f"v_xor_b32 v{MP+p}, 0x80008000, v{MM+2+p}")
            K(f"v_mov_b32 v{MP+2+p}, v{MM+p}")
        K(f"""
        v_lshlrev_b32 v{GW}, 12, v2
        v_lshl_add_u32 v{GW}, v3, 4, v{GW}
        s_lshl_b32 s52, s{SW}, 8
        s_add_u32 s52, s52, {GB_}
        v_add_u32 v{GW}, s52, v{GW}
        v_lshlrev_b32 v8, 3, v2
        v_bfe_u32 v9, v1, 2, 2
        v_add_u32 v8, v8, v9
        v_lshlrev_b32 v{GR}, 5, v8
        v_and_b32 v9, 3, v1
        v_lshl_add_u32 v{GR}, v9, 3, v{GR}
        s_lshl_b32 s52, s{SW}, 11
        s_add_u32 s52, s52, {GB_}
        v_add_u32 v{GR}, s52, v{GR}
        s_mul_i32 s52, s{SW}, {YSTRIDE}
        s_add_u32 s52, s52, {YB}
        v_mul_u32_u24 v{YW}, 144, v3
        v_lshl_add_u32 v{YW}, v2, 4, v{YW}
        v_add_u32 v{YW}, s52, v{YW}
        v_lshrrev_b32 v8, 2, v1
        v_lshlrev_b32 v8, 4, v8
        v_lshl_add_u32 v{YN}, v1, 5, v8
        v_add_u32 v{YN}, s52, v{YN}
        v_sub_u32 v8, 63, v1
        v_lshrrev_b32 v9, 2, v8
        v_lshlrev_b32 v9, 4, v9
        v_lshl_add_u32 v{YM}, v8, 5, v9
        v_add_u32 v{YM}, s52, v{YM}
        v_sub_u32 v8, 64, v1
        v_and_b32 v8, 63, v8
        v_lshrrev_b32 v9, 2, v8
        v_lshlrev_b32 v9, 4, v9
        v_lshl_add_u32 v{YS}, v8, 5, v9
        v_add_u32 v{YS}, s52, v{YS}
        v_add_u32 v{HW}, s52, v6
        v_and_b32 v8, 7, v1
        v_lshrrev_b32 v9, 1, v8
        v_mul_u32_u24 v{HR}, {YSTRIDE}, v9
        v_and_b32 v9, 1, v8
        v_mul_u32_u24 v9, 1088, v9
        v_add_u32 v{HR}, v{HR}, v9
        v_lshrrev_b32 v9, 3, v1
        v_lshl_add_u32 v{HR}, v9, 4, v{HR}
        s_lshr_b32 s52, s{SW}, 1
        s_mul_i32 s52, s52, 2176
        s_and_b32 s53, s{SW}, 1
        s_lshl_b32 s53, s53, 9
        s_add_u32 s52, s52, s53
        s_add_u32 s52, s52, {YB}
        v_add_u32 v{HR}, s52, v{HR}
        s_lshl_b32 s52, s54, 16
        v_lshlrev_b32 v4, 13, v2
        v_lshl_add_u32 v4, v3, 4, v4
        s_lshl_b32 s53, s{SW}, 8
        s_add_u32 s52, s52, s53
        v_add_u32 v4, s52, v4
        v_lshlrev_b32 v5, 5, v3
        s_lshl_b32 s53, s{SW}, 9
        v_add_u32 v5, s53, v5
        v_lshlrev_b32 v7, 5, v1
        s_movk_i32 s60, 0x1000
        s_mov_b32 s61, 0x8000
        s_mov_b32 s62, 0x9000
        s_add_u32 s57, s{SW}, 2
        s_lshl_b32 s57, s57, 11
        """)
    K("s_waitcnt vmcnt(0)")
    K.stamp(6)
    gsync(K, "S1", f"s_lshl_b32 s52, s{SX}, 7", 8, 32, "v_lshlrev_b32 v13, 7, v1", "s_cmp_eq_u32 s2, 0",
          "v_lshlrev_b32 v13, 7, v1\n v_add_u32 v13, 1024, v13", 16,
          "s_and_b32 s52, s2, 15\n s_lshl_b32 s52, s52, 7\n s_add_u32 s52, s52, 1024\n v_mov_b32 v13, s52", 2, 8, 3, mid=p2_consts)
    K.stamp(7)
    late = Buf()
    for st in range(2):
        for j in range(8):
            so = ["0", "s60", "s61", "s62"][st*2 + j//4]
            t = f"buffer_load_dwordx4 {v(RAW+st*32+j*4,4)}, v4, s[{R_U}:{R_U+3}], {so} offen offset:{(j%4)*1024} {SC}"
            if st == 0 or j < envint('P2E', 2): K(t)
            else: late(t)
            if st == 0 and j == 3:
                K(f"buffer_load_dwordx4 {v(K1F,4)}, v5, s[{R_MOD}:{R_MOD+3}], 0 offen offset:2048 {SC}")
                K(f"buffer_load_dwordx4 {v(K1F+4,4)}, v5, s[{R_MOD}:{R_MOD+3}], 0 offen offset:2064 {SC}")
    srd(K, R_B, PWS, 0x10000)
    K(f"""
    s_bfe_u32 s52, s{SL}, 0x10001
    s_lshl_b32 s53, s{SX}, 1
    s_add_u32 s52, s52, s53
    s_lshl_b32 s27, s52, 7
    s_add_u32 s27, s27, {WS_GX}
    v_lshlrev_b32 v172, 2, v3
    """)
    late(f"buffer_load_dword v173, v172, s[{R_B}:{R_B+3}], s27 offen {SC}")
    late(f"buffer_load_dwordx4 {v(MSH,4)}, v7, s[{R_MOD}:{R_MOD+3}], s57 offen {SC}")
    late(f"buffer_load_dwordx4 {v(MSH+4,4)}, v7, s[{R_MOD}:{R_MOD+3}], s57 offen offset:16 {SC}")
    K(f"s_mov_b32 s52, 0x05040100")
    K(f"s_mov_b32 s53, 0x07060302")
    K.stamp(8)
    def rowfft(GRf, GIf, outR, outI, have_imag):
        TR, TI, TP, W2 = 96, 104, 112, 120
        for tau in range(2):
            K(f"v_mfma_f32_16x16x32_bf16 {v(TR+tau*4,4)}, {v(GRf,4)}, {v(CC+tau*4,4)}, 0")
            K(f"v_mfma_f32_16x16x32_bf16 {v(TI+tau*4,4)}, {v(GRf,4)}, {v(CN+tau*4,4)}, 0")
        if have_imag:
            for tau in range(2):
                K(f"v_mfma_f32_16x16x32_bf16 {v(TR+tau*4,4)}, {v(GIf,4)}, {v(CS+tau*4,4)}, {v(TR+tau*4,4)}")
                K(f"v_mfma_f32_16x16x32_bf16 {v(TI+tau*4,4)}, {v(GIf,4)}, {v(CC+tau*4,4)}, {v(TI+tau*4,4)}")
        for tau in range(2):
            for r in range(4):
                i = tau*4+r
                K(f"v_mul_f32 v{W2+i}, v{TR+i}, v{TWC+i}")
                K(f"v_mul_f32 v{W2+8+i}, v{TI+i}, v{TWC+i}")
            for r in range(4):
                i = tau*4+r
                K(f"v_fma_f32 v{W2+i}, v{TI+i}, v{TWS+i}, v{W2+i}")
                K(f"v_fma_f32 v{W2+8+i}, -v{TR+i}, v{TWS+i}, v{W2+8+i}")
            K(f"v_cvt_pk_bf16_f32 v{TP+tau*4+0}, v{W2+tau*4+0}, v{W2+tau*4+1}")
            K(f"v_cvt_pk_bf16_f32 v{TP+tau*4+1}, v{W2+tau*4+2}, v{W2+tau*4+3}")
            K(f"v_cvt_pk_bf16_f32 v{TP+tau*4+2}, v{W2+8+tau*4+0}, v{W2+8+tau*4+1}")
            K(f"v_cvt_pk_bf16_f32 v{TP+tau*4+3}, v{W2+8+tau*4+2}, v{W2+8+tau*4+3}")
        for tau in range(2):
            K(f"v_mfma_f32_16x16x32_bf16 {v(outR+tau*4,4)}, {v(TP+tau*4,4)}, {v(MM,4)}, 0")
        if outI is not None:
            for tau in range(2):
                K(f"v_mfma_f32_16x16x32_bf16 {v(outI+tau*4,4)}, {v(TP+tau*4,4)}, {v(MP,4)}, 0")
    K("; @save")
    K(f"""
    s_cmp_lg_u32 s63, 0
    s_cbranch_scc1 P2_NOSA
    buffer_load_dwordx4 {v(128,4)}, v7, s[{R_MOD}:{R_MOD+3}], 0 offen {SC}
    buffer_load_dwordx4 {v(132,4)}, v7, s[{R_MOD}:{R_MOD+3}], 0 offen offset:16 {SC}
    s_waitcnt vmcnt(0)
    """)
    for p in range(4): K(f"v_cvt_pk_bf16_f32 v{136+p}, v{128+2*p}, v{129+2*p}")
    unpack8(K, 136, 128)
    for e in range(8): K(f"v_mul_f32 v{128+e}, {fconst(2048.0)}, v{128+e}")
    for p in range(4): K(f"v_cvt_pk_bf16_f32 v{136+p}, v{128+2*p}, v{129+2*p}")
    K(f"""
    ds_write_b128 v{HW}, {v(136,4)}
    v_add_u32 v8, {YB - GB_}, v{GR}
    s_waitcnt lgkmcnt(0)
    ds_read_b64_tr_b16 {v(140,2)}, v8
    ds_read_b64_tr_b16 {v(142,2)}, v8 offset:128
    s_waitcnt lgkmcnt(0)
    """)
    rowfft(140, None, SA, None, False)
    K("P2_NOSA:")
    K("; @restore")
    K(f"s_waitcnt vmcnt({envint('P2E', 2)})")
    K.stamp(9)
    KP = 168
    for p in range(4): K(f"v_cvt_pk_bf16_f32 v{KP+p}, v{K1F+2*p}, v{K1F+2*p+1}")
    def perms(st, extra=None):
        n = 0
        for i in range(8):
            for p in range(4):
                c4, hb = i//2, i%2
                K(f"v_perm_b32 v{FR+st*32+i*4+p}, v{RAW+st*32+(2*p+1)*4+c4}, v{RAW+st*32+(2*p)*4+c4}, s{52+hb}")
                n += 1
                if extra and n % 3 == 0: K(extra.pop(0))
        while extra: K(extra.pop(0))
    perms(0, late.L)
    unpack8(K, KP, K1F)
    for e in range(8): K(f"v_add_f32 v{K1F+e}, 1.0, v{K1F+e}")
    ACC = 172
    ACC = RAW
    for i in range(8):
        K(f"v_mfma_f32_16x16x32_bf16 {v(ACC+i*4,4)}, {v(AS,4)}, {v(FR+i*4,4)}, 0")
        if i < 4: K(f"v_cvt_pk_bf16_f32 v{KP+i}, v{K1F+2*i}, v{K1F+2*i+1}")
    K(f"s_waitcnt vmcnt(3)")
    perms(1)
    unpack8(K, KP, K1F)
    for i in range(8):
        K(f"v_mfma_f32_16x16x32_bf16 {v(ACC+i*4,4)}, {v(AS+4,4)}, {v(FR+32+i*4,4)}, {v(ACC+i*4,4)}")
    K(f"s_waitcnt vmcnt(0)")
    K(f"""
    s_getreg_b32 s52, hwreg(HW_REG_XCC_ID)
    s_and_b32 s52, s52, 15
    v_cmp_ne_u32 vcc, s52, v173
    s_cmp_eq_u64 vcc, 0
    s_cselect_b32 s{SFAST}, {0 if envint('FORCESLOW', 0) else 1}, 0
    v_mov_b32 v172, {LSY}
    ds_read_b32 v173, v172 offset:56
    """)
    for p in range(4): K(f"v_cvt_pk_bf16_f32 v{KP+p}, v{MSH+2*p}, v{MSH+2*p+1}")
    K("; @save")
    K(f"""
    s_cmp_lg_u32 s{SW}, 2
    s_cbranch_scc1 P2_NOK2
    """)
    unpack8(K, KP, MSH)
    for e in range(8): K(f"v_add_f32 v{MSH+e}, 1.0, v{MSH+e}")
    for p in range(4): K(f"v_cvt_pk_bf16_f32 v{KP+p}, v{MSH+2*p}, v{MSH+2*p+1}")
    K("P2_NOK2:")
    K("; @restore")
    K(f"""
    s_lshl_b32 s57, s{SW}, 10
    s_add_u32 s57, s57, {MODL}
    v_add_u32 v8, s57, v6
    s_cmp_eq_u32 s{SW}, 3
    s_cbranch_scc1 P2_NOMW
    ds_write_b128 v8, {v(KP,4)}
    P2_NOMW:
    """)
    GP = RAW+32
    K("s_mov_b32 exec_hi, 0")
    for r in range(4):
        for i in range(8):
            K(f"v_mul_f32 v{ACC+i*4+r}, v{ACC+i*4+r}, v{K1F+i}")
        for p in range(4):
            K(f"v_cvt_pk_bf16_f32 v{GP+r*4+p}, v{ACC+(2*p)*4+r}, v{ACC+(2*p+1)*4+r}")
        K(f"ds_write_b128 v{GW}, {v(GP+r*4,4)} offset:{r*1024}")
    K("s_mov_b64 exec, -1")
    lsync(K, 4, a=8, o=9, t=10)
    K(f"v_readfirstlane_b32 s{SNONCE}, v173")
    K.stamp(10)
    GRf, GIf = 80, 84
    GAP, SBP, K2P = 160, 164, 168
    K(f"""
    ds_read_b64_tr_b16 {v(GRf,2)}, v{GR}
    ds_read_b64_tr_b16 {v(GRf+2,2)}, v{GR} offset:128
    ds_read_b64_tr_b16 {v(GIf,2)}, v{GR} offset:1024
    ds_read_b64_tr_b16 {v(GIf+2,2)}, v{GR} offset:1152
    v_add_u32 v8, {MODL}, v6
    ds_read_b128 {v(GAP,4)}, v8
    ds_read_b128 {v(SBP,4)}, v8 offset:1024
    ds_read_b128 {v(K2P,4)}, v8 offset:2048
    """)
    XF = [88, 32]
    for side, xr in enumerate((XA, XB)): unpack8(K, xr, XF[side])
    K("s_waitcnt lgkmcnt(3)")
    YR, YI = 16, 24
    rowfft(GRf, GIf, YR, YI, True)
    GA, K2R, SB = 144, 176, 136
    K("s_waitcnt lgkmcnt(0)")
    NA, BL, YA_, YB2 = 40, 48, 64, 72
    A2 = 2432
    K("; @save")
    K(f"""
    s_cmp_lg_u32 s63, 0
    s_cbranch_scc1 P2_REG
    """)
    unpack8(K, GAP, GA)
    for e in range(8):
        K(f"v_add_f32 v{YR+e}, v{YR+e}, v{SA+e}")
    for tau in range(2):
        K(f"ds_write_b128 v{YW}, {v(YR+tau*4,4)} offset:{tau*64}")
        K(f"ds_write_b128 v{YW}, {v(YI+tau*4,4)} offset:{A2+tau*64}")
    K("s_waitcnt lgkmcnt(0)")
    for (off, dst) in ((0, YA_), (A2, YB2)):
        K(f"ds_read_b128 {v(NA,4)}, v{YN} offset:{off}")
        K(f"ds_read_b128 {v(NA+4,4)}, v{YN} offset:{off+16}")
        K(f"ds_read_b128 {v(BL,4)}, v{YM} offset:{off}")
        K(f"ds_read_b128 {v(BL+4,4)}, v{YM} offset:{off+16}")
        K(f"ds_read_b32 v{BL+8}, v{YS} offset:{off}")
        K("s_waitcnt lgkmcnt(0)")
        for i in range(8):
            src = BL+8 if i == 0 else BL+8-i
            K(f"v_add_f32 v{dst+i}, v{NA+i}, v{src}")
        for i in range(8):
            K(f"v_mul_f32 v{dst+i}, 0.5, v{dst+i}")
    for i in range(8):
        K(f"v_fma_f32 v{XF[1]+i}, v{GA+i}, v{YB2+i}, v{XF[1]+i}")
    unpack8(K, K2P, K2R); unpack8(K, SBP, SB)
    K("s_branch P2_EPI")
    K("P2_REG:")
    K("; @restore")
    for tau in range(2):
        K(f"ds_write_b128 v{YW}, {v(YR+tau*4,4)} offset:{tau*64}")
    unpack8(K, GAP, GA)
    K("s_waitcnt lgkmcnt(0)")
    K(f"ds_read_b128 {v(YA_,4)}, v{YN}")
    K(f"ds_read_b128 {v(YA_+4,4)}, v{YN} offset:16")
    K(f"ds_read_b128 {v(BL,4)}, v{YM}")
    K(f"ds_read_b128 {v(BL+4,4)}, v{YM} offset:16")
    K(f"ds_read_b32 v{BL+8}, v{YS}")
    unpack8(K, K2P, K2R); unpack8(K, SBP, SB)
    K("s_waitcnt lgkmcnt(0)")
    for i in range(8):
        src = BL+8 if i == 0 else BL+8-i
        K(f"v_fma_f32 v{XF[1]+i}, v{GA+i}, v{src}, v{XF[1]+i}")
    K("P2_EPI:")
    for i in range(8):
        K(f"v_fma_f32 v{XF[0]+i}, v{GA+i}, v{YA_+i}, v{XF[0]+i}")
    X2P = [80, 84]
    for side in range(2):
        for c4 in range(4):
            K(f"v_cvt_pk_bf16_f32 v{X2P[side]+c4}, v{XF[side]+2*c4}, v{XF[side]+2*c4+1}")
    K("s_mov_b32 s52, 0x3f803f80")
    ST = [104, 105, 106, 107]
    for c4 in range(4):
        for side in range(2):
            x = X2P[side]+c4
            K(f"v_dot2_f32_bf16 v{ST[2*side]}, v{x}, s52, {'0' if c4==0 else 'v%d'%ST[2*side]}")
            K(f"v_dot2_f32_bf16 v{ST[2*side+1]}, v{x}, v{x}, {'0' if c4==0 else 'v%d'%ST[2*side+1]}")
    K(f"ds_write_b128 v{HW}, {v(X2P[0],4)}")
    K(f"ds_write_b128 v{HW}, {v(X2P[1],4)} offset:1088")
    steps = ("quad_perm:[1,0,3,2]", "quad_perm:[2,3,0,1]", "row_half_mirror", "row_mirror")
    for si, perm in enumerate(steps):
        for r in ST:
            K(f"v_add_f32_dpp v{r}, v{r}, v{r} {perm} row_mask:0xf bank_mask:0xf")
        side, half = si // 2, si % 2
        for c4 in range(2*half, 2*half+2):
            K(f"v_lshlrev_b32 v{XF[side]+2*c4}, 16, v{X2P[side]+c4}")
            K(f"v_and_b32 v{XF[side]+2*c4+1}, 0xffff0000, v{X2P[side]+c4}")
    for swap in ("v_permlane16_swap_b32", "v_permlane32_swap_b32"):
        for i, r in enumerate(ST): K(f"v_mov_b32 v{108+i}, v{r}")
        for i, r in enumerate(ST): K(f"{swap} v{r}, v{108+i}")
        for i, r in enumerate(ST): K(f"v_add_f32 v{r}, v{r}, v{108+i}")
    for side in range(2):
        K(f"v_mul_f32 v{ST[2*side]}, {fconst(1/512)}, v{ST[2*side]}")
        K(f"v_mul_f32 v{ST[2*side+1]}, {fconst(1/512)}, v{ST[2*side+1]}")
    for side in range(2): K(f"v_fma_f32 v{ST[2*side+1]}, -v{ST[2*side]}, v{ST[2*side]}, v{ST[2*side+1]}")
    for side in range(2): K(f"v_max_f32 v{ST[2*side+1]}, 0, v{ST[2*side+1]}")
    for side in range(2): K(f"v_add_f32 v{ST[2*side+1]}, {fconst(1e-5)}, v{ST[2*side+1]}")
    for side in range(2): K(f"v_rsq_f32 v{ST[2*side+1]}, v{ST[2*side+1]}")
    HP = [112, 116]
    for side in range(2):
        for e in range(8):
            K(f"v_sub_f32 v{XF[side]+e}, v{XF[side]+e}, v{ST[2*side]}")
    for side in range(2):
        for e in range(8):
            K(f"v_mul_f32 v{XF[side]+e}, v{XF[side]+e}, v{ST[2*side+1]}")
        for e in range(8):
            K(f"v_fma_f32 v{XF[side]+e}, v{XF[side]+e}, v{K2R+e}, v{SB+e}")
        for c4 in range(4):
            K(f"v_cvt_pk_bf16_f32 v{HP[side]+c4}, v{XF[side]+2*c4}, v{XF[side]+2*c4+1}")
        K(f"ds_write_b128 v{HW}, {v(HP[side],4)} offset:{2176+1088*side}")
    K(f"""
    s_cmp_eq_u32 s{SFAST}, 0
    s_cselect_b32 s27, {SLOW_OFF}, 0
    s_add_u32 s{R_A}, s{PWS}, s27
    s_addc_u32 s{R_A+1}, s{PWS+1}, 0
    s_add_u32 s{R_A}, s{R_A}, {WS_X2}
    s_addc_u32 s{R_A+1}, s{R_A+1}, 0
    s_mov_b32 s{R_A+2}, 0x400000
    s_mov_b32 s{R_A+3}, 0x20000
    """)
    K(f"""
    v_lshrrev_b32 v8, 3, v1
    v_lshlrev_b32 v8, 8, v8
    v_and_b32 v9, 7, v1
    v_lshl_add_u32 v8, v9, 4, v8
    s_lshl_b32 s52, s54, 2
    s_lshr_b32 s53, s55, 1
    s_add_u32 s52, s52, s53
    s_lshl_b32 s52, s52, 14
    s_and_b32 s53, s55, 1
    s_lshl_b32 s53, s53, 7
    s_add_u32 s52, s52, s53
    s_and_b32 s53, s{SW}, 1
    s_lshl_b32 s53, s53, 13
    s_add_u32 s52, s52, s53
    s_lshr_b32 s53, s{SW}, 1
    s_lshl_b32 s53, s53, 21
    s_add_u32 s52, s52, s53
    s_add_u32 s53, s52, 4096
    """)
    lsync(K, 5, a=12, o=13, t=14)
    for i in range(4):
        K(f"ds_read_b128 {v(16+4*i,4)}, v{HR} offset:{i*128}")
    if PLAIN_DATA:
        K("s_waitcnt lgkmcnt(0)")
        K(f"s_cmp_eq_u32 s{SFAST}, 0")
        K("s_cbranch_scc1 P2_STS")
        K("; @save")
        for i in range(4):
            K(f"buffer_store_dwordx4 {v(16+4*i,4)}, v8, s[{R_A}:{R_A+3}], s{52 + i//2} offen offset:{(i%2)*2048}")
        K("s_branch P2_STD")
        K("P2_STS:")
        K("; @restore")
    for i in range(4):
        if not PLAIN_DATA: K(f"s_waitcnt lgkmcnt({3-i})")
        K(f"buffer_store_dwordx4 {v(16+4*i,4)}, v8, s[{R_A}:{R_A+3}], s{52 + i//2} offen offset:{(i%2)*2048} {SC}")
    K("P2_STD:")
    K.stamp(11)
    K(f"""
    s_bfe_u32 s54, s{SL}, 0x10001
    s_lshl_b32 s55, s{SX}, 1
    s_add_u32 s54, s54, s55
    s_and_b32 s55, s{SL}, 1
    s_lshr_b32 s52, s{SL}, 2
    s_lshl_b32 s52, s52, 1
    s_add_u32 s55, s55, s52
    s_lshl_b32 s56, s54, 3
    s_lshl_b32 s52, s{SW}, 1
    s_add_u32 s56, s56, s52
    s_lshl_b32 s57, s56, 14
    s_add_u32 s58, s57, 16384
    """)
    RA = 248
    def p3_setup(tag=None):
        K(f"""
        v_lshlrev_b32 v7, 4, v1
        v_bfe_u32 v4, v1, 2, 2
        v_and_b32 v6, 1, v2
        v_lshl_add_u32 v6, v6, 2, v4
        v_lshlrev_b32 v6, 1, v6
        v_lshl_add_u32 v4, v2, 3, v4
        v_lshlrev_b32 v4, 8, v4
        v_bfe_u32 v8, v1, 1, 1
        v_lshl_add_u32 v4, v8, 4, v4
        v_and_b32 v8, 1, v1
        v_lshl_add_u32 v4, v8, 3, v4
        """)
        for tau in range(7):
            K(f"v_xor_b32 v8, {2*tau}, v6")
            K(f"v_lshl_add_u32 v{RA+tau}, v8, 4, v4")
        srd_fs(K, R_U, 0x200000, WS_H2)
        srd_fs(K, R_B, H_BYTES, WS_H)
    K("s_waitcnt vmcnt(0)")
    gsync_group(K, "S2", 0, 24, 6, 7, p3_setup)
    K.stamp(12)
    ACT, AF, ACC = 64, 192, 8
    def issue3(ks):
        out = []
        for u in range(2):
            out.append(f"buffer_load_dwordx4 {v(ACT+(ks*2+u)*4,4)}, v7, s[{R_U}:{R_U+3}], s{57+u} offen offset:{(ks%4)*1024} {LDM}")
        if ks % 4 == 3:
            out[-1] += f"\n s_add_u32 s57, s57, 4096\n s_add_u32 s58, s58, 4096"
        return out
    PRE3 = envint('PRE3', 4)
    for ks in range(PRE3):
        for x in issue3(ks): K(x)
    def read3(ks, tau, rd):
        buf = ks % 2
        o = (ks % 8) * 8192
        return f"ds_read_b64_tr_b16 {v(AF+buf*28+tau*4+rd*2,2)}, v{RA+tau} offset:{o+rd*1024}"
    K(f"v_mov_b32 v12, {LSY}")
    lwait(K, 8, 4, 12, 14, st=27)
    lsy_regs(K, 4, 5)
    for tau in range(7):
        for rd in range(2): K(read3(0, tau, rd))
    issued = PRE3
    for ks in range(16):
        pend = []
        if issued < 16:
            pend = issue3(issued); issued += 1
        nout_before = (issued - 1 - ks) * 2 - len(pend)
        K(f"s_waitcnt vmcnt({max(0, nout_before)})")
        if ks == 0: K.stamp(13)
        buf = ks % 2
        for tau in range(7):
            K(f"s_waitcnt lgkmcnt({12 if ks < 15 else 12-2*tau})")
            for u in range(2):
                d = ACC+(u*7+tau)*4
                K(f"v_mfma_f32_16x16x32_bf16 {v(d,4)}, {v(AF+buf*28+tau*4,4)}, {v(ACT+(ks*2+u)*4,4)}, {'0' if ks==0 else v(d,4)}")
                if ks < 15:
                    if ks == 7 and u == 0: K(f"v_add_u32 v{RA+tau}, 0x10000, v{RA+tau}")
                    K(read3(ks+1, tau, u))
            if pend and tau in (2, 5): K(pend.pop(0))
        if ks in (4, 8, 13):
            K(f"s_mov_b64 exec, 1")
            K(f"ds_add_u32 v4, v5 offset:{4*(16 + (4, 8, 13).index(ks))}")
            K(f"s_mov_b64 exec, -1")
    lsy_regs(K, 4, 5)
    larrive(K, 9, 4, 5)
    K.stamp(14)
    PKR = 64
    K(f"""
    v_and_b32 v4, 1, v2
    v_lshlrev_b32 v4, 9, v4
    v_lshrrev_b32 v5, 1, v2
    v_lshl_add_u32 v4, v5, 8, v4
    v_lshl_add_u32 v4, v3, 4, v4
    s_and_b32 s60, s55, 1
    v_lshlrev_b32 v6, 8, v5
    v_lshl_add_u32 v6, v3, 4, v6
    v_and_b32 v5, 1, v2
    v_mul_u32_u24 v5, 57344, v5
    v_add_u32 v6, v6, v5
    s_mul_i32 s52, s55, 7
    s_add_u32 s57, s52, s60
    s_lshr_b32 s57, s57, 1
    s_lshl_b32 s57, s57, 10
    s_mul_i32 s53, s56, 57344
    s_add_u32 s57, s57, s53
    s_add_u32 s58, s57, 57344
    s_lshr_b32 s59, s52, 1
    s_cmp_eq_u32 s60, 0
    s_cselect_b32 s61, 3, 0
    s_add_u32 s59, s59, s61
    s_lshl_b32 s59, s59, 10
    s_add_u32 s59, s59, s53
    s_lshl_b32 s60, s60, 9
    s_add_u32 s59, s59, s60
    """)
    def h_epilogue(mod):
        for u in range(2):
            for tau in range(7):
                if tau % 2 == 1:
                    b = PKR+(u*3+tau//2)*4
                    K(f"buffer_store_dwordx4 {v(b,4)}, v4, s[{R_B}:{R_B+3}], s{57+u} offen offset:{(tau//2)*1024} {mod}")
        K(f"buffer_store_dwordx4 {v(PKR+24,4)}, v6, s[{R_B}:{R_B+3}], s59 offen {mod}")
    for u in range(2):
        for tau in range(7):
            d = ACC+(u*7+tau)*4
            for r in range(4):
                K(f"v_max_f32 v{d+r}, 0, v{d+r}")
            b = PKR+(u*3+tau//2)*4+(tau%2)*2 if tau < 6 else PKR+24+u*2
            K(f"v_cvt_pk_bf16_f32 v{b}, v{d}, v{d+1}")
            K(f"v_cvt_pk_bf16_f32 v{b+1}, v{d+2}, v{d+3}")
            if tau % 2 == 1:
                b = PKR+(u*3+tau//2)*4
                K(f"v_permlane16_swap_b32 v{b}, v{b+2}")
                K(f"v_permlane16_swap_b32 v{b+1}, v{b+3}")
                if not PLAIN_DATA:
                    K(f"buffer_store_dwordx4 {v(b,4)}, v4, s[{R_B}:{R_B+3}], s{57+u} offen offset:{(tau//2)*1024} {SC}")
    b = PKR+24
    K(f"v_permlane16_swap_b32 v{b}, v{b+2}")
    K(f"v_permlane16_swap_b32 v{b+1}, v{b+3}")
    if not PLAIN_DATA:
        K(f"buffer_store_dwordx4 {v(PKR+24,4)}, v6, s[{R_B}:{R_B+3}], s59 offen {SC}")
    if PLAIN_DATA:
        K(f"s_cmp_eq_u32 s{SFAST}, 0")
        K("s_cbranch_scc1 P3_STS")
        K("; @save")
        h_epilogue("")
        K("s_branch P3_STD")
        K("P3_STS:")
        K("; @restore")
        h_epilogue(SC)
    K("P3_STD:")
    K.stamp(15)
    K(f"""
    s_and_b32 s56, s55, 1
    s_lshl_b32 s56, s56, 2
    s_lshl_b32 s52, s54, 3
    s_add_u32 s56, s56, s52
    s_lshr_b32 s55, s55, 1
    """)
    NSLOT, SLOT = NSLOT_, 4096
    ACC4, AF4, RING, NR = 8, 72, 104, 8
    RA4 = 232
    def p4_setup(tag=None):
        K(f"""
        v_lshlrev_b32 v7, 4, v1
        s_mul_i32 s57, s56, 57344
        s_mul_i32 s52, s{SW}, {14*1024}
        s_add_u32 s57, s57, s52
        s_add_u32 s58, s{SW}, 1
        s_and_b32 s58, s58, 3
        s_mul_i32 s58, s58, 57344
        s_add_u32 s58, s58, s57
        s_add_u32 s59, s{SW}, 2
        s_and_b32 s59, s59, 3
        s_mul_i32 s59, s59, 57344
        s_add_u32 s59, s59, s57
        s_add_u32 s60, s{SW}, 3
        s_and_b32 s60, s60, 3
        s_mul_i32 s60, s60, 57344
        s_add_u32 s60, s60, s57
        s_mul_i32 s52, s{SW}, 57344
        s_add_u32 s57, s57, s52
        v_lshrrev_b32 v4, 3, v1
        v_and_b32 v5, 7, v1
        v_bfe_u32 v6, v1, 4, 1
        v_lshlrev_b32 v6, 1, v6
        v_xor_b32 v8, v5, v6
        v_xor_b32 v9, 4, v8
        v_lshlrev_b32 v4, 10, v4
        s_lshl_b32 s52, s55, 7
        v_add_u32 v4, s52, v4
        v_lshl_add_u32 v5, v8, 4, v4
        v_lshl_add_u32 v6, v9, 4, v4
        s_mul_i32 s61, s{SW}, {448*1024}
        s_add_u32 s61, s61, {NSLOT*32*1024}
        s_mul_i32 s62, s{SW}, {NSLOT*SLOT}
        v_bfe_u32 v9, v1, 2, 2
        v_bfe_u32 v10, v1, 3, 1
        v_and_b32 v11, 1, v2
        v_lshl_add_u32 v10, v11, 1, v10
        v_lshlrev_b32 v10, 1, v10
        v_lshl_add_u32 v9, v2, 3, v9
        v_lshlrev_b32 v9, 7, v9
        v_bfe_u32 v11, v1, 1, 1
        v_lshl_add_u32 v9, v11, 4, v9
        v_and_b32 v11, 1, v1
        v_lshl_add_u32 v9, v11, 3, v9
        v_add_u32 v9, s62, v9
        """)
        for tau in range(4):
            K(f"v_xor_b32 v11, {2*tau}, v10")
            K(f"v_lshl_add_u32 v{RA4+tau}, v11, 4, v9")
        srd(K, R_X, PW2, 1792*1024)
        srd_fs(K, R_A, 0x200000, WS_X2)
        K(f"""
        v_and_b32 v9, 1, v2
        v_lshlrev_b32 v9, 1, v9
        v_lshrrev_b32 v10, 1, v2
        v_add_u32 v9, v9, v10
        v_lshlrev_b32 v248, 8, v9
        v_lshl_add_u32 v248, v3, 4, v248
        v_lshlrev_b32 v249, 4, v9
        """)
    K("s_waitcnt vmcnt(0)")
    gsync_group(K, "S3", 1, 56, 10, 11, lambda t: p4_setup(t))
    K.stamp(16)
    def act(ks, u): return v(RING+((ks % NR)*4+u)*4, 4)
    def issue4(ks):
        out = []
        for u in range(4):
            out.append(f"buffer_load_dwordx4 {act(ks,u)}, v7, s[{R_B}:{R_B+3}], s{57+u} offen offset:{(ks%4)*1024} {LDM}")
        if ks % 4 == 3:
            out[-1] += "".join(f"\n s_add_u32 s{57+u}, s{57+u}, 4096" for u in range(4))
        return out
    def read4(ks, tau, rd):
        buf = ks % 2
        o = (ks % NSLOT) * SLOT
        return f"ds_read_b64_tr_b16 {v(AF4+buf*16+tau*4+rd*2,2)}, v{RA4+tau} offset:{o+rd*512}"
    def dma4(ks):
        slot = ks % NSLOT
        out = []
        for m in range(4):
            out.append(f"s_add_u32 m0, s62, {slot*SLOT + m*1024}\n buffer_load_dwordx4 v{5 + (m&1)}, s[{R_X}:{R_X+3}], s61 offen lds\n s_add_u32 s61, s61, 8192")
        return out
    ops = []
    PRE4 = envint('PRE4', 3)
    for ks in range(PRE4):
        for x in issue4(ks): K(x); ops.append(("act", ks))
    if P4ST: K.stamp(14, force=True)
    K(f"v_mov_b32 v12, {LSY}")
    lwait(K, 12, 4, 12, 14, st=27)
    if P4ST: K.stamp(15, force=True)
    for tau in range(4):
        for rd in range(2): K(read4(0, tau, rd))
    queue = []
    for k2 in range(PRE4, 14):
        for t in issue4(k2): queue.append(("act", k2, t, max(0, k2 - NR + 1)))
    for k2 in range(NSLOT, 14):
        for t in dma4(k2): queue.append(("dma", k2, t, k2 - NSLOT + 1))
    needed = lambda q: q[1] if q[0] == "act" else q[1] - 1
    GBF = 208
    PER = envint('PER4', 6)
    for ks in range(14):
        need = lambda o: (o == ("act", ks)) or (o == ("dma", ks+1))
        idx = max(i for i, o in enumerate(ops) if need(o))
        K(f"s_waitcnt vmcnt({min(63, len(ops)-1-idx)})")
        if ks == 0: K.stamp(17)
        if P4ST and ks in (1, 3, 5, 7, 8, 9, 10, 11, 13): K.stamp(2 + (1, 3, 5, 7, 8, 9, 10, 11, 13).index(ks), force=True)
        elig = sorted([q for q in queue if q[3] <= ks], key=needed)
        must = [q for q in elig if needed(q) <= ks + 2]
        take = elig[:max(PER, len(must))]
        for q in take: queue.remove(q)
        buf = ks % 2
        slots = 0
        for tau in range(4):
            K(f"s_waitcnt lgkmcnt({6 if ks < 13 else 6-2*tau})")
            for u in range(4):
                d = ACC4+(u*4+tau)*4
                K(f"v_mfma_f32_16x16x32_bf16 {v(d,4)}, {v(AF4+buf*16+tau*4,4)}, {act(ks,u)}, {'0' if ks==0 else v(d,4)}")
                if ks < 13 and u < 2: K(read4(ks+1, tau, u))
                elif take:
                    kind, kk, text, _ = take.pop(0); K(text); ops.append((kind, kk))
        while take:
            kind, kk, text, _ = take.pop(0); K(text); ops.append((kind, kk))
        if ks == 8:
            K(f"""
            s_add_u32 s52, s56, s{SW}
            s_lshl_b32 s52, s52, 14
            s_lshl_b32 s53, s55, 11
            s_add_u32 s52, s52, s53
            v_lshlrev_b32 v250, 1, v249
            s_lshl_b32 s53, s55, 8
            s_add_u32 s53, s53, {5*2048}
            """)
            K(f"buffer_load_dwordx4 {v(240,4)}, v248, s[{R_A}:{R_A+3}], s52 offen {SC}"); ops.append(("epi", 0))
            K(f"buffer_load_dwordx4 {v(244,4)}, v248, s[{R_A}:{R_A+3}], s52 offen offset:1024 {SC}"); ops.append(("epi", 0))
            for pr in range(2):
                K(f"buffer_load_dwordx4 {v(GBF+pr*8,4)}, v250, s[{R_MOD}:{R_MOD+3}], s53 offen offset:{pr*128} {SC}"); ops.append(("epi", 0))
                K(f"buffer_load_dwordx4 {v(GBF+pr*8+4,4)}, v250, s[{R_MOD}:{R_MOD+3}], s53 offen offset:{pr*128+16} {SC}"); ops.append(("epi", 0))
    assert not queue, queue
    if P4ST: K.stamp(11, force=True)
    RSTR = NSLOT*SLOT
    K(f"""
    v_lshlrev_b32 v104, 4, v1
    v_add_u32 v105, s62, v104
    """)
    for u in range(1, 4):
        for tau in range(4):
            K(f"ds_write_b128 v105, {v(ACC4+(u*4+tau)*4,4)} offset:{(u-1)*4096+tau*1024}")
    XF4, GF4, GBP = 72, 88, 106
    VT = 114
    K(f"""
    s_add_u32 s52, s56, s{SW}
    s_lshl_b32 s52, s52, 4
    v_add_u32 v{VT}, s52, v3
    v_lshrrev_b32 v{VT+1}, 6, v{VT}
    v_bfe_u32 v{VT+2}, v{VT}, 1, 5
    v_and_b32 v{VT+3}, 1, v{VT}
    v_lshlrev_b32 v{VT+4}, 6, v{VT+2}
    v_add_u32 v{VT+5}, v{VT+1}, v{VT+4}
    v_cmp_eq_u32 vcc, 0, v{VT+1}
    v_subrev_u32 v{VT+6}, {64*16-32}, v{VT+4}
    v_cmp_lt_u32 s[52:53], 15, v{VT+2}
    v_cndmask_b32 v{VT+6}, v{VT+4}, v{VT+6}, s[52:53]
    v_cndmask_b32 v{VT+5}, v{VT+5}, v{VT+6}, vcc
    v_sub_u32 v{VT+6}, 2048, v{VT+5}
    v_lshrrev_b32 v{VT+7}, 1, v{VT}
    v_cmp_eq_u32 vcc, 0, v{VT+7}
    v_mov_b32 v{VT+7}, 1024
    v_cndmask_b32 v{VT+6}, v{VT+6}, v{VT+7}, vcc
    v_cmp_eq_u32 vcc, 1, v{VT+3}
    v_cndmask_b32 v{VT+5}, v{VT+5}, v{VT+6}, vcc
    v_lshlrev_b32 v{VT+5}, 10, v{VT+5}
    v_add_u32 v{VT+5}, v{VT+5}, v249
    """)
    srd(K, R_X, POUT, 0x200000)
    K("s_waitcnt vmcnt(0)")
    for pr in range(2):
        for p in range(4): K(f"v_cvt_pk_bf16_f32 v{GBP+pr*4+p}, v{GBF+pr*8+2*p}, v{GBF+pr*8+2*p+1}")
    XRs = [240, 244]
    for pr in range(2):
        unpack8(K, XRs[pr], XF4+pr*8)
        unpack8(K, GBP+pr*4, GF4+pr*8)
    for u in range(1, 4):
        K(f"s_sub_u32 s52, s{SW}, {u}")
        K(f"s_and_b32 s52, s52, 3")
        K(f"s_mul_i32 s52, s52, {RSTR}")
        K(f"v_add_u32 v{122+u}, s52, v104")
    K(f"s_lshl_b32 s52, s55, 7")
    K("s_waitcnt lgkmcnt(0)")
    if P4ST: K.stamp(12, force=True)
    K("s_barrier")
    if P4ST: K.stamp(13, force=True)
    RD = 136
    for tau in range(4):
        for u in range(1, 4):
            K(f"ds_read_b128 {v(RD+((u-1)*4+tau)*4,4)}, v{122+u} offset:{(u-1)*4096+tau*1024}")
    for pr in range(2):
        for tau in (2*pr, 2*pr+1):
            K(f"s_waitcnt lgkmcnt({9-3*tau})")
            for r in range(4):
                x = ACC4+tau*4+r
                K(f"v_add_f32 v{x}, v{x}, v{RD+tau*4+r}")
                K(f"v_add_f32 v{RD+(4+tau)*4+r}, v{RD+(4+tau)*4+r}, v{RD+(8+tau)*4+r}")
            for r in range(4):
                x = ACC4+tau*4+r
                K(f"v_add_f32 v{x}, v{x}, v{RD+(4+tau)*4+r}")
        A_, B_ = ACC4+(2*pr)*4, ACC4+(2*pr+1)*4
        for r in range(4):
            K(f"v_permlane16_swap_b32 v{A_+r}, v{B_+r}")
        for e in range(8):
            K(f"v_fma_f32 v{XF4+pr*8+e}, v{GF4+pr*8+e}, v{A_+e}, v{XF4+pr*8+e}")
        for c in range(4):
            K(f"v_cvt_pk_bf16_f32 v{56+pr*4+c}, v{XF4+pr*8+2*c}, v{XF4+pr*8+2*c+1}")
        K(f"buffer_store_dwordx4 {v(56+pr*4,4)}, v{VT+5}, s[{R_X}:{R_X+3}], s52 offen offset:{pr*64} {os.environ.get('OUTM', '')}")
    if STAMPS:
        K("s_waitcnt vmcnt(0)")
        K("s_memtime s[100:101]")
        K("s_memrealtime s[62:63]")
        K("s_waitcnt lgkmcnt(0)")
        K("s_mov_b32 s65, s62")
        dump(K)
    K("s_endpgm")

    K("L_HELPER:")
    K.in_helper = True
    K.reset_state()
    K("s_waitcnt lgkmcnt(0)")
    K(f"v_lshlrev_b32 v7, 4, v1")
    K("v_mov_b32 v60, 0")
    K("v_mov_b32 v61, 0")
    if envint('TLB', 0):
        PG = envint('PG', 21)
        K("; @save")
        K(f"""
        s_cmp_lg_u32 s{SW}, {envint('TLBW', 3)}
        s_cbranch_scc1 H_NOTLB
        """)
        srd(K, R_A, PWS, WS_H + H_BYTES)
        K(f"v_lshlrev_b32 v8, {PG}, v1")
        K(f"buffer_load_dword v9, v8, s[{R_A}:{R_A+3}], 0 offen")
        srd(K, R_A, POUT, 0x200000)
        K(f"buffer_load_dword v9, v8, s[{R_A}:{R_A+3}], 0 offen")
        K(f"v_mov_b32 v10, 0x1ffffc")
        K(f"buffer_load_dword v9, v10, s[{R_A}:{R_A+3}], 0 offen")
        srd(K, R_A, PDBG, 256)
        K(f"v_mov_b32 v10, 0")
        K(f"buffer_load_dword v9, v10, s[{R_A}:{R_A+3}], 0 offen")
        srd(K, R_A, PW1, 512*3584)
        K(f"buffer_load_dword v9, v8, s[{R_A}:{R_A+3}], 0 offen")
        srd(K, R_A, PW2, 1792*1024)
        K(f"buffer_load_dword v9, v8, s[{R_A}:{R_A+3}], 0 offen")
        K("H_NOTLB:")
        K("; @restore")
    K("; @save")
    K(f"""
    s_or_b32 s52, s2, s{SW}
    s_cmp_lg_u32 s52, 0
    s_cbranch_scc1 H_NOINIT
    """)
    srd(K, R_A, PWS, 0x7000)
    srd(K, R_B, PDBG, 256)
    K(f"""
    v_mov_b32 v12, 0
    v_mov_b32 v13, 0
    v_mov_b32 v14, 0
    v_mov_b32 v15, 0
    s_movk_i32 s52, 0x4000
    """)
    for i in range(11):
        K(f"buffer_store_dwordx4 v[12:15], v7, s[{R_A}:{R_A+3}], s52 offen sc1")
        K(f"s_add_u32 s52, s52, 1024")
    K("s_mov_b32 s52, 0")
    for i in range(12):
        K(f"buffer_store_dwordx4 v[12:15], v7, s[{R_A}:{R_A+3}], s52 offen sc1")
        K(f"s_add_u32 s52, s52, 1024")
    K(f"""
    s_memrealtime s[52:53]
    s_waitcnt vmcnt(0) lgkmcnt(0)
    s_or_b32 s52, s52, 1
    v_mov_b32 v12, s52
    s_mov_b64 exec, 1
    buffer_store_dword v12, v13, s[{R_B}:{R_B+3}], 0 offen sc1
    s_mov_b64 exec, -1
    H_NOINIT:
    """)
    K("; @restore")
    K(f"""
    s_and_b32 s55, s{SL}, 1
    s_lshr_b32 s52, s{SL}, 2
    s_lshl_b32 s52, s52, 1
    s_add_u32 s55, s55, s52
    s_lshr_b32 s52, s{SW}, 1
    s_lshl_b32 s52, s52, 3
    v_lshl_add_u32 v4, v2, 1, s52
    v_xor_b32 v4, v4, v3
    s_and_b32 s52, s55, 1
    s_lshl_b32 s52, s52, 1
    v_add_u32 v6, s52, v4
    v_subrev_u32 v12, 14, v6
    v_cmp_le_u32 vcc, 14, v6
    v_cndmask_b32 v6, v6, v12, vcc
    v_mul_u32_u24 v5, 3584, v2
    v_lshl_add_u32 v5, v6, 4, v5
    s_mul_i32 s52, s55, 224
    v_add_u32 v5, s52, v5
    v_cmp_gt_u32 vcc, 14, v4
    v_mov_b32 v6, 0x40000000
    v_cndmask_b32 v5, v6, v5, vcc
    s_mul_i32 s56, s{SW}, {4*3584}
    s_lshl_b32 s57, s{SW}, 10
    s_mul_i32 s58, s{SL}, 57344
    s_mul_i32 s52, s{SW}, 14336
    s_add_u32 s58, s58, s52
    """)
    srd(K, R_X, PW1, 512*3584)
    srd(K, R_U, PW2, 1792*1024)
    state = dict(w1=0, w2=0, out=0)
    def throttle(thr=None):
        thr = thr or THR
        if state['out'] >= thr:
            K(f"s_waitcnt vmcnt({thr-1})"); state['out'] = thr-1
    def w1dma(n):
        for _ in range(n):
            throttle()
            K(f"s_mov_b32 m0, s57")
            K(f"buffer_load_dwordx4 v5, s[{R_X}:{R_X+3}], s56 offen lds")
            K(f"s_add_u32 s56, s56, {16*3584}")
            K(f"s_add_u32 s57, s57, 4096")
            state['w1'] += 1; state['out'] += 1
    def w2pf(n):
        for _ in range(n):
            throttle()
            K(f"buffer_load_dwordx4 v[8:11], v7, s[{R_U}:{R_U+3}], s58 offen")
            K(f"s_add_u32 s58, s58, 1024")
            state['w2'] += 1; state['out'] += 1
    W, CV, AC, T = 16, 32, 40, 48
    K("; @save")
    K(f"""
    s_cmp_ge_u32 s2, 192
    s_cbranch_scc1 H_NOMOD1
    s_mul_i32 s52, s2, 1366
    s_lshr_b32 s52, s52, 16
    s_mul_i32 s53, s52, 48
    s_sub_u32 s53, s2, s53
    """)
    srd(K, R_A, PC, 1024)
    srd(K, R_B, PWM, 512*6144)
    K(f"""
    v_lshrrev_b32 v16+46, 3, v1
    v_and_b32 v16+47, 7, v1
    s_lshl_b32 s54, s52, 7
    s_lshl_b32 s59, s{SW}, 5
    s_add_u32 s54, s54, s59
    v_add_u32 v10, s54, v62
    v_mul_u32_u24 v11, 6144, v10
    v_lshl_add_u32 v11, v63, 4, v11
    s_lshl_b32 s59, s53, 7
    v_lshlrev_b32 v10, 1, v10
    s_mov_b32 s60, s53
    """.replace("v16+46", "v62").replace("v16+47", "v63"))
    for it in range(4):
        K(f"buffer_load_ushort v{CV+it}, v10, s[{R_A}:{R_A+3}], 0 offen offset:{it*16}")
    for it in range(4):
        K(f"buffer_load_dwordx4 {v(W+it*4,4)}, v11, s[{R_B}:{R_B+3}], s59 offen")
        if it < 3: K(f"s_add_u32 s59, s59, {8*6144}")
    K("H_NOMOD1:")
    nwarm = 0
    if WARM:
        K(f"""
        s_mul_i32 s61, s2, 7168
        s_lshl_b32 s62, s{SW}, 11
        s_add_u32 s61, s61, s62
        """)
        for i in range(2):
            K(f"buffer_load_dwordx4 v[64:67], v7, s[{R_X}:{R_X+3}], s61 offen offset:{i*1024}")
        nwarm += 2
        if WARM >= 2:
            for i in range(2):
                K(f"buffer_load_dwordx4 v[64:67], v7, s[{R_U}:{R_U+3}], s61 offen offset:{i*1024}")
            nwarm += 2
    n1 = envint('N1', THR)
    for _ in range(n1):
        K(f"s_mov_b32 m0, s57")
        K(f"buffer_load_dwordx4 v5, s[{R_X}:{R_X+3}], s56 offen lds")
        K(f"s_add_u32 s56, s56, {16*3584}")
        K(f"s_add_u32 s57, s57, 4096")
        state['w1'] += 1
    state['out'] = n1 + nwarm
    n1 += nwarm
    K(f"""
    s_cmp_ge_u32 s2, 192
    s_cbranch_scc1 H_NOMOD2
    """)
    K(f"s_waitcnt vmcnt({n1+4})")
    for it in range(4): K(f"v_lshlrev_b32 v{CV+it}, 16, v{CV+it}")
    for it in range(4): K(f"v_mul_f32 v{T+it}, {fconst(-1.4426950408889634)}, v{CV+it}")
    for it in range(4): K(f"v_exp_f32 v{T+it}, v{T+it}")
    for it in range(4): K(f"v_add_f32 v{T+it}, 1.0, v{T+it}")
    for it in range(4): K(f"v_rcp_f32 v{T+it}, v{T+it}")
    for it in range(4): K(f"v_mul_f32 v{T+it}, v{CV+it}, v{T+it}")
    for it in range(4): K(f"v_cvt_pk_bf16_f32 v{CV+it}, v{T+it}, 0")
    for it in range(4): K(f"v_lshlrev_b32 v{CV+4+it}, 16, v{CV+it}")
    for it in range(4):
        K(f"s_waitcnt vmcnt({n1+3-it})")
        for c4 in range(4):
            K(f"v_dot2_f32_bf16 v{AC+2*c4}, v{W+it*4+c4}, v{CV+it}, {'0' if it==0 else 'v%d'%(AC+2*c4)}")
            K(f"v_dot2_f32_bf16 v{AC+2*c4+1}, v{W+it*4+c4}, v{CV+4+it}, {'0' if it==0 else 'v%d'%(AC+2*c4+1)}")
    for e in range(8):
        K(f"v_add_f32_dpp v{AC+e}, v{AC+e}, v{AC+e} row_ror:8 row_mask:0xf bank_mask:0xf")
    for swap in ("v_permlane16_swap_b32", "v_permlane32_swap_b32"):
        for e in range(8): K(f"v_mov_b32 v{T+e}, v{AC+e}")
        for e in range(8): K(f"{swap} v{AC+e}, v{T+e}")
        for e in range(8): K(f"v_add_f32 v{AC+e}, v{AC+e}, v{T+e}")
    K(f"v_mov_b32 v60, v{AC}")
    for e in range(1, 8):
        K(f"v_cmp_eq_u32 vcc, {e}, v62")
        K(f"v_cndmask_b32 v60, v60, v{AC+e}, vcc")
    K(f"""
    v_lshlrev_b32 v61, 3, v63
    v_add_u32 v61, v61, v62
    v_lshlrev_b32 v61, 2, v61
    s_lshl_b32 s52, s60, 8
    v_add_u32 v61, s52, v61
    H_NOMOD2:
    """)
    K("; @restore")
    K.stamp(2)
    w1dma(envint('N2', 2))
    K(f"""
    s_cmp_lg_u32 s{SW}, 0
    s_cbranch_scc1 H_FLW
    """)
    srd(K, R_B, PWS, 0x10000)
    K(f"""
    s_bfe_u32 s52, s{SL}, 0x10001
    s_lshl_b32 s53, s{SX}, 1
    s_add_u32 s52, s52, s53
    s_lshl_b32 s52, s52, 7
    s_add_u32 s52, s52, {WS_GX}
    s_lshl_b32 s53, s55, 2
    s_add_u32 s52, s52, s53
    s_getreg_b32 s53, hwreg(HW_REG_XCC_ID)
    s_and_b32 s53, s53, 15
    v_mov_b32 v12, s53
    v_mov_b32 v13, 0
    s_mov_b64 exec, 1
    buffer_store_dword v12, v13, s[{R_B}:{R_B+3}], s52 offen sc1
    s_mov_b64 exec, -1
    """)
    srd(K, R_A, PDBG, 256)
    K(f"""
    v_mov_b32 v13, 0
    H_POLL:
    buffer_load_dword v12, v13, s[{R_A}:{R_A+3}], 0 offen sc1
    s_waitcnt vmcnt(0)
    v_readfirstlane_b32 s52, v12
    s_sub_u32 s{SSPIN}, s{SSPIN}, 1
    s_cbranch_scc1 H_NOPOLL
    s_cmp_eq_u32 s52, 0
    s_cbranch_scc1 H_POLL
    H_NOPOLL:
    v_mov_b32 v12, {LSY}
    v_mov_b32 v13, s52
    s_mov_b64 exec, 1
    ds_write_b32 v12, v13 offset:56
    v_mov_b32 v13, 1
    ds_write_b32 v12, v13 offset:52
    s_mov_b64 exec, -1
    s_branch H_FLD
    H_FLW:
    v_mov_b32 v12, {LSY}
    """)
    lwait(K, 13, 1, 12, 14, st=27)
    K("H_FLD:")
    K.stamp(4)
    K("; @save")
    K(f"""
    s_cmp_ge_u32 s2, 192
    s_cbranch_scc1 H_NOAT
    """)
    srd(K, R_A, PWS, 12288)
    K(f"""
    buffer_atomic_add_f32 v60, v61, s[{R_A}:{R_A+3}], 0 offen
    H_NOAT:
    """)
    K("; @restore")
    n3 = envint('N3', 1)
    for _ in range(n3):
        K(f"s_mov_b32 m0, s57")
        K(f"buffer_load_dwordx4 v5, s[{R_X}:{R_X+3}], s56 offen lds")
        K(f"s_add_u32 s56, s56, {16*3584}")
        K(f"s_add_u32 s57, s57, 4096")
        state['w1'] += 1
    K(f"s_waitcnt vmcnt({n3})")
    state['out'] = n3
    srd(K, SYNC, PWS, SYNC_BYTES, WS_SYNC)
    K(f"""
    v_mov_b32 v12, {LSY}
    v_mov_b32 v13, 1
    s_mov_b64 exec, 1
    ds_add_rtn_u32 v14, v12, v13 offset:8
    s_waitcnt lgkmcnt(0)
    v_readfirstlane_b32 s27, v14
    s_cmp_lg_u32 s27, 7
    s_cbranch_scc1 H_S1A
    s_lshl_b32 s52, s{SX}, 7
    v_mov_b32 v14, s52
    buffer_atomic_add v13, v14, s[{SYNC}:{SYNC+3}], 0 offen
    H_S1A:
    s_mov_b64 exec, -1
    """)
    state['out'] += 1
    K.stamp(6)
    if envint('GATE1', 0):
        w1dma(envint('W1EARLY', 0))
        K(f"v_mov_b32 v12, {LSY}")
        lwait(K, 3, 1, 12, 14, st=27)
    w1dma(32 - state['w1'])
    K("s_waitcnt vmcnt(0)"); state['out'] = 0
    lsy_regs(K, 12, 13)
    larrive(K, 8, 12, 13)
    K.stamp(12)
    if envint('GATE2', 0):
        lwait(K, 7, 1, 12, 14, st=27)
    W2M = envint('W2M', 0 if WARM >= 2 else 1)
    if W2M == 1:
        K(f"""
        s_mul_i32 s58, s2, 7168
        s_lshl_b32 s52, s{SW}, 11
        s_add_u32 s58, s58, s52
        """)
        for i in range(2):
            K(f"buffer_load_dwordx4 v[8:11], v7, s[{R_U}:{R_U+3}], s58 offen offset:{i*1024}")
        state['out'] += 2
    elif W2M == 2:
        w2pf(14)
    K.stamp(13)
    K(f"""
    s_lshr_b32 s55, s55, 1
    v_lshrrev_b32 v4, 3, v1
    v_and_b32 v5, 7, v1
    v_bfe_u32 v6, v1, 4, 1
    v_lshlrev_b32 v6, 1, v6
    s_and_b32 s52, s{SW}, 1
    s_lshl_b32 s52, s52, 2
    v_xor_b32 v6, s52, v6
    v_xor_b32 v5, v5, v6
    v_lshlrev_b32 v4, 10, v4
    s_lshl_b32 s52, s55, 7
    v_add_u32 v4, s52, v4
    v_lshl_add_u32 v5, v5, 4, v4
    """)
    THR2 = envint('THR2', 9)
    out = state['out']
    for ring in range(4):
        lwait(K, (16, 17, 18, 9)[ring], 4, 12, 14, st=27)
        if ring == 0: K.stamp(14)
        K(f"""
        s_lshl_b32 s61, s{SW}, 13
        s_add_u32 s61, s61, {ring*448*1024}
        s_lshl_b32 s62, s{SW}, 10
        s_add_u32 s62, s62, {ring*NSLOT_*4096}
        """)
        for sl in range(NSLOT_):
            if out >= THR2:
                K(f"s_waitcnt vmcnt({THR2-1})"); out = THR2-1
            K(f"s_mov_b32 m0, s62")
            K(f"buffer_load_dwordx4 v5, s[{R_U}:{R_U+3}], s61 offen lds")
            K(f"s_add_u32 s61, s61, 32768")
            K(f"s_add_u32 s62, s62, 4096")
            out += 1
    K("s_waitcnt vmcnt(0)")
    larrive(K, 12, 12, 13)
    K.stamp(15)
    if STAMPS:
        K("s_memtime s[100:101]")
        K("s_memrealtime s[62:63]")
        K("s_waitcnt lgkmcnt(0)")
        K("s_mov_b32 s65, s62")
        dump(K)
    K("L_END:")
    K("s_endpgm")
    return K

def dump(K):
    n = 19
    K("s_waitcnt vmcnt(0) lgkmcnt(0)")
    K(f"s_add_u32 s52, s{PWS}, {WS_DBG}")
    K(f"s_addc_u32 s53, s{PWS+1}, 0")
    K("s_mov_b32 s54, 0x1000000")
    K("s_mov_b32 s55, 0x20000")
    for i in range(n):
        K(f"v_writelane_b32 v250, s{64+2*i}, {i}")
    K(f"v_writelane_b32 v250, s65, 20")
    K(f"v_and_b32 v251, 63, v0")
    K(f"v_lshlrev_b32 v251, 2, v251")
    K(f"s_lshl_b32 s56, s2, 3")
    K(f"s_add_u32 s56, s56, s{SW8}")
    K(f"s_lshl_b32 s56, s56, 8")
    K(f"buffer_store_dword v250, v251, s[52:55], s56 offen")
    K("s_waitcnt vmcnt(0)")

if __name__ == "__main__":
    K = gen()
    txt = "; adaLN + FNet (FFT factorised, MFMA) + ReLU FFN, one persistent launch\n"
    if PLAIN: txt += f"; @launch grid=(256,1,1) block=(512,1,1) lds={LDS_TOTAL}\n"
    else: txt += f"; @launch kernel=main_kernel grid=(256,1,1) block=(512,1,1) lds={LDS_TOTAL}\n"
    txt += '.amdgcn_target "amdgcn-amd-amdhsa--gfx950"\n'
    txt += head(K.name) + K.finalize() + desc(K.name, 256, 256)
    out = sys.argv[1] if len(sys.argv) > 1 else f"cdna_kernels/{NAME}.s"
    open(out, "w").write(txt)
    print("wrote", out, len(txt))
```

```python
import sys, os, struct
from asmdsl import *

NAME = "adaLN_cond__spectral_fnet__dense_activation_relu__prompt"
WS_MOD = 0
WS_SYNC = 0x4000
WS_U   = 0x10000
WS_X2  = WS_U + 0x200000
WS_H2  = WS_X2 + 0x200000
WS_H   = WS_H2 + 0x200000
H_BYTES = 2048 * 1792 * 2
PLAIN_DATA = int(os.environ.get('PLAIN_DATA', '0'))
SLOW_OFF = 0x1000000 if PLAIN_DATA else 0
WS_GX = 0x8000
WS_FL = 0x9000
WS_DBG = 0x3000000
STAMPS = bool(int(os.environ.get('STAMPS', '0')))
PLAIN = bool(int(os.environ.get('PLAIN', '0')))
def envint(k, d): return int(os.environ.get(k, d))
W1S = [int(x) for x in os.environ.get('W1S', '4,0,4,4,4,4,4,8').split(',')]
W2S = [int(x) for x in os.environ.get('W2S', '0,0,0,0,0,0,0,4,10').split(',')]
WARM = envint('WARM', 0)
THR = envint('THR', 6)
SC = "sc1"
LDM = os.environ.get('LDM', 'sc1').replace('_', ' ')

LDS_S = 131072
XN, RS1 = LDS_S, 192
OUTB, OUTS = LDS_S + 12288, 144
GB_ = LDS_S
YB, YSTRIDE = LDS_S + 8192, 4880
MODL = YB + 4 * YSTRIDE
LDS_TOTAL = 163840
assert MODL + 3072 <= LDS_TOTAL

NSLOT_ = 9
def fconst(x): return hex(struct.unpack("<I", struct.pack("<f", x))[0])

def srd(K, r, lo, size, add=0):
    if add:
        K(f"s_add_u32 s{r}, s{lo}, {add}")
        K(f"s_addc_u32 s{r+1}, s{lo+1}, 0")
    else:
        K(f"s_mov_b32 s{r}, s{lo}")
        K(f"s_mov_b32 s{r+1}, s{lo+1}")
    K(f"s_mov_b32 s{r+2}, {size}")
    K(f"s_mov_b32 s{r+3}, 0x20000")

def srd_fs(K, r, size, add):
    K(f"""
    s_cmp_eq_u32 s{SFAST}, 0
    s_cselect_b32 s27, {SLOW_OFF}, 0
    s_add_u32 s{r}, s{PWS}, s27
    s_addc_u32 s{r+1}, s{PWS+1}, 0
    s_add_u32 s{r}, s{r}, {add}
    s_addc_u32 s{r+1}, s{r+1}, 0
    s_mov_b32 s{r+2}, {size}
    s_mov_b32 s{r+3}, 0x20000
    """)

def interleave(K, A, B, ratio):
    bi = 0
    for x in A:
        K(x)
        for _ in range(ratio):
            if bi < len(B):
                K(B[bi]); bi += 1
    while bi < len(B):
        K(B[bi]); bi += 1

class Buf:
    def __init__(self): self.L = []
    def __call__(self, text):
        for ln in text.split("\n"):
            ln = ln.strip()
            if ln: self.L.append(ln)

PX, PWS, PW1, PW2, POUT, PDBG, PC, PWM = 4, 6, 8, 10, 12, 14, 16, 18
SW8, SW, SX, SL, SSPIN = 20, 21, 22, 23, 24
SFAST, SNONCE = 25, 26
R_X, R_U, R_MOD, R_A, R_B, SYNC = 28, 32, 36, 40, 44, 48

def gsync(K, lbl, own_off, nlines, target, cnt_addr, is_leader, rel_addr, nrel, my_rel, w_arr, n_arr, w_rel, mid=None):
    K(f"""
    v_mov_b32 v12, {LSY}
    v_mov_b32 v13, 1
    s_mov_b64 exec, 1
    ds_add_rtn_u32 v14, v12, v13 offset:{4*w_arr}
    s_waitcnt lgkmcnt(0)
    v_readfirstlane_b32 s27, v14
    s_cmp_lg_u32 s27, {n_arr-1}
    s_cbranch_scc1 {lbl}_A
    {own_off}
    v_mov_b32 v14, s52
    buffer_atomic_add v13, v14, s[{SYNC}:{SYNC+3}], 0 offen
    {lbl}_A:
    s_mov_b64 exec, -1
    """)
    K("; @save")
    if mid is not None: mid()
    K(f"""
    s_cmp_lg_u32 s{SW8}, 0
    s_cbranch_scc1 {lbl}_W
    {is_leader}
    s_cbranch_scc0 {lbl}_O
    {cnt_addr}
    s_mov_b64 exec, {hex((1 << nlines) - 1)}
    {lbl}_P:
    buffer_load_dword v14, v13, s[{SYNC}:{SYNC+3}], 0 offen sc1
    s_waitcnt vmcnt(0)
    s_sub_u32 s{SSPIN}, s{SSPIN}, 1
    s_cbranch_scc1 {lbl}_R
    v_cmp_gt_u32 vcc, {target}, v14
    s_cbranch_vccnz {lbl}_P
    {lbl}_R:
    s_mov_b64 exec, {hex((1 << nrel) - 1)}
    {rel_addr}
    v_mov_b32 v14, 1
    buffer_store_dword v14, v13, s[{SYNC}:{SYNC+3}], 0 offen sc1
    s_branch {lbl}_X
    {lbl}_O:
    {my_rel}
    s_mov_b64 exec, 1
    {lbl}_Q:
    buffer_load_dword v14, v13, s[{SYNC}:{SYNC+3}], 0 offen sc1
    s_waitcnt vmcnt(0)
    v_readfirstlane_b32 s27, v14
    s_sub_u32 s{SSPIN}, s{SSPIN}, 1
    s_cbranch_scc1 {lbl}_X
    s_cmp_eq_u32 s27, 0
    s_cbranch_scc1 {lbl}_Q
    {lbl}_X:
    s_mov_b64 exec, 1
    v_mov_b32 v12, {LSY}
    v_mov_b32 v13, 1
    ds_write_b32 v12, v13 offset:{4*w_rel}
    s_mov_b64 exec, -1
    s_branch {lbl}_D
    {lbl}_W:
    v_mov_b32 v12, {LSY}
    """)
    lwait(K, w_rel, 1, 12, 14, st=27)
    K(f"{lbl}_D:")

def gsync_group(K, lbl, which, base, w_arr, w_rel, mid):
    K(f"""
    s_cmp_eq_u32 s{SFAST}, 0
    s_cbranch_scc1 {lbl}_SLOW
    """)
    K("; @save")
    srd(K, SYNC, PWS, 0x10000)
    K(f"""
    v_mov_b32 v12, {LSY}
    v_mov_b32 v13, 1
    s_mov_b64 exec, 1
    ds_add_rtn_u32 v14, v12, v13 offset:{4*w_arr}
    s_waitcnt lgkmcnt(0)
    v_readfirstlane_b32 s27, v14
    s_lshl_b32 s52, s54, 7
    s_add_u32 s52, s52, {WS_FL + which*2048}
    s_cmp_lg_u32 s27, 3
    s_cbranch_scc1 {lbl}_FA
    s_and_b32 s53, s{SL}, 1
    s_lshr_b32 s63, s{SL}, 2
    s_lshl_b32 s63, s63, 1
    s_add_u32 s53, s53, s63
    s_lshl_b32 s53, s53, 2
    v_mov_b32 v14, s53
    v_mov_b32 v13, s{SNONCE}
    buffer_store_dword v13, v14, s[{SYNC}:{SYNC+3}], s52 offen
    {lbl}_FA:
    s_mov_b64 exec, -1
    s_mov_b32 s63, s52
    """)
    mid(f"{lbl}F")
    K(f"""
    s_cmp_lg_u32 s{SW8}, 0
    s_cbranch_scc1 {lbl}_FW
    v_lshlrev_b32 v13, 2, v1
    s_mov_b64 exec, 0xffff
    {lbl}_FP:
    buffer_load_dword v14, v13, s[{SYNC}:{SYNC+3}], s63 offen sc1
    s_waitcnt vmcnt(0)
    s_sub_u32 s{SSPIN}, s{SSPIN}, 1
    s_cbranch_scc1 {lbl}_FX
    v_cmp_ne_u32 vcc, s{SNONCE}, v14
    s_cbranch_vccnz {lbl}_FP
    {lbl}_FX:
    s_mov_b64 exec, 1
    v_mov_b32 v12, {LSY}
    v_mov_b32 v13, 1
    ds_write_b32 v12, v13 offset:{4*w_rel}
    s_mov_b64 exec, -1
    s_branch {lbl}_DONE
    {lbl}_FW:
    v_mov_b32 v12, {LSY}
    """)
    lwait(K, w_rel, 1, 12, 14, st=27)
    K(f"s_branch {lbl}_DONE")
    K(f"{lbl}_SLOW:")
    K("; @restore")
    srd(K, SYNC, PWS, SYNC_BYTES, WS_SYNC)
    gsync(K, lbl, f"s_lshl_b32 s52, s54, 7\n s_add_u32 s52, s52, {base*128}", 1, 16,
          f"s_lshl_b32 s52, s54, 7\n s_add_u32 s52, s52, {base*128}\n v_mov_b32 v13, s52",
          f"s_and_b32 s52, s{SL}, 29\n s_cmp_eq_u32 s52, 0",
          f"s_lshl_b32 s52, s54, 7\n s_add_u32 s52, s52, {(base+16)*128}\n v_mov_b32 v13, s52", 1,
          f"s_lshl_b32 s52, s54, 7\n s_add_u32 s52, s52, {(base+16)*128}\n v_mov_b32 v13, s52", w_arr, 4, w_rel, mid=lambda: mid(f"{lbl}S"))
    K(f"{lbl}_DONE:")

SYNC_BYTES = 88 * 128

LSY = MODL + 3072
VSY, VONE, VTMP = 244, 245, 246
_lcnt = [0]
def lsy_regs(K, a, o):
    K(f"v_mov_b32 v{a}, {LSY}")
    K(f"v_mov_b32 v{o}, 1")
def larrive(K, word, a, o):
    K(f"""
    s_mov_b64 exec, 1
    ds_add_u32 v{a}, v{o} offset:{4*word}
    s_mov_b64 exec, -1
    """)
def lwait(K, word, n, a, t, st=53):
    _lcnt[0] += 1
    L = f"LW{_lcnt[0]}"
    slp = envint('HSLEEP', 0) if getattr(K, 'in_helper', False) else envint('CSLEEP', 0)
    K(f"{L}:")
    if slp: K(f"s_sleep {slp}")
    K(f"""
    ds_read_b32 v{t}, v{a} offset:{4*word}
    s_waitcnt lgkmcnt(0)
    v_readfirstlane_b32 s{st}, v{t}
    s_cmp_lt_u32 s{st}, {n}
    s_cbranch_scc1 {L}
    """)
def lsync(K, word, a=12, o=13, t=14):
    lsy_regs(K, a, o)
    larrive(K, word, a, o)
    lwait(K, word, 4, a, t, st=27)

def unpack8(K, src, dst):
    for p in range(4):
        K(f"v_lshlrev_b32 v{dst+2*p}, 16, v{src+p}")
        K(f"v_and_b32 v{dst+2*p+1}, 0xffff0000, v{src+p}")

P4ST = envint('P4ST', 0)
RSIG = tuple(int(x) for x in os.environ.get('RSIG', '4,8,13').split(','))
def gen():
    kname = f"{NAME}_kernel" if PLAIN else "main_kernel"
    K = Kernel(kname); K.stamps_on = STAMPS
    if P4ST:
        _orig = K.stamp
        def stamp(i, real=False, force=False):
            if force or i in (0, 1) or i >= 16 or getattr(K, 'in_helper', False): _orig(i, real)
        K.stamp = stamp
    K.stamp(0, real=True); K.stamp(1)
    K(f"""
    s_load_dwordx2 s[{PX}:{PX+1}], s[0:1], 0
    s_load_dwordx2 s[{PWS}:{PWS+1}], s[0:1], 96
    s_load_dwordx4 s[{PW1}:{PW1+3}], s[0:1], 48
    s_load_dwordx4 s[{PC}:{PC+3}], s[0:1], 64
    s_load_dwordx4 s[{POUT}:{POUT+3}], s[0:1], 80
    s_cmp_ge_u32 s2, 256
    s_cbranch_scc1 L_END
    v_and_b32 v1, 63, v0
    v_lshrrev_b32 v4, 6, v0
    v_readfirstlane_b32 s{SW8}, v4
    s_and_b32 s{SX}, s2, 7
    s_lshr_b32 s{SL}, s2, 3
    s_mov_b32 s{SSPIN}, 400000
    v_lshrrev_b32 v2, 4, v1
    v_and_b32 v3, 15, v1
    s_and_b32 s{SW}, s{SW8}, 3
    v_lshlrev_b32 v4, 2, v1
    v_add_u32 v4, {LSY}, v4
    v_mov_b32 v5, 0
    s_mov_b32 exec_hi, 0
    ds_write_b32 v4, v5
    s_mov_b64 exec, -1
    s_waitcnt lgkmcnt(0)
    s_barrier
    s_cmp_ge_u32 s{SW8}, 4
    s_cbranch_scc1 L_HELPER
    """)
    if envint('CPRIO', 0): K(f"s_setprio {envint('CPRIO', 0)}")
    X = 8; CB = 72; T = 88
    K(f"""
    s_and_b32 s54, s2, 31
    s_lshr_b32 s55, s2, 5
    v_lshrrev_b32 v5, 3, v1
    v_and_b32 v6, 7, v1
    s_lshl_b32 s52, s{SW}, 4
    v_add_u32 v7, s52, v5
    v_lshlrev_b32 v4, 15, v7
    v_lshl_add_u32 v4, v6, 4, v4
    s_lshl_b32 s52, s54, 10
    v_add_u32 v4, s52, v4
    v_add_u32 v7, 0x40000, v4
    """)
    for j in range(8):
        K(f"s_add_u32 s{56+j}, s55, {j}")
        K(f"s_and_b32 s{56+j}, s{56+j}, 7")
        K(f"s_lshl_b32 s{56+j}, s{56+j}, 7")
    K("s_waitcnt lgkmcnt(0)")
    srd(K, R_X, PX, 0x200000)
    LD = Buf()
    for j in range(8):
        for u in range(2):
            LD(f"buffer_load_dwordx4 {v(X+(j*2+u)*4,4)}, v{4 if u == 0 else 7}, s[{R_X}:{R_X+3}], s{56+j} offen{' nt' if envint('XNT',0) else ''}")
    vo, vsl, vc, vd, vb, vf, vd8, vst = T, T+1, T+2, T+3, T+4, T+5, T+6, T+7
    tt = T+8
    vw, vr, vow, vor = T+16, T+17, T+18, T+19
    C = Buf()
    C(f"""
    s_lshr_b32 s52, s{SW}, 1
    s_lshl_b32 s52, s52, 5
    v_and_b32 v{vo}, 31, v1
    v_add_u32 v{vo}, s52, v{vo}
    v_lshrrev_b32 v{vsl}, 1, v{vo}
    v_and_b32 v{vc}, 1, v{vo}
    v_cvt_f32_u32 v{vd}, v{vsl}
    v_mul_f32 v{vd}, {fconst(1/64)}, v{vd}
    v_mul_u32_u24 v{vb}, s54, v{vsl}
    v_cvt_f32_u32 v{vb}, v{vb}
    v_mul_f32 v{vb}, {fconst(1/2048)}, v{vb}
    v_cvt_f32_u32 v{vf}, v{vc}
    v_fmac_f32 v{vb}, 0.25, v{vf}
    v_cmp_eq_u32 vcc, 1, v{vo}
    v_mov_b32 v{vd8}, 0.5
    v_mov_b32 v{vst}, 0
    v_cndmask_b32 v{vd}, v{vd}, v{vd8}, vcc
    v_cndmask_b32 v{vb}, v{vb}, v{vst}, vcc
    v_lshrrev_b32 v{vf}, 5, v1
    v_cvt_f32_u32 v{vf}, v{vf}
    v_mul_f32 v{vd8}, {fconst(8.0)}, v{vd}
    v_fma_f32 v{vf}, v{vf}, v{vd8}, v{vb}
    """)
    for st in range(4):
        for j in range(8):
            C(f"v_cos_f32 v{tt+j}, v{vf}")
            C(f"v_add_f32 v{vf}, v{vf}, v{vd}")
        C(f"v_add_f32 v{vf}, v{vf}, v{vd8}")
        for p in range(4):
            C(f"v_cvt_pk_bf16_f32 v{CB+st*4+p}, v{tt+2*p}, v{tt+2*p+1}")
    C(f"""
    s_lshl_b32 s52, s{SW}, 4
    v_add_u32 v{vw}, s52, v5
    v_mul_u32_u24 v{vw}, {RS1}, v{vw}
    v_lshl_add_u32 v{vw}, v6, 4, v{vw}
    v_add_u32 v{vw}, {XN}, v{vw}
    v_lshrrev_b32 v{tt}, 5, v1
    v_lshlrev_b32 v{tt}, 3, v{tt}
    v_bfe_u32 v{tt+1}, v1, 2, 2
    v_add_u32 v{tt}, v{tt}, v{tt+1}
    v_mul_u32_u24 v{vr}, {RS1}, v{tt}
    v_bfe_u32 v{tt}, v1, 4, 1
    v_lshlrev_b32 v{tt}, 5, v{tt}
    v_add_u32 v{vr}, v{vr}, v{tt}
    v_and_b32 v{tt}, 3, v1
    v_lshl_add_u32 v{vr}, v{tt}, 3, v{vr}
    s_and_b32 s52, s{SW}, 1
    s_lshl_b32 s52, s52, 6
    s_add_u32 s52, s52, {XN}
    v_add_u32 v{vr}, s52, v{vr}
    v_mul_u32_u24 v{vow}, {OUTS}, v{vo}
    v_lshrrev_b32 v{tt}, 5, v1
    v_lshl_add_u32 v{vow}, v{tt}, 4, v{vow}
    s_and_b32 s52, s{SW}, 1
    s_lshl_b32 s52, s52, 6
    s_add_u32 s52, s52, {OUTB}
    v_add_u32 v{vow}, s52, v{vow}
    s_lshl_b32 s52, s{SW}, 4
    v_add_u32 v{tt}, s52, v5
    v_mul_u32_u24 v{vor}, {OUTS}, v{tt}
    v_lshl_add_u32 v{vor}, v6, 4, v{vor}
    v_add_u32 v{vor}, {OUTB}, v{vor}
    v_lshrrev_b32 v{tt+1}, 1, v{tt}
    v_lshlrev_b32 v{vst}, 6, v{tt+1}
    v_and_b32 v{tt+1}, 1, v{tt}
    v_add_u32 v{vst}, v{vst}, v{tt+1}
    s_lshl_b32 s52, s54, 1
    v_add_u32 v{vst}, s52, v{vst}
    v_lshlrev_b32 v{vst}, 10, v{vst}
    v_lshl_add_u32 v{vst}, v6, 4, v{vst}
    s_lshl_b32 s53, s55, 7
    s_mov_b32 s52, 0x3f803f80
    """)
    interleave(K, LD.L, C.L, 9)
    srd(K, R_U, PWS, 0x200000, WS_U)
    srd(K, SYNC, PWS, SYNC_BYTES, WS_SYNC)
    srd(K, R_MOD, PWS, 12288)
    K.stamp(2)
    S0, Q0, S1_, Q1 = T+20, T+21, T+22, T+23
    acc = [(S0, Q0), (S1_, Q1)]
    for j in range(8):
        K(f"s_waitcnt vmcnt({14-2*j})")
        for c4 in range(4):
            for u in range(2):
                x = X+(j*2+u)*4+c4
                first = (j == 0 and c4 == 0)
                K(f"v_dot2_f32_bf16 v{acc[u][0]}, v{x}, s52, {'0' if first else 'v%d' % acc[u][0]}")
                K(f"v_dot2_f32_bf16 v{acc[u][1]}, v{x}, v{x}, {'0' if first else 'v%d' % acc[u][1]}")
    K.stamp(3)
    N = T+24
    un = Buf()
    for u in range(2):
        for c4 in range(4):
            x = X+u*4+c4
            un(f"v_lshlrev_b32 v{N+u*8+2*c4}, 16, v{x}")
            un(f"v_and_b32 v{N+u*8+2*c4+1}, 0xffff0000, v{x}")
    ui = 0
    for perm in ("quad_perm:[1,0,3,2]", "quad_perm:[2,3,0,1]", "row_half_mirror"):
        for r in (S0, Q0, S1_, Q1):
            K(f"v_add_f32_dpp v{r}, v{r}, v{r} {perm} row_mask:0xf bank_mask:0xf")
        for _ in range(2): K(un.L[ui]); ui += 1
    for u in range(2):
        K(f"v_mul_f32 v{acc[u][0]}, {fconst(1/512)}, v{acc[u][0]}")
        K(f"v_mul_f32 v{acc[u][1]}, {fconst(1/512)}, v{acc[u][1]}")
    for u in range(2): K(f"v_fma_f32 v{acc[u][1]}, -v{acc[u][0]}, v{acc[u][0]}, v{acc[u][1]}")
    for u in range(2): K(f"v_max_f32 v{acc[u][1]}, 0, v{acc[u][1]}")
    for u in range(2): K(f"v_add_f32 v{acc[u][1]}, {fconst(1e-5)}, v{acc[u][1]}")
    for u in range(2): K(f"v_rsq_f32 v{acc[u][1]}, v{acc[u][1]}")
    while ui < len(un.L): K(un.L[ui]); ui += 1
    for u in range(2): K(f"v_mul_f32 v{acc[u][0]}, v{acc[u][0]}, v{acc[u][1]}")
    for u in range(2):
        sm, sq = acc[u]
        for e in range(8):
            K(f"v_fma_f32 v{N+u*8+e}, v{N+u*8+e}, v{sq}, -v{sm}")
        P = X+16+u*4
        for c4 in range(4):
            K(f"v_cvt_pk_bf16_f32 v{P+c4}, v{N+u*8+2*c4}, v{N+u*8+2*c4+1}")
        K(f"ds_write_b128 v{vw}, {v(P,4)} offset:{u*8*RS1}")
    K.stamp(4)
    lsync(K, 0, a=T+40, o=T+41, t=T+42)
    AF = X
    for st in range(4):
        for rd in range(2):
            K(f"ds_read_b64_tr_b16 {v(AF+st*4+rd*2,2)}, v{vr} offset:{(16*st+4*rd)*RS1}")
    ACC = X+32
    for st in range(4):
        K(f"s_waitcnt lgkmcnt({6-2*st})")
        K(f"v_mfma_f32_32x32x16_bf16 {v(ACC,16)}, {v(AF+st*4,4)}, {v(CB+st*4,4)}, {'0' if st==0 else v(ACC,16)}")
    sstore = 53
    K(f"s_mov_b32 s62, s53")
    K(f"""
    s_lshl_b32 s54, s{SX}, 2
    s_and_b32 s55, s{SL}, 3
    s_add_u32 s54, s54, s55
    s_lshr_b32 s55, s{SL}, 2
    s_lshl_b32 s56, s55, 2
    s_add_u32 s56, s56, s{SW}
    s_lshl_b32 s57, s56, 6
    s_cmp_eq_u32 s54, 0
    s_cbranch_scc1 P2_SLOT0
    s_add_u32 s58, s54, s57
    s_sub_u32 s59, 2048, s58
    s_branch P2_TOKD
    P2_SLOT0:
    s_cmp_lt_u32 s56, 16
    s_cbranch_scc1 P2_SLOT0A
    s_sub_u32 s58, s57, {64*16-32}
    s_sub_u32 s59, 2048, s58
    s_branch P2_TOKD
    P2_SLOT0A:
    s_mov_b32 s58, s57
    s_sub_u32 s59, 2048, s57
    s_cmp_eq_u32 s56, 0
    s_cselect_b32 s59, 1024, s59
    P2_TOKD:
    s_lshl_b32 s58, s58, 10
    s_lshl_b32 s59, s59, 10
    s_or_b32 s63, s54, s56
    """)
    PK = X+48
    for q in range(4):
        K(f"v_cvt_pk_bf16_f32 v{PK+2*q}, v{ACC+4*q}, v{ACC+4*q+1}")
        K(f"v_cvt_pk_bf16_f32 v{PK+2*q+1}, v{ACC+4*q+2}, v{ACC+4*q+3}")
    for pr in range(2):
        K(f"v_permlane32_swap_b32 v{PK+4*pr}, v{PK+4*pr+2}")
        K(f"v_permlane32_swap_b32 v{PK+4*pr+1}, v{PK+4*pr+3}")
    for pr in range(2):
        K(f"ds_write_b128 v{vow}, {v(PK+4*pr,4)} offset:{pr*32}")
    lsync(K, 1, a=T+40, o=T+41, t=T+42)
    K(f"ds_read_b128 {v(X,4)}, v{vor}")
    K(f"ds_read_b128 {v(X+4,4)}, v{vor} offset:{8*OUTS}")
    K(f"s_add_u32 s61, s62, {256*1024}")
    K("s_waitcnt lgkmcnt(1)")
    K(f"buffer_store_dwordx4 {v(X,4)}, v{vst}, s[{R_U}:{R_U+3}], s62 offen {SC}")
    K("s_waitcnt lgkmcnt(0)")
    K(f"buffer_store_dwordx4 {v(X+4,4)}, v{vst}, s[{R_U}:{R_U+3}], s61 offen {SC}")
    RAW, FR, K1F, XA, XB, MSH = 16, 80, 144, 152, 156, 160
    AS, CC, CS, CN, TWC, TWS, MM, MP, SA = 184, 192, 200, 208, 216, 224, 232, 236, 240
    K(f"v_lshlrev_b32 v6, 4, v1")
    K(f"buffer_load_dwordx4 {v(XA,4)}, v6, s[{R_X}:{R_X+3}], s58 offen")
    K(f"buffer_load_dwordx4 {v(XB,4)}, v6, s[{R_X}:{R_X+3}], s59 offen")
    K.stamp(5)
    GW, GR, YW, YN, YM, YS, HW, HR = 248, 249, 250, 251, 252, 253, 254, 255
    def p2_consts():
        f, p0, p1, a0, a1 = 8, 9, 10, 11, 15
        K(f"""
        v_lshrrev_b32 v16, 1, v3
        v_and_b32 v17, 1, v3
        s_lshl_b32 s52, s55, 2
        v_add_u32 v16, s52, v16
        v_cvt_f32_u32 v18, v17
        v_mul_f32 v18, 0.25, v18
        v_cvt_f32_u32 v{f}, v16
        v_mov_b32 v{a0}, 1.0
        v_mov_b32 v{a1}, 1.0
        s_cmp_eq_u32 s54, 0
        s_cbranch_scc1 P2_C0
        v_mul_f32 v{f}, {fconst(1/32)}, v{f}
        v_mov_b32 v{p0}, v18
        v_add_f32 v{p1}, {fconst(-0.25)}, v18
        s_branch P2_CD
        P2_C0:
        s_cmp_lt_u32 s55, 4
        s_cbranch_scc0 P2_C0B
        v_mul_f32 v{f}, {fconst(1/32)}, v{f}
        v_mov_b32 v{p0}, v18
        v_mov_b32 v{p1}, 0
        v_mov_b32 v{a1}, 0
        v_cmp_eq_u32 vcc, 0, v16
        v_add_f32 v18, v18, v18
        v_cndmask_b32 v{f}, v{f}, v18, vcc
        v_mov_b32 v18, 0
        v_cndmask_b32 v{p0}, v{p0}, v18, vcc
        s_branch P2_CD
        P2_C0B:
        v_add_f32 v{f}, v{f}, v{f}
        v_add_f32 v{f}, {fconst(-31.0)}, v{f}
        v_mul_f32 v{f}, {fconst(1/64)}, v{f}
        v_mov_b32 v{p0}, 0
        v_mov_b32 v{p1}, v18
        v_mov_b32 v{a0}, 0
        P2_CD:
        v_cmp_gt_u32 vcc, 8, v3
        v_mov_b32 v18, 0
        v_cndmask_b32 v{a0}, v18, v{a0}, vcc
        v_cndmask_b32 v{a1}, v18, v{a1}, vcc
        v_lshlrev_b32 v16, 2, v2
        v_cvt_f32_u32 v16, v16
        v_mul_f32 v16, v16, v{f}
        """)
        for st in range(2):
            for jj in range(4):
                t = 20 + 2*(jj % 2)
                K(f"v_add_f32 v{t}, v16, v{p0}")
                K(f"v_add_f32 v{t+1}, v16, v{p1}")
                K(f"v_cos_f32 v{t}, v{t}")
                K(f"v_cos_f32 v{t+1}, v{t+1}")
                K(f"v_add_f32 v16, v16, v{f}")
                K(f"v_mul_f32 v{t}, v{t}, v{a0}")
                K(f"v_mul_f32 v{t+1}, v{t+1}, v{a1}")
                K(f"v_cvt_pk_bf16_f32 v{AS+st*4+jj}, v{t}, v{t+1}")
            if st == 0:
                K(f"v_mul_f32 v17, {fconst(12.0)}, v{f}")
                K(f"v_add_f32 v16, v16, v17")
        K(f"""
        v_cvt_f32_u32 v8, v3
        v_mul_f32 v8, {fconst(1/32)}, v8
        v_lshlrev_b32 v9, 3, v2
        v_cvt_f32_u32 v9, v9
        v_mul_f32 v9, v9, v8
        """)
        for p in range(4):
            K(f"v_add_f32 v10, v9, v8")
            K(f"v_cos_f32 v16, v9")
            K(f"v_cos_f32 v17, v10")
            K(f"v_sin_f32 v18, v9")
            K(f"v_sin_f32 v19, v10")
            K(f"v_add_f32 v9, v10, v8")
            K(f"v_cvt_pk_bf16_f32 v{CC+p}, v16, v17")
            K(f"v_cvt_pk_bf16_f32 v{CS+p}, v18, v19")
        for p in range(4):
            K(f"v_xor_b32 v{CC+4+p}, 0x80000000, v{CC+p}")
            K(f"v_xor_b32 v{CS+4+p}, 0x80000000, v{CS+p}")
            K(f"v_xor_b32 v{CN+p}, 0x80008000, v{CS+p}")
            K(f"v_xor_b32 v{CN+4+p}, 0x00008000, v{CS+p}")
        K(f"v_lshlrev_b32 v8, 2, v2")
        for tau in range(2):
            K(f"v_add_u32 v9, {16*tau}, v3")
            for r in range(4):
                K(f"v_add_u32 v{16+r}, {r}, v8")
            for r in range(4):
                K(f"v_mul_u32_u24 v{16+r}, v{16+r}, v9")
            for r in range(4):
                K(f"v_cvt_f32_u32 v{16+r}, v{16+r}")
            for r in range(4):
                K(f"v_mul_f32 v{16+r}, {fconst(1/512)}, v{16+r}")
            for r in range(4):
                K(f"v_cos_f32 v{TWC+tau*4+r}, v{16+r}")
                K(f"v_sin_f32 v{TWS+tau*4+r}, v{16+r}")
        for jj in range(4): K(f"v_add_u32 v{16+jj}, {jj}, v8")
        for jj in range(4): K(f"v_mul_u32_u24 v{16+jj}, v{16+jj}, v3")
        for jj in range(4): K(f"v_cvt_f32_u32 v{16+jj}, v{16+jj}")
        for jj in range(4): K(f"v_mul_f32 v{16+jj}, {fconst(1/16)}, v{16+jj}")
        for jj in range(4):
            K(f"v_cos_f32 v{20+jj}, v{16+jj}")
            K(f"v_sin_f32 v{24+jj}, v{16+jj}")
        for p in range(2):
            K(f"v_cvt_pk_bf16_f32 v{MM+p}, v{20+2*p}, v{21+2*p}")
            K(f"v_cvt_pk_bf16_f32 v{MM+2+p}, v{24+2*p}, v{25+2*p}")
        for p in range(2):
            K(f"v_xor_b32 v{MP+p}, 0x80008000, v{MM+2+p}")
            K(f"v_mov_b32 v{MP+2+p}, v{MM+p}")
        K(f"""
        v_lshlrev_b32 v{GW}, 12, v2
        v_lshl_add_u32 v{GW}, v3, 4, v{GW}
        s_lshl_b32 s52, s{SW}, 8
        s_add_u32 s52, s52, {GB_}
        v_add_u32 v{GW}, s52, v{GW}
        v_lshlrev_b32 v8, 3, v2
        v_bfe_u32 v9, v1, 2, 2
        v_add_u32 v8, v8, v9
        v_lshlrev_b32 v{GR}, 5, v8
        v_and_b32 v9, 3, v1
        v_lshl_add_u32 v{GR}, v9, 3, v{GR}
        s_lshl_b32 s52, s{SW}, 11
        s_add_u32 s52, s52, {GB_}
        v_add_u32 v{GR}, s52, v{GR}
        s_mul_i32 s52, s{SW}, {YSTRIDE}
        s_add_u32 s52, s52, {YB}
        v_mul_u32_u24 v{YW}, 144, v3
        v_lshl_add_u32 v{YW}, v2, 4, v{YW}
        v_add_u32 v{YW}, s52, v{YW}
        v_lshrrev_b32 v8, 2, v1
        v_lshlrev_b32 v8, 4, v8
        v_lshl_add_u32 v{YN}, v1, 5, v8
        v_add_u32 v{YN}, s52, v{YN}
        v_sub_u32 v8, 63, v1
        v_lshrrev_b32 v9, 2, v8
        v_lshlrev_b32 v9, 4, v9
        v_lshl_add_u32 v{YM}, v8, 5, v9
        v_add_u32 v{YM}, s52, v{YM}
        v_sub_u32 v8, 64, v1
        v_and_b32 v8, 63, v8
        v_lshrrev_b32 v9, 2, v8
        v_lshlrev_b32 v9, 4, v9
        v_lshl_add_u32 v{YS}, v8, 5, v9
        v_add_u32 v{YS}, s52, v{YS}
        v_add_u32 v{HW}, s52, v6
        v_and_b32 v8, 7, v1
        v_lshrrev_b32 v9, 1, v8
        v_mul_u32_u24 v{HR}, {YSTRIDE}, v9
        v_and_b32 v9, 1, v8
        v_mul_u32_u24 v9, 1088, v9
        v_add_u32 v{HR}, v{HR}, v9
        v_lshrrev_b32 v9, 3, v1
        v_lshl_add_u32 v{HR}, v9, 4, v{HR}
        s_lshr_b32 s52, s{SW}, 1
        s_mul_i32 s52, s52, 2176
        s_and_b32 s53, s{SW}, 1
        s_lshl_b32 s53, s53, 9
        s_add_u32 s52, s52, s53
        s_add_u32 s52, s52, {YB}
        v_add_u32 v{HR}, s52, v{HR}
        s_lshl_b32 s52, s54, 16
        v_lshlrev_b32 v4, 13, v2
        v_lshl_add_u32 v4, v3, 4, v4
        s_lshl_b32 s53, s{SW}, 8
        s_add_u32 s52, s52, s53
        v_add_u32 v4, s52, v4
        v_lshlrev_b32 v5, 5, v3
        s_lshl_b32 s53, s{SW}, 9
        v_add_u32 v5, s53, v5
        v_lshlrev_b32 v7, 5, v1
        s_movk_i32 s60, 0x1000
        s_mov_b32 s61, 0x8000
        s_mov_b32 s62, 0x9000
        s_add_u32 s57, s{SW}, 2
        s_lshl_b32 s57, s57, 11
        """)
    K("s_waitcnt vmcnt(0)")
    K.stamp(6)
    gsync(K, "S1", f"s_lshl_b32 s52, s{SX}, 7", 8, 32, "v_lshlrev_b32 v13, 7, v1", "s_cmp_eq_u32 s2, 0",
          "v_lshlrev_b32 v13, 7, v1\n v_add_u32 v13, 1024, v13", 16,
          "s_and_b32 s52, s2, 15\n s_lshl_b32 s52, s52, 7\n s_add_u32 s52, s52, 1024\n v_mov_b32 v13, s52", 2, 8, 3, mid=p2_consts)
    K.stamp(7)
    late = Buf()
    for st in range(2):
        for j in range(8):
            so = ["0", "s60", "s61", "s62"][st*2 + j//4]
            t = f"buffer_load_dwordx4 {v(RAW+st*32+j*4,4)}, v4, s[{R_U}:{R_U+3}], {so} offen offset:{(j%4)*1024} {SC}"
            if st == 0 or j < envint('P2E', 2): K(t)
            else: late(t)
            if st == 0 and j == 3:
                K(f"buffer_load_dwordx4 {v(K1F,4)}, v5, s[{R_MOD}:{R_MOD+3}], 0 offen offset:2048 {SC}")
                K(f"buffer_load_dwordx4 {v(K1F+4,4)}, v5, s[{R_MOD}:{R_MOD+3}], 0 offen offset:2064 {SC}")
    srd(K, R_B, PWS, 0x10000)
    K(f"""
    s_bfe_u32 s52, s{SL}, 0x10001
    s_lshl_b32 s53, s{SX}, 1
    s_add_u32 s52, s52, s53
    s_lshl_b32 s27, s52, 7
    s_add_u32 s27, s27, {WS_GX}
    v_lshlrev_b32 v172, 2, v3
    """)
    late(f"buffer_load_dword v173, v172, s[{R_B}:{R_B+3}], s27 offen {SC}")
    late(f"buffer_load_dwordx4 {v(MSH,4)}, v7, s[{R_MOD}:{R_MOD+3}], s57 offen {SC}")
    late(f"buffer_load_dwordx4 {v(MSH+4,4)}, v7, s[{R_MOD}:{R_MOD+3}], s57 offen offset:16 {SC}")
    K(f"s_mov_b32 s52, 0x05040100")
    K(f"s_mov_b32 s53, 0x07060302")
    K.stamp(8)
    def rowfft(GRf, GIf, outR, outI, have_imag):
        TR, TI, TP, W2 = 96, 104, 112, 120
        for tau in range(2):
            K(f"v_mfma_f32_16x16x32_bf16 {v(TR+tau*4,4)}, {v(GRf,4)}, {v(CC+tau*4,4)}, 0")
            K(f"v_mfma_f32_16x16x32_bf16 {v(TI+tau*4,4)}, {v(GRf,4)}, {v(CN+tau*4,4)}, 0")
        if have_imag:
            for tau in range(2):
                K(f"v_mfma_f32_16x16x32_bf16 {v(TR+tau*4,4)}, {v(GIf,4)}, {v(CS+tau*4,4)}, {v(TR+tau*4,4)}")
                K(f"v_mfma_f32_16x16x32_bf16 {v(TI+tau*4,4)}, {v(GIf,4)}, {v(CC+tau*4,4)}, {v(TI+tau*4,4)}")
        for tau in range(2):
            for r in range(4):
                i = tau*4+r
                K(f"v_mul_f32 v{W2+i}, v{TR+i}, v{TWC+i}")
                K(f"v_mul_f32 v{W2+8+i}, v{TI+i}, v{TWC+i}")
            for r in range(4):
                i = tau*4+r
                K(f"v_fma_f32 v{W2+i}, v{TI+i}, v{TWS+i}, v{W2+i}")
                K(f"v_fma_f32 v{W2+8+i}, -v{TR+i}, v{TWS+i}, v{W2+8+i}")
            K(f"v_cvt_pk_bf16_f32 v{TP+tau*4+0}, v{W2+tau*4+0}, v{W2+tau*4+1}")
            K(f"v_cvt_pk_bf16_f32 v{TP+tau*4+1}, v{W2+tau*4+2}, v{W2+tau*4+3}")
            K(f"v_cvt_pk_bf16_f32 v{TP+tau*4+2}, v{W2+8+tau*4+0}, v{W2+8+tau*4+1}")
            K(f"v_cvt_pk_bf16_f32 v{TP+tau*4+3}, v{W2+8+tau*4+2}, v{W2+8+tau*4+3}")
        for tau in range(2):
            K(f"v_mfma_f32_16x16x32_bf16 {v(outR+tau*4,4)}, {v(TP+tau*4,4)}, {v(MM,4)}, 0")
        if outI is not None:
            for tau in range(2):
                K(f"v_mfma_f32_16x16x32_bf16 {v(outI+tau*4,4)}, {v(TP+tau*4,4)}, {v(MP,4)}, 0")
    K("; @save")
    K(f"""
    s_cmp_lg_u32 s63, 0
    s_cbranch_scc1 P2_NOSA
    buffer_load_dwordx4 {v(128,4)}, v7, s[{R_MOD}:{R_MOD+3}], 0 offen {SC}
    buffer_load_dwordx4 {v(132,4)}, v7, s[{R_MOD}:{R_MOD+3}], 0 offen offset:16 {SC}
    s_waitcnt vmcnt(0)
    """)
    for p in range(4): K(f"v_cvt_pk_bf16_f32 v{136+p}, v{128+2*p}, v{129+2*p}")
    unpack8(K, 136, 128)
    for e in range(8): K(f"v_mul_f32 v{128+e}, {fconst(2048.0)}, v{128+e}")
    for p in range(4): K(f"v_cvt_pk_bf16_f32 v{136+p}, v{128+2*p}, v{129+2*p}")
    K(f"""
    ds_write_b128 v{HW}, {v(136,4)}
    v_add_u32 v8, {YB - GB_}, v{GR}
    s_waitcnt lgkmcnt(0)
    ds_read_b64_tr_b16 {v(140,2)}, v8
    ds_read_b64_tr_b16 {v(142,2)}, v8 offset:128
    s_waitcnt lgkmcnt(0)
    """)
    rowfft(140, None, SA, None, False)
    K("P2_NOSA:")
    K("; @restore")
    K(f"s_waitcnt vmcnt({envint('P2E', 2)})")
    K.stamp(9)
    KP = 168
    for p in range(4): K(f"v_cvt_pk_bf16_f32 v{KP+p}, v{K1F+2*p}, v{K1F+2*p+1}")
    def perms(st, extra=None):
        n = 0
        for i in range(8):
            for p in range(4):
                c4, hb = i//2, i%2
                K(f"v_perm_b32 v{FR+st*32+i*4+p}, v{RAW+st*32+(2*p+1)*4+c4}, v{RAW+st*32+(2*p)*4+c4}, s{52+hb}")
                n += 1
                if extra and n % 3 == 0: K(extra.pop(0))
        while extra: K(extra.pop(0))
    perms(0, late.L)
    unpack8(K, KP, K1F)
    for e in range(8): K(f"v_add_f32 v{K1F+e}, 1.0, v{K1F+e}")
    ACC = 172
    ACC = RAW
    for i in range(8):
        K(f"v_mfma_f32_16x16x32_bf16 {v(ACC+i*4,4)}, {v(AS,4)}, {v(FR+i*4,4)}, 0")
        if i < 4: K(f"v_cvt_pk_bf16_f32 v{KP+i}, v{K1F+2*i}, v{K1F+2*i+1}")
    K(f"s_waitcnt vmcnt(3)")
    if envint('GATE1', 0) == 2:
        lsy_regs(K, 8, 9)
        larrive(K, 19, 8, 9)
    perms(1)
    unpack8(K, KP, K1F)
    for i in range(8):
        K(f"v_mfma_f32_16x16x32_bf16 {v(ACC+i*4,4)}, {v(AS+4,4)}, {v(FR+32+i*4,4)}, {v(ACC+i*4,4)}")
    K(f"s_waitcnt vmcnt(0)")
    K(f"""
    s_getreg_b32 s52, hwreg(HW_REG_XCC_ID)
    s_and_b32 s52, s52, 15
    v_cmp_ne_u32 vcc, s52, v173
    s_cmp_eq_u64 vcc, 0
    s_cselect_b32 s{SFAST}, {0 if envint('FORCESLOW', 0) else 1}, 0
    v_mov_b32 v172, {LSY}
    ds_read_b32 v173, v172 offset:56
    """)
    for p in range(4): K(f"v_cvt_pk_bf16_f32 v{KP+p}, v{MSH+2*p}, v{MSH+2*p+1}")
    K("; @save")
    K(f"""
    s_cmp_lg_u32 s{SW}, 2
    s_cbranch_scc1 P2_NOK2
    """)
    unpack8(K, KP, MSH)
    for e in range(8): K(f"v_add_f32 v{MSH+e}, 1.0, v{MSH+e}")
    for p in range(4): K(f"v_cvt_pk_bf16_f32 v{KP+p}, v{MSH+2*p}, v{MSH+2*p+1}")
    K("P2_NOK2:")
    K("; @restore")
    K(f"""
    s_lshl_b32 s57, s{SW}, 10
    s_add_u32 s57, s57, {MODL}
    v_add_u32 v8, s57, v6
    s_cmp_eq_u32 s{SW}, 3
    s_cbranch_scc1 P2_NOMW
    ds_write_b128 v8, {v(KP,4)}
    P2_NOMW:
    """)
    GP = RAW+32
    K("s_mov_b32 exec_hi, 0")
    for r in range(4):
        for i in range(8):
            K(f"v_mul_f32 v{ACC+i*4+r}, v{ACC+i*4+r}, v{K1F+i}")
        for p in range(4):
            K(f"v_cvt_pk_bf16_f32 v{GP+r*4+p}, v{ACC+(2*p)*4+r}, v{ACC+(2*p+1)*4+r}")
        K(f"ds_write_b128 v{GW}, {v(GP+r*4,4)} offset:{r*1024}")
    K("s_mov_b64 exec, -1")
    lsync(K, 4, a=8, o=9, t=10)
    K(f"v_readfirstlane_b32 s{SNONCE}, v173")
    K.stamp(10)
    GRf, GIf = 80, 84
    GAP, SBP, K2P = 160, 164, 168
    K(f"""
    ds_read_b64_tr_b16 {v(GRf,2)}, v{GR}
    ds_read_b64_tr_b16 {v(GRf+2,2)}, v{GR} offset:128
    ds_read_b64_tr_b16 {v(GIf,2)}, v{GR} offset:1024
    ds_read_b64_tr_b16 {v(GIf+2,2)}, v{GR} offset:1152
    v_add_u32 v8, {MODL}, v6
    ds_read_b128 {v(GAP,4)}, v8
    ds_read_b128 {v(SBP,4)}, v8 offset:1024
    ds_read_b128 {v(K2P,4)}, v8 offset:2048
    """)
    XF = [88, 32]
    for side, xr in enumerate((XA, XB)): unpack8(K, xr, XF[side])
    K("s_waitcnt lgkmcnt(3)")
    YR, YI = 16, 24
    rowfft(GRf, GIf, YR, YI, True)
    GA, K2R, SB = 144, 176, 136
    K("s_waitcnt lgkmcnt(0)")
    NA, BL, YA_, YB2 = 40, 48, 64, 72
    A2 = 2432
    K("; @save")
    K(f"""
    s_cmp_lg_u32 s63, 0
    s_cbranch_scc1 P2_REG
    """)
    unpack8(K, GAP, GA)
    for e in range(8):
        K(f"v_add_f32 v{YR+e}, v{YR+e}, v{SA+e}")
    for tau in range(2):
        K(f"ds_write_b128 v{YW}, {v(YR+tau*4,4)} offset:{tau*64}")
        K(f"ds_write_b128 v{YW}, {v(YI+tau*4,4)} offset:{A2+tau*64}")
    K("s_waitcnt lgkmcnt(0)")
    for (off, dst) in ((0, YA_), (A2, YB2)):
        K(f"ds_read_b128 {v(NA,4)}, v{YN} offset:{off}")
        K(f"ds_read_b128 {v(NA+4,4)}, v{YN} offset:{off+16}")
        K(f"ds_read_b128 {v(BL,4)}, v{YM} offset:{off}")
        K(f"ds_read_b128 {v(BL+4,4)}, v{YM} offset:{off+16}")
        K(f"ds_read_b32 v{BL+8}, v{YS} offset:{off}")
        K("s_waitcnt lgkmcnt(0)")
        for i in range(8):
            src = BL+8 if i == 0 else BL+8-i
            K(f"v_add_f32 v{dst+i}, v{NA+i}, v{src}")
        for i in range(8):
            K(f"v_mul_f32 v{dst+i}, 0.5, v{dst+i}")
    for i in range(8):
        K(f"v_fma_f32 v{XF[1]+i}, v{GA+i}, v{YB2+i}, v{XF[1]+i}")
    unpack8(K, K2P, K2R); unpack8(K, SBP, SB)
    K("s_branch P2_EPI")
    K("P2_REG:")
    K("; @restore")
    for tau in range(2):
        K(f"ds_write_b128 v{YW}, {v(YR+tau*4,4)} offset:{tau*64}")
    unpack8(K, GAP, GA)
    K("s_waitcnt lgkmcnt(0)")
    K(f"ds_read_b128 {v(YA_,4)}, v{YN}")
    K(f"ds_read_b128 {v(YA_+4,4)}, v{YN} offset:16")
    K(f"ds_read_b128 {v(BL,4)}, v{YM}")
    K(f"ds_read_b128 {v(BL+4,4)}, v{YM} offset:16")
    K(f"ds_read_b32 v{BL+8}, v{YS}")
    unpack8(K, K2P, K2R); unpack8(K, SBP, SB)
    K("s_waitcnt lgkmcnt(0)")
    for i in range(8):
        src = BL+8 if i == 0 else BL+8-i
        K(f"v_fma_f32 v{XF[1]+i}, v{GA+i}, v{src}, v{XF[1]+i}")
    K("P2_EPI:")
    for i in range(8):
        K(f"v_fma_f32 v{XF[0]+i}, v{GA+i}, v{YA_+i}, v{XF[0]+i}")
    X2P = [80, 84]
    for side in range(2):
        for c4 in range(4):
            K(f"v_cvt_pk_bf16_f32 v{X2P[side]+c4}, v{XF[side]+2*c4}, v{XF[side]+2*c4+1}")
    K("s_mov_b32 s52, 0x3f803f80")
    ST = [104, 105, 106, 107]
    for c4 in range(4):
        for side in range(2):
            x = X2P[side]+c4
            K(f"v_dot2_f32_bf16 v{ST[2*side]}, v{x}, s52, {'0' if c4==0 else 'v%d'%ST[2*side]}")
            K(f"v_dot2_f32_bf16 v{ST[2*side+1]}, v{x}, v{x}, {'0' if c4==0 else 'v%d'%ST[2*side+1]}")
    K(f"ds_write_b128 v{HW}, {v(X2P[0],4)}")
    K(f"ds_write_b128 v{HW}, {v(X2P[1],4)} offset:1088")
    steps = ("quad_perm:[1,0,3,2]", "quad_perm:[2,3,0,1]", "row_half_mirror", "row_mirror")
    for si, perm in enumerate(steps):
        for r in ST:
            K(f"v_add_f32_dpp v{r}, v{r}, v{r} {perm} row_mask:0xf bank_mask:0xf")
        side, half = si // 2, si % 2
        for c4 in range(2*half, 2*half+2):
            K(f"v_lshlrev_b32 v{XF[side]+2*c4}, 16, v{X2P[side]+c4}")
            K(f"v_and_b32 v{XF[side]+2*c4+1}, 0xffff0000, v{X2P[side]+c4}")
    for swap in ("v_permlane16_swap_b32", "v_permlane32_swap_b32"):
        for i, r in enumerate(ST): K(f"v_mov_b32 v{108+i}, v{r}")
        for i, r in enumerate(ST): K(f"{swap} v{r}, v{108+i}")
        for i, r in enumerate(ST): K(f"v_add_f32 v{r}, v{r}, v{108+i}")
    for side in range(2):
        K(f"v_mul_f32 v{ST[2*side]}, {fconst(1/512)}, v{ST[2*side]}")
        K(f"v_mul_f32 v{ST[2*side+1]}, {fconst(1/512)}, v{ST[2*side+1]}")
    for side in range(2): K(f"v_fma_f32 v{ST[2*side+1]}, -v{ST[2*side]}, v{ST[2*side]}, v{ST[2*side+1]}")
    for side in range(2): K(f"v_max_f32 v{ST[2*side+1]}, 0, v{ST[2*side+1]}")
    for side in range(2): K(f"v_add_f32 v{ST[2*side+1]}, {fconst(1e-5)}, v{ST[2*side+1]}")
    for side in range(2): K(f"v_rsq_f32 v{ST[2*side+1]}, v{ST[2*side+1]}")
    HP = [112, 116]
    for side in range(2):
        for e in range(8):
            K(f"v_sub_f32 v{XF[side]+e}, v{XF[side]+e}, v{ST[2*side]}")
    for side in range(2):
        for e in range(8):
            K(f"v_mul_f32 v{XF[side]+e}, v{XF[side]+e}, v{ST[2*side+1]}")
        for e in range(8):
            K(f"v_fma_f32 v{XF[side]+e}, v{XF[side]+e}, v{K2R+e}, v{SB+e}")
        for c4 in range(4):
            K(f"v_cvt_pk_bf16_f32 v{HP[side]+c4}, v{XF[side]+2*c4}, v{XF[side]+2*c4+1}")
        K(f"ds_write_b128 v{HW}, {v(HP[side],4)} offset:{2176+1088*side}")
    K(f"""
    s_cmp_eq_u32 s{SFAST}, 0
    s_cselect_b32 s27, {SLOW_OFF}, 0
    s_add_u32 s{R_A}, s{PWS}, s27
    s_addc_u32 s{R_A+1}, s{PWS+1}, 0
    s_add_u32 s{R_A}, s{R_A}, {WS_X2}
    s_addc_u32 s{R_A+1}, s{R_A+1}, 0
    s_mov_b32 s{R_A+2}, 0x400000
    s_mov_b32 s{R_A+3}, 0x20000
    """)
    K(f"""
    v_lshrrev_b32 v8, 3, v1
    v_lshlrev_b32 v8, 8, v8
    v_and_b32 v9, 7, v1
    v_lshl_add_u32 v8, v9, 4, v8
    s_lshl_b32 s52, s54, 2
    s_lshr_b32 s53, s55, 1
    s_add_u32 s52, s52, s53
    s_lshl_b32 s52, s52, 14
    s_and_b32 s53, s55, 1
    s_lshl_b32 s53, s53, 7
    s_add_u32 s52, s52, s53
    s_and_b32 s53, s{SW}, 1
    s_lshl_b32 s53, s53, 13
    s_add_u32 s52, s52, s53
    s_lshr_b32 s53, s{SW}, 1
    s_lshl_b32 s53, s53, 21
    s_add_u32 s52, s52, s53
    s_add_u32 s53, s52, 4096
    """)
    lsync(K, 5, a=12, o=13, t=14)
    for i in range(4):
        K(f"ds_read_b128 {v(16+4*i,4)}, v{HR} offset:{i*128}")
    if PLAIN_DATA:
        K("s_waitcnt lgkmcnt(0)")
        K(f"s_cmp_eq_u32 s{SFAST}, 0")
        K("s_cbranch_scc1 P2_STS")
        K("; @save")
        for i in range(4):
            K(f"buffer_store_dwordx4 {v(16+4*i,4)}, v8, s[{R_A}:{R_A+3}], s{52 + i//2} offen offset:{(i%2)*2048}")
        K("s_branch P2_STD")
        K("P2_STS:")
        K("; @restore")
    for i in range(4):
        if not PLAIN_DATA: K(f"s_waitcnt lgkmcnt({3-i})")
        K(f"buffer_store_dwordx4 {v(16+4*i,4)}, v8, s[{R_A}:{R_A+3}], s{52 + i//2} offen offset:{(i%2)*2048} {SC}")
    K("P2_STD:")
    K.stamp(11)
    K(f"""
    s_bfe_u32 s54, s{SL}, 0x10001
    s_lshl_b32 s55, s{SX}, 1
    s_add_u32 s54, s54, s55
    s_and_b32 s55, s{SL}, 1
    s_lshr_b32 s52, s{SL}, 2
    s_lshl_b32 s52, s52, 1
    s_add_u32 s55, s55, s52
    s_lshl_b32 s56, s54, 3
    s_lshl_b32 s52, s{SW}, 1
    s_add_u32 s56, s56, s52
    s_lshl_b32 s57, s56, 14
    s_add_u32 s58, s57, 16384
    """)
    RA = 248
    def p3_setup(tag=None):
        K(f"""
        v_lshlrev_b32 v7, 4, v1
        v_bfe_u32 v4, v1, 2, 2
        v_and_b32 v6, 1, v2
        v_lshl_add_u32 v6, v6, 2, v4
        v_lshlrev_b32 v6, 1, v6
        v_lshl_add_u32 v4, v2, 3, v4
        v_lshlrev_b32 v4, 8, v4
        v_bfe_u32 v8, v1, 1, 1
        v_lshl_add_u32 v4, v8, 4, v4
        v_and_b32 v8, 1, v1
        v_lshl_add_u32 v4, v8, 3, v4
        """)
        for tau in range(7):
            K(f"v_xor_b32 v8, {2*tau}, v6")
            K(f"v_lshl_add_u32 v{RA+tau}, v8, 4, v4")
        srd_fs(K, R_U, 0x200000, WS_H2)
        srd_fs(K, R_B, H_BYTES, WS_H)
    K("s_waitcnt vmcnt(0)")
    gsync_group(K, "S2", 0, 24, 6, 7, p3_setup)
    K.stamp(12)
    ACT, AF, ACC = 64, 192, 8
    def issue3(ks):
        out = []
        for u in range(2):
            out.append(f"buffer_load_dwordx4 {v(ACT+(ks*2+u)*4,4)}, v7, s[{R_U}:{R_U+3}], s{57+u} offen offset:{(ks%4)*1024} {LDM}")
        if ks % 4 == 3:
            out[-1] += f"\n s_add_u32 s57, s57, 4096\n s_add_u32 s58, s58, 4096"
        return out
    PRE3 = envint('PRE3', 4)
    for ks in range(PRE3):
        for x in issue3(ks): K(x)
    def read3(ks, tau, rd):
        buf = ks % 2
        o = (ks % 8) * 8192
        return f"ds_read_b64_tr_b16 {v(AF+buf*28+tau*4+rd*2,2)}, v{RA+tau} offset:{o+rd*1024}"
    K(f"v_mov_b32 v12, {LSY}")
    lwait(K, 8, 4, 12, 14, st=27)
    lsy_regs(K, 4, 5)
    for tau in range(7):
        for rd in range(2): K(read3(0, tau, rd))
    issued = PRE3
    for ks in range(16):
        pend = []
        if issued < 16:
            pend = issue3(issued); issued += 1
        nout_before = (issued - 1 - ks) * 2 - len(pend)
        K(f"s_waitcnt vmcnt({max(0, nout_before)})")
        if ks == 0: K.stamp(13)
        buf = ks % 2
        for tau in range(7):
            K(f"s_waitcnt lgkmcnt({12 if ks < 15 else 12-2*tau})")
            for u in range(2):
                d = ACC+(u*7+tau)*4
                K(f"v_mfma_f32_16x16x32_bf16 {v(d,4)}, {v(AF+buf*28+tau*4,4)}, {v(ACT+(ks*2+u)*4,4)}, {'0' if ks==0 else v(d,4)}")
                if ks < 15:
                    if ks == 7 and u == 0: K(f"v_add_u32 v{RA+tau}, 0x10000, v{RA+tau}")
                    K(read3(ks+1, tau, u))
            if pend and tau in (2, 5): K(pend.pop(0))
        if ks in RSIG:
            K(f"s_mov_b64 exec, 1")
            K(f"ds_add_u32 v4, v5 offset:{4*(16 + RSIG.index(ks))}")
            K(f"s_mov_b64 exec, -1")
    if not envint('B3LATE', 0):
        lsy_regs(K, 4, 5)
        larrive(K, 9, 4, 5)
    K.stamp(14)
    PKR = 64
    K(f"""
    v_and_b32 v4, 1, v2
    v_lshlrev_b32 v4, 9, v4
    v_lshrrev_b32 v5, 1, v2
    v_lshl_add_u32 v4, v5, 8, v4
    v_lshl_add_u32 v4, v3, 4, v4
    s_and_b32 s60, s55, 1
    v_lshlrev_b32 v6, 8, v5
    v_lshl_add_u32 v6, v3, 4, v6
    v_and_b32 v5, 1, v2
    v_mul_u32_u24 v5, 57344, v5
    v_add_u32 v6, v6, v5
    s_mul_i32 s52, s55, 7
    s_add_u32 s57, s52, s60
    s_lshr_b32 s57, s57, 1
    s_lshl_b32 s57, s57, 10
    s_mul_i32 s53, s56, 57344
    s_add_u32 s57, s57, s53
    s_add_u32 s58, s57, 57344
    s_lshr_b32 s59, s52, 1
    s_cmp_eq_u32 s60, 0
    s_cselect_b32 s61, 3, 0
    s_add_u32 s59, s59, s61
    s_lshl_b32 s59, s59, 10
    s_add_u32 s59, s59, s53
    s_lshl_b32 s60, s60, 9
    s_add_u32 s59, s59, s60
    """)
    def h_epilogue(mod):
        for u in range(2):
            for tau in range(7):
                if tau % 2 == 1:
                    b = PKR+(u*3+tau//2)*4
                    K(f"buffer_store_dwordx4 {v(b,4)}, v4, s[{R_B}:{R_B+3}], s{57+u} offen offset:{(tau//2)*1024} {mod}")
        K(f"buffer_store_dwordx4 {v(PKR+24,4)}, v6, s[{R_B}:{R_B+3}], s59 offen {mod}")
    for u in range(2):
        for tau in range(7):
            d = ACC+(u*7+tau)*4
            for r in range(4):
                K(f"v_max_f32 v{d+r}, 0, v{d+r}")
            b = PKR+(u*3+tau//2)*4+(tau%2)*2 if tau < 6 else PKR+24+u*2
            K(f"v_cvt_pk_bf16_f32 v{b}, v{d}, v{d+1}")
            K(f"v_cvt_pk_bf16_f32 v{b+1}, v{d+2}, v{d+3}")
            if tau % 2 == 1:
                b = PKR+(u*3+tau//2)*4
                K(f"v_permlane16_swap_b32 v{b}, v{b+2}")
                K(f"v_permlane16_swap_b32 v{b+1}, v{b+3}")
                if not PLAIN_DATA:
                    K(f"buffer_store_dwordx4 {v(b,4)}, v4, s[{R_B}:{R_B+3}], s{57+u} offen offset:{(tau//2)*1024} {SC}")
    b = PKR+24
    K(f"v_permlane16_swap_b32 v{b}, v{b+2}")
    K(f"v_permlane16_swap_b32 v{b+1}, v{b+3}")
    if not PLAIN_DATA:
        K(f"buffer_store_dwordx4 {v(PKR+24,4)}, v6, s[{R_B}:{R_B+3}], s59 offen {SC}")
    if PLAIN_DATA:
        K(f"s_cmp_eq_u32 s{SFAST}, 0")
        K("s_cbranch_scc1 P3_STS")
        K("; @save")
        h_epilogue("")
        K("s_branch P3_STD")
        K("P3_STS:")
        K("; @restore")
        h_epilogue(SC)
    K("P3_STD:")
    if envint('B3LATE', 0):
        lsy_regs(K, 8, 9)
        larrive(K, 9, 8, 9)
    K.stamp(15)
    K(f"""
    s_and_b32 s56, s55, 1
    s_lshl_b32 s56, s56, 2
    s_lshl_b32 s52, s54, 3
    s_add_u32 s56, s56, s52
    s_lshr_b32 s55, s55, 1
    """)
    NSLOT, SLOT = NSLOT_, 4096
    ACC4, AF4, RING, NR = 8, 72, 104, 8
    RA4 = 232
    def p4_setup(tag=None):
        K(f"""
        v_lshlrev_b32 v7, 4, v1
        s_mul_i32 s57, s56, 57344
        s_mul_i32 s52, s{SW}, {14*1024}
        s_add_u32 s57, s57, s52
        s_add_u32 s58, s{SW}, 1
        s_and_b32 s58, s58, 3
        s_mul_i32 s58, s58, 57344
        s_add_u32 s58, s58, s57
        s_add_u32 s59, s{SW}, 2
        s_and_b32 s59, s59, 3
        s_mul_i32 s59, s59, 57344
        s_add_u32 s59, s59, s57
        s_add_u32 s60, s{SW}, 3
        s_and_b32 s60, s60, 3
        s_mul_i32 s60, s60, 57344
        s_add_u32 s60, s60, s57
        s_mul_i32 s52, s{SW}, 57344
        s_add_u32 s57, s57, s52
        v_lshrrev_b32 v4, 3, v1
        v_and_b32 v5, 7, v1
        v_bfe_u32 v6, v1, 4, 1
        v_lshlrev_b32 v6, 1, v6
        v_xor_b32 v8, v5, v6
        v_xor_b32 v9, 4, v8
        v_lshlrev_b32 v4, 10, v4
        s_lshl_b32 s52, s55, 7
        v_add_u32 v4, s52, v4
        v_lshl_add_u32 v5, v8, 4, v4
        v_lshl_add_u32 v6, v9, 4, v4
        s_mul_i32 s61, s{SW}, {448*1024}
        s_add_u32 s61, s61, {NSLOT*32*1024}
        s_mul_i32 s62, s{SW}, {NSLOT*SLOT}
        v_bfe_u32 v9, v1, 2, 2
        v_bfe_u32 v10, v1, 3, 1
        v_and_b32 v11, 1, v2
        v_lshl_add_u32 v10, v11, 1, v10
        v_lshlrev_b32 v10, 1, v10
        v_lshl_add_u32 v9, v2, 3, v9
        v_lshlrev_b32 v9, 7, v9
        v_bfe_u32 v11, v1, 1, 1
        v_lshl_add_u32 v9, v11, 4, v9
        v_and_b32 v11, 1, v1
        v_lshl_add_u32 v9, v11, 3, v9
        v_add_u32 v9, s62, v9
        """)
        for tau in range(4):
            K(f"v_xor_b32 v11, {2*tau}, v10")
            K(f"v_lshl_add_u32 v{RA4+tau}, v11, 4, v9")
        srd(K, R_X, PW2, 0 if envint('NOW', 0) & 2 else 1792*1024)
        srd_fs(K, R_A, 0x200000, WS_X2)
        K(f"""
        v_and_b32 v9, 1, v2
        v_lshlrev_b32 v9, 1, v9
        v_lshrrev_b32 v10, 1, v2
        v_add_u32 v9, v9, v10
        v_lshlrev_b32 v248, 8, v9
        v_lshl_add_u32 v248, v3, 4, v248
        v_lshlrev_b32 v249, 4, v9
        """)
    K("s_waitcnt vmcnt(0)")
    gsync_group(K, "S3", 1, 56, 10, 11, lambda t: p4_setup(t))
    K.stamp(16)
    def act(ks, u): return v(RING+((ks % NR)*4+u)*4, 4)
    def issue4(ks):
        out = []
        for u in range(4):
            out.append(f"buffer_load_dwordx4 {act(ks,u)}, v7, s[{R_B}:{R_B+3}], s{57+u} offen offset:{(ks%4)*1024} {LDM}")
        if ks % 4 == 3:
            out[-1] += "".join(f"\n s_add_u32 s{57+u}, s{57+u}, 4096" for u in range(4))
        return out
    def read4(ks, tau, rd):
        buf = ks % 2
        o = (ks % NSLOT) * SLOT
        return f"ds_read_b64_tr_b16 {v(AF4+buf*16+tau*4+rd*2,2)}, v{RA4+tau} offset:{o+rd*512}"
    def dma4(ks):
        slot = ks % NSLOT
        out = []
        for m in range(4):
            out.append(f"s_add_u32 m0, s62, {slot*SLOT + m*1024}\n buffer_load_dwordx4 v{5 + (m&1)}, s[{R_X}:{R_X+3}], s61 offen lds\n s_add_u32 s61, s61, 8192")
        return out
    ops = []
    PRE4 = envint('PRE4', 3)
    for ks in range(PRE4):
        for x in issue4(ks): K(x); ops.append(("act", ks))
    if P4ST: K.stamp(14, force=True)
    K(f"v_mov_b32 v12, {LSY}")
    lwait(K, 12, 4, 12, 14, st=27)
    if P4ST: K.stamp(15, force=True)
    for tau in range(4):
        for rd in range(2): K(read4(0, tau, rd))
    queue = []
    for k2 in range(PRE4, 14):
        for t in issue4(k2): queue.append(("act", k2, t, max(0, k2 - NR + 1)))
    for k2 in range(NSLOT, 14):
        for t in dma4(k2): queue.append(("dma", k2, t, k2 - NSLOT + 1))
    needed = lambda q: q[1] if q[0] == "act" else q[1] - 1
    GBF = 208
    PER = envint('PER4', 6)
    for ks in range(14):
        need = lambda o: (o == ("act", ks)) or (o == ("dma", ks+1))
        idx = max(i for i, o in enumerate(ops) if need(o))
        K(f"s_waitcnt vmcnt({min(63, len(ops)-1-idx)})")
        if ks == 0: K.stamp(17)
        if P4ST and ks in (1, 3, 5, 7, 8, 9, 10, 11, 13): K.stamp(2 + (1, 3, 5, 7, 8, 9, 10, 11, 13).index(ks), force=True)
        elig = sorted([q for q in queue if q[3] <= ks], key=needed)
        must = [q for q in elig if needed(q) <= ks + 2]
        take = elig[:max(PER, len(must))]
        for q in take: queue.remove(q)
        buf = ks % 2
        slots = 0
        for tau in range(4):
            K(f"s_waitcnt lgkmcnt({6 if ks < 13 else 6-2*tau})")
            for u in range(4):
                d = ACC4+(u*4+tau)*4
                K(f"v_mfma_f32_16x16x32_bf16 {v(d,4)}, {v(AF4+buf*16+tau*4,4)}, {act(ks,u)}, {'0' if ks==0 else v(d,4)}")
                if ks < 13 and u < 2: K(read4(ks+1, tau, u))
                elif take:
                    kind, kk, text, _ = take.pop(0); K(text); ops.append((kind, kk))
        while take:
            kind, kk, text, _ = take.pop(0); K(text); ops.append((kind, kk))
        if ks == 8:
            K(f"""
            s_add_u32 s52, s56, s{SW}
            s_lshl_b32 s52, s52, 14
            s_lshl_b32 s53, s55, 11
            s_add_u32 s52, s52, s53
            v_lshlrev_b32 v250, 1, v249
            s_lshl_b32 s53, s55, 8
            s_add_u32 s53, s53, {5*2048}
            """)
            K(f"buffer_load_dwordx4 {v(240,4)}, v248, s[{R_A}:{R_A+3}], s52 offen {SC}"); ops.append(("epi", 0))
            K(f"buffer_load_dwordx4 {v(244,4)}, v248, s[{R_A}:{R_A+3}], s52 offen offset:1024 {SC}"); ops.append(("epi", 0))
            for pr in range(2):
                K(f"buffer_load_dwordx4 {v(GBF+pr*8,4)}, v250, s[{R_MOD}:{R_MOD+3}], s53 offen offset:{pr*128} {SC}"); ops.append(("epi", 0))
                K(f"buffer_load_dwordx4 {v(GBF+pr*8+4,4)}, v250, s[{R_MOD}:{R_MOD+3}], s53 offen offset:{pr*128+16} {SC}"); ops.append(("epi", 0))
    assert not queue, queue
    if P4ST: K.stamp(11, force=True)
    RSTR = NSLOT*SLOT
    K(f"""
    v_lshlrev_b32 v104, 4, v1
    v_add_u32 v105, s62, v104
    """)
    for u in range(1, 4):
        for tau in range(4):
            K(f"ds_write_b128 v105, {v(ACC4+(u*4+tau)*4,4)} offset:{(u-1)*4096+tau*1024}")
    XF4, GF4, GBP = 72, 88, 106
    VT = 114
    K(f"""
    s_add_u32 s52, s56, s{SW}
    s_lshl_b32 s52, s52, 4
    v_add_u32 v{VT}, s52, v3
    v_lshrrev_b32 v{VT+1}, 6, v{VT}
    v_bfe_u32 v{VT+2}, v{VT}, 1, 5
    v_and_b32 v{VT+3}, 1, v{VT}
    v_lshlrev_b32 v{VT+4}, 6, v{VT+2}
    v_add_u32 v{VT+5}, v{VT+1}, v{VT+4}
    v_cmp_eq_u32 vcc, 0, v{VT+1}
    v_subrev_u32 v{VT+6}, {64*16-32}, v{VT+4}
    v_cmp_lt_u32 s[52:53], 15, v{VT+2}
    v_cndmask_b32 v{VT+6}, v{VT+4}, v{VT+6}, s[52:53]
    v_cndmask_b32 v{VT+5}, v{VT+5}, v{VT+6}, vcc
    v_sub_u32 v{VT+6}, 2048, v{VT+5}
    v_lshrrev_b32 v{VT+7}, 1, v{VT}
    v_cmp_eq_u32 vcc, 0, v{VT+7}
    v_mov_b32 v{VT+7}, 1024
    v_cndmask_b32 v{VT+6}, v{VT+6}, v{VT+7}, vcc
    v_cmp_eq_u32 vcc, 1, v{VT+3}
    v_cndmask_b32 v{VT+5}, v{VT+5}, v{VT+6}, vcc
    v_lshlrev_b32 v{VT+5}, 10, v{VT+5}
    v_add_u32 v{VT+5}, v{VT+5}, v249
    """)
    srd(K, R_X, POUT, 0x200000)
    K("s_waitcnt vmcnt(0)")
    for pr in range(2):
        for p in range(4): K(f"v_cvt_pk_bf16_f32 v{GBP+pr*4+p}, v{GBF+pr*8+2*p}, v{GBF+pr*8+2*p+1}")
    XRs = [240, 244]
    for pr in range(2):
        unpack8(K, XRs[pr], XF4+pr*8)
        unpack8(K, GBP+pr*4, GF4+pr*8)
    for u in range(1, 4):
        K(f"s_sub_u32 s52, s{SW}, {u}")
        K(f"s_and_b32 s52, s52, 3")
        K(f"s_mul_i32 s52, s52, {RSTR}")
        K(f"v_add_u32 v{122+u}, s52, v104")
    K(f"s_lshl_b32 s52, s55, 7")
    K("s_waitcnt lgkmcnt(0)")
    if P4ST: K.stamp(12, force=True)
    K("s_barrier")
    if P4ST: K.stamp(13, force=True)
    RD = 136
    for tau in range(4):
        for u in range(1, 4):
            K(f"ds_read_b128 {v(RD+((u-1)*4+tau)*4,4)}, v{122+u} offset:{(u-1)*4096+tau*1024}")
    for pr in range(2):
        for tau in (2*pr, 2*pr+1):
            K(f"s_waitcnt lgkmcnt({9-3*tau})")
            for r in range(4):
                x = ACC4+tau*4+r
                K(f"v_add_f32 v{x}, v{x}, v{RD+tau*4+r}")
                K(f"v_add_f32 v{RD+(4+tau)*4+r}, v{RD+(4+tau)*4+r}, v{RD+(8+tau)*4+r}")
            for r in range(4):
                x = ACC4+tau*4+r
                K(f"v_add_f32 v{x}, v{x}, v{RD+(4+tau)*4+r}")
        A_, B_ = ACC4+(2*pr)*4, ACC4+(2*pr+1)*4
        for r in range(4):
            K(f"v_permlane16_swap_b32 v{A_+r}, v{B_+r}")
        for e in range(8):
            K(f"v_fma_f32 v{XF4+pr*8+e}, v{GF4+pr*8+e}, v{A_+e}, v{XF4+pr*8+e}")
        for c in range(4):
            K(f"v_cvt_pk_bf16_f32 v{56+pr*4+c}, v{XF4+pr*8+2*c}, v{XF4+pr*8+2*c+1}")
        K(f"buffer_store_dwordx4 {v(56+pr*4,4)}, v{VT+5}, s[{R_X}:{R_X+3}], s52 offen offset:{pr*64} {os.environ.get('OUTM', 'sc1')}")
    if STAMPS:
        K("s_waitcnt vmcnt(0)")
        K("s_memtime s[100:101]")
        K("s_memrealtime s[62:63]")
        K("s_waitcnt lgkmcnt(0)")
        K("s_mov_b32 s65, s62")
        dump(K)
    K("s_endpgm")

    K("L_HELPER:")
    K.in_helper = True
    K.reset_state()
    K("s_waitcnt lgkmcnt(0)")
    K(f"v_lshlrev_b32 v7, 4, v1")
    K("v_mov_b32 v60, 0")
    K("v_mov_b32 v61, 0")
    if envint('TLB', 0):
        PG = envint('PG', 21)
        K("; @save")
        K(f"""
        s_cmp_lg_u32 s{SW}, {envint('TLBW', 3)}
        s_cbranch_scc1 H_NOTLB
        """)
        srd(K, R_A, PWS, WS_H + H_BYTES)
        K(f"v_lshlrev_b32 v8, {PG}, v1")
        K(f"buffer_load_dword v9, v8, s[{R_A}:{R_A+3}], 0 offen")
        srd(K, R_A, POUT, 0x200000)
        K(f"buffer_load_dword v9, v8, s[{R_A}:{R_A+3}], 0 offen")
        K(f"v_mov_b32 v10, 0x1ffffc")
        K(f"buffer_load_dword v9, v10, s[{R_A}:{R_A+3}], 0 offen")
        srd(K, R_A, PDBG, 256)
        K(f"v_mov_b32 v10, 0")
        K(f"buffer_load_dword v9, v10, s[{R_A}:{R_A+3}], 0 offen")
        srd(K, R_A, PW1, 512*3584)
        K(f"buffer_load_dword v9, v8, s[{R_A}:{R_A+3}], 0 offen")
        srd(K, R_A, PW2, 1792*1024)
        K(f"buffer_load_dword v9, v8, s[{R_A}:{R_A+3}], 0 offen")
        K("H_NOTLB:")
        K("; @restore")
    K("; @save")
    K(f"""
    s_or_b32 s52, s2, s{SW}
    s_cmp_lg_u32 s52, 0
    s_cbranch_scc1 H_NOINIT
    """)
    srd(K, R_A, PWS, 0x7000)
    srd(K, R_B, PDBG, 256)
    K(f"""
    v_mov_b32 v12, 0
    v_mov_b32 v13, 0
    v_mov_b32 v14, 0
    v_mov_b32 v15, 0
    s_movk_i32 s52, 0x4000
    """)
    for i in range(11):
        K(f"buffer_store_dwordx4 v[12:15], v7, s[{R_A}:{R_A+3}], s52 offen sc1")
        K(f"s_add_u32 s52, s52, 1024")
    K("s_mov_b32 s52, 0")
    for i in range(12):
        K(f"buffer_store_dwordx4 v[12:15], v7, s[{R_A}:{R_A+3}], s52 offen sc1")
        K(f"s_add_u32 s52, s52, 1024")
    K(f"""
    s_memrealtime s[52:53]
    s_waitcnt vmcnt(0) lgkmcnt(0)
    s_or_b32 s52, s52, 1
    v_mov_b32 v12, s52
    s_mov_b64 exec, 1
    buffer_store_dword v12, v13, s[{R_B}:{R_B+3}], 0 offen sc1
    s_mov_b64 exec, -1
    H_NOINIT:
    """)
    K("; @restore")
    K(f"""
    s_and_b32 s55, s{SL}, 1
    s_lshr_b32 s52, s{SL}, 2
    s_lshl_b32 s52, s52, 1
    s_add_u32 s55, s55, s52
    s_lshr_b32 s52, s{SW}, 1
    s_lshl_b32 s52, s52, 3
    v_lshl_add_u32 v4, v2, 1, s52
    v_xor_b32 v4, v4, v3
    s_and_b32 s52, s55, 1
    s_lshl_b32 s52, s52, 1
    v_add_u32 v6, s52, v4
    v_subrev_u32 v12, 14, v6
    v_cmp_le_u32 vcc, 14, v6
    v_cndmask_b32 v6, v6, v12, vcc
    v_mul_u32_u24 v5, 3584, v2
    v_lshl_add_u32 v5, v6, 4, v5
    s_mul_i32 s52, s55, 224
    v_add_u32 v5, s52, v5
    v_cmp_gt_u32 vcc, 14, v4
    v_mov_b32 v6, 0x40000000
    v_cndmask_b32 v5, v6, v5, vcc
    s_mul_i32 s56, s{SW}, {4*3584}
    s_lshl_b32 s57, s{SW}, 10
    s_mul_i32 s58, s{SL}, 57344
    s_mul_i32 s52, s{SW}, 14336
    s_add_u32 s58, s58, s52
    """)
    NOW = envint('NOW', 0)
    srd(K, R_X, PW1, 0 if NOW & 1 else 512*3584)
    srd(K, R_U, PW2, 0 if NOW & 2 else 1792*1024)
    state = dict(w1=0, w2=0, out=0)
    def throttle(thr=None):
        thr = thr or THR
        if state['out'] >= thr:
            K(f"s_waitcnt vmcnt({thr-1})"); state['out'] = thr-1
    def w1dma(n):
        for _ in range(n):
            throttle()
            K(f"s_mov_b32 m0, s57")
            K(f"buffer_load_dwordx4 v5, s[{R_X}:{R_X+3}], s56 offen lds")
            K(f"s_add_u32 s56, s56, {16*3584}")
            K(f"s_add_u32 s57, s57, 4096")
            state['w1'] += 1; state['out'] += 1
    def w2pf(n):
        for _ in range(n):
            throttle()
            K(f"buffer_load_dwordx4 v[8:11], v7, s[{R_U}:{R_U+3}], s58 offen")
            K(f"s_add_u32 s58, s58, 1024")
            state['w2'] += 1; state['out'] += 1
    W, CV, AC, T = 16, 32, 40, 48
    K("; @save")
    K(f"""
    s_cmp_ge_u32 s2, 192
    s_cbranch_scc1 H_NOMOD1
    s_mul_i32 s52, s2, 1366
    s_lshr_b32 s52, s52, 16
    s_mul_i32 s53, s52, 48
    s_sub_u32 s53, s2, s53
    """)
    srd(K, R_A, PC, 1024)
    srd(K, R_B, PWM, 512*6144)
    K(f"""
    v_lshrrev_b32 v16+46, 3, v1
    v_and_b32 v16+47, 7, v1
    s_lshl_b32 s54, s52, 7
    s_lshl_b32 s59, s{SW}, 5
    s_add_u32 s54, s54, s59
    v_add_u32 v10, s54, v62
    v_mul_u32_u24 v11, 6144, v10
    v_lshl_add_u32 v11, v63, 4, v11
    s_lshl_b32 s59, s53, 7
    v_lshlrev_b32 v10, 1, v10
    s_mov_b32 s60, s53
    """.replace("v16+46", "v62").replace("v16+47", "v63"))
    for it in range(4):
        K(f"buffer_load_ushort v{CV+it}, v10, s[{R_A}:{R_A+3}], 0 offen offset:{it*16}")
    for it in range(4):
        K(f"buffer_load_dwordx4 {v(W+it*4,4)}, v11, s[{R_B}:{R_B+3}], s59 offen")
        if it < 3: K(f"s_add_u32 s59, s59, {8*6144}")
    K("H_NOMOD1:")
    nwarm = 0
    if WARM:
        K(f"""
        s_mul_i32 s61, s2, 7168
        s_lshl_b32 s62, s{SW}, 11
        s_add_u32 s61, s61, s62
        """)
        for i in range(2):
            K(f"buffer_load_dwordx4 v[64:67], v7, s[{R_X}:{R_X+3}], s61 offen offset:{i*1024}")
        nwarm += 2
        if WARM >= 2:
            for i in range(2):
                K(f"buffer_load_dwordx4 v[64:67], v7, s[{R_U}:{R_U+3}], s61 offen offset:{i*1024}")
            nwarm += 2
    n1 = envint('N1', THR)
    for _ in range(n1):
        K(f"s_mov_b32 m0, s57")
        K(f"buffer_load_dwordx4 v5, s[{R_X}:{R_X+3}], s56 offen lds")
        K(f"s_add_u32 s56, s56, {16*3584}")
        K(f"s_add_u32 s57, s57, 4096")
        state['w1'] += 1
    state['out'] = n1 + nwarm
    n1 += nwarm
    K(f"""
    s_cmp_ge_u32 s2, 192
    s_cbranch_scc1 H_NOMOD2
    """)
    K(f"s_waitcnt vmcnt({n1+4})")
    for it in range(4): K(f"v_lshlrev_b32 v{CV+it}, 16, v{CV+it}")
    for it in range(4): K(f"v_mul_f32 v{T+it}, {fconst(-1.4426950408889634)}, v{CV+it}")
    for it in range(4): K(f"v_exp_f32 v{T+it}, v{T+it}")
    for it in range(4): K(f"v_add_f32 v{T+it}, 1.0, v{T+it}")
    for it in range(4): K(f"v_rcp_f32 v{T+it}, v{T+it}")
    for it in range(4): K(f"v_mul_f32 v{T+it}, v{CV+it}, v{T+it}")
    for it in range(4): K(f"v_cvt_pk_bf16_f32 v{CV+it}, v{T+it}, 0")
    for it in range(4): K(f"v_lshlrev_b32 v{CV+4+it}, 16, v{CV+it}")
    for it in range(4):
        K(f"s_waitcnt vmcnt({n1+3-it})")
        for c4 in range(4):
            K(f"v_dot2_f32_bf16 v{AC+2*c4}, v{W+it*4+c4}, v{CV+it}, {'0' if it==0 else 'v%d'%(AC+2*c4)}")
            K(f"v_dot2_f32_bf16 v{AC+2*c4+1}, v{W+it*4+c4}, v{CV+4+it}, {'0' if it==0 else 'v%d'%(AC+2*c4+1)}")
    for e in range(8):
        K(f"v_add_f32_dpp v{AC+e}, v{AC+e}, v{AC+e} row_ror:8 row_mask:0xf bank_mask:0xf")
    for swap in ("v_permlane16_swap_b32", "v_permlane32_swap_b32"):
        for e in range(8): K(f"v_mov_b32 v{T+e}, v{AC+e}")
        for e in range(8): K(f"{swap} v{AC+e}, v{T+e}")
        for e in range(8): K(f"v_add_f32 v{AC+e}, v{AC+e}, v{T+e}")
    K(f"v_mov_b32 v60, v{AC}")
    for e in range(1, 8):
        K(f"v_cmp_eq_u32 vcc, {e}, v62")
        K(f"v_cndmask_b32 v60, v60, v{AC+e}, vcc")
    K(f"""
    v_lshlrev_b32 v61, 3, v63
    v_add_u32 v61, v61, v62
    v_lshlrev_b32 v61, 2, v61
    s_lshl_b32 s52, s60, 8
    v_add_u32 v61, s52, v61
    H_NOMOD2:
    """)
    K("; @restore")
    K.stamp(2)
    w1dma(envint('N2', 2))
    K(f"""
    s_cmp_lg_u32 s{SW}, 0
    s_cbranch_scc1 H_FLW
    """)
    srd(K, R_B, PWS, 0x10000)
    K(f"""
    s_bfe_u32 s52, s{SL}, 0x10001
    s_lshl_b32 s53, s{SX}, 1
    s_add_u32 s52, s52, s53
    s_lshl_b32 s52, s52, 7
    s_add_u32 s52, s52, {WS_GX}
    s_lshl_b32 s53, s55, 2
    s_add_u32 s52, s52, s53
    s_getreg_b32 s53, hwreg(HW_REG_XCC_ID)
    s_and_b32 s53, s53, 15
    v_mov_b32 v12, s53
    v_mov_b32 v13, 0
    s_mov_b64 exec, 1
    buffer_store_dword v12, v13, s[{R_B}:{R_B+3}], s52 offen sc1
    s_mov_b64 exec, -1
    """)
    srd(K, R_A, PDBG, 256)
    K(f"""
    v_mov_b32 v13, 0
    H_POLL:
    buffer_load_dword v12, v13, s[{R_A}:{R_A+3}], 0 offen sc1
    s_waitcnt vmcnt(0)
    v_readfirstlane_b32 s52, v12
    s_sub_u32 s{SSPIN}, s{SSPIN}, 1
    s_cbranch_scc1 H_NOPOLL
    s_cmp_eq_u32 s52, 0
    s_cbranch_scc1 H_POLL
    H_NOPOLL:
    v_mov_b32 v12, {LSY}
    v_mov_b32 v13, s52
    s_mov_b64 exec, 1
    ds_write_b32 v12, v13 offset:56
    v_mov_b32 v13, 1
    ds_write_b32 v12, v13 offset:52
    s_mov_b64 exec, -1
    s_branch H_FLD
    H_FLW:
    v_mov_b32 v12, {LSY}
    """)
    lwait(K, 13, 1, 12, 14, st=27)
    K("H_FLD:")
    K.stamp(4)
    K("; @save")
    K(f"""
    s_cmp_ge_u32 s2, 192
    s_cbranch_scc1 H_NOAT
    """)
    srd(K, R_A, PWS, 12288)
    K(f"""
    buffer_atomic_add_f32 v60, v61, s[{R_A}:{R_A+3}], 0 offen
    H_NOAT:
    """)
    K("; @restore")
    n3 = envint('N3', 1)
    for _ in range(n3):
        K(f"s_mov_b32 m0, s57")
        K(f"buffer_load_dwordx4 v5, s[{R_X}:{R_X+3}], s56 offen lds")
        K(f"s_add_u32 s56, s56, {16*3584}")
        K(f"s_add_u32 s57, s57, 4096")
        state['w1'] += 1
    K(f"s_waitcnt vmcnt({n3})")
    state['out'] = n3
    srd(K, SYNC, PWS, SYNC_BYTES, WS_SYNC)
    K(f"""
    v_mov_b32 v12, {LSY}
    v_mov_b32 v13, 1
    s_mov_b64 exec, 1
    ds_add_rtn_u32 v14, v12, v13 offset:8
    s_waitcnt lgkmcnt(0)
    v_readfirstlane_b32 s27, v14
    s_cmp_lg_u32 s27, 7
    s_cbranch_scc1 H_S1A
    s_lshl_b32 s52, s{SX}, 7
    v_mov_b32 v14, s52
    buffer_atomic_add v13, v14, s[{SYNC}:{SYNC+3}], 0 offen
    H_S1A:
    s_mov_b64 exec, -1
    """)
    state['out'] += 1
    K.stamp(6)
    if envint('GATE1', 0):
        w1dma(envint('W1EARLY', 0))
        K(f"v_mov_b32 v12, {LSY}")
        if envint('GATE1', 0) == 2: lwait(K, 19, 4, 12, 14, st=27)
        else: lwait(K, 3, 1, 12, 14, st=27)
    w1dma(32 - state['w1'])
    K("s_waitcnt vmcnt(0)"); state['out'] = 0
    lsy_regs(K, 12, 13)
    larrive(K, 8, 12, 13)
    K.stamp(12)
    if envint('GATE2', 0):
        lwait(K, 7, 1, 12, 14, st=27)
    W2M = envint('W2M', 0 if WARM >= 2 else 1)
    if W2M == 1:
        K(f"""
        s_mul_i32 s58, s2, 7168
        s_lshl_b32 s52, s{SW}, 11
        s_add_u32 s58, s58, s52
        """)
        for i in range(2):
            K(f"buffer_load_dwordx4 v[8:11], v7, s[{R_U}:{R_U+3}], s58 offen offset:{i*1024}")
        state['out'] += 2
    elif W2M == 2:
        w2pf(14)
    K.stamp(13)
    K(f"""
    s_lshr_b32 s55, s55, 1
    v_lshrrev_b32 v4, 3, v1
    v_and_b32 v5, 7, v1
    v_bfe_u32 v6, v1, 4, 1
    v_lshlrev_b32 v6, 1, v6
    s_and_b32 s52, s{SW}, 1
    s_lshl_b32 s52, s52, 2
    v_xor_b32 v6, s52, v6
    v_xor_b32 v5, v5, v6
    v_lshlrev_b32 v4, 10, v4
    s_lshl_b32 s52, s55, 7
    v_add_u32 v4, s52, v4
    v_lshl_add_u32 v5, v5, 4, v4
    """)
    THR2 = envint('THR2', 9)
    out = state['out']
    for ring in range(4):
        lwait(K, (16, 17, 18, 9)[ring], 4, 12, 14, st=27)
        if ring == 0: K.stamp(14)
        K(f"""
        s_lshl_b32 s61, s{SW}, 13
        s_add_u32 s61, s61, {ring*448*1024}
        s_lshl_b32 s62, s{SW}, 10
        s_add_u32 s62, s62, {ring*NSLOT_*4096}
        """)
        for sl in range(NSLOT_):
            if out >= THR2:
                K(f"s_waitcnt vmcnt({THR2-1})"); out = THR2-1
            K(f"s_mov_b32 m0, s62")
            K(f"buffer_load_dwordx4 v5, s[{R_U}:{R_U+3}], s61 offen lds")
            K(f"s_add_u32 s61, s61, 32768")
            K(f"s_add_u32 s62, s62, 4096")
            out += 1
    K("s_waitcnt vmcnt(0)")
    larrive(K, 12, 12, 13)
    K.stamp(15)
    if STAMPS:
        K("s_memtime s[100:101]")
        K("s_memrealtime s[62:63]")
        K("s_waitcnt lgkmcnt(0)")
        K("s_mov_b32 s65, s62")
        dump(K)
    K("L_END:")
    K("s_endpgm")
    return K

def dump(K):
    n = 19
    K("s_waitcnt vmcnt(0) lgkmcnt(0)")
    K(f"s_add_u32 s52, s{PWS}, {WS_DBG}")
    K(f"s_addc_u32 s53, s{PWS+1}, 0")
    K("s_mov_b32 s54, 0x1000000")
    K("s_mov_b32 s55, 0x20000")
    for i in range(n):
        K(f"v_writelane_b32 v250, s{64+2*i}, {i}")
    K(f"v_writelane_b32 v250, s65, 20")
    K(f"v_and_b32 v251, 63, v0")
    K(f"v_lshlrev_b32 v251, 2, v251")
    K(f"s_lshl_b32 s56, s2, 3")
    K(f"s_add_u32 s56, s56, s{SW8}")
    K(f"s_lshl_b32 s56, s56, 8")
    K(f"buffer_store_dword v250, v251, s[52:55], s56 offen")
    K("s_waitcnt vmcnt(0)")

if __name__ == "__main__":
    K = gen()
    txt = "; adaLN + FNet (FFT factorised, MFMA) + ReLU FFN, one persistent launch\n"
    if PLAIN: txt += f"; @launch grid=(256,1,1) block=(512,1,1) lds={LDS_TOTAL}\n"
    else: txt += f"; @launch kernel=main_kernel grid=(256,1,1) block=(512,1,1) lds={LDS_TOTAL}\n"
    txt += '.amdgcn_target "amdgcn-amd-amdhsa--gfx950"\n'
    txt += head(K.name) + K.finalize() + desc(K.name, 256, 256)
    out = sys.argv[1] if len(sys.argv) > 1 else f"cdna_kernels/{NAME}.s"
    open(out, "w").write(txt)
    print("wrote", out, len(txt))
```
